```python
import torch

def _softmax(x, axis=-1):
    return torch.softmax(x, dim=axis)
def _gelu(x):
    return torch.nn.functional.gelu(x, approximate="tanh")
def _silu(x):
    return torch.nn.functional.silu(x)
def _sigmoid(x):
    return torch.sigmoid(x)
def _layernorm(x, axis=-1, eps=1e-5):
    m = x.mean(dim=axis, keepdim=True)
    v = x.var(dim=axis, keepdim=True, unbiased=False)
    return (x - m) / torch.sqrt(v + eps)
def _scatter_add(tgt, idx, src, axis=0):
    return tgt.clone().index_add_(axis, idx, src)
def _segment_sum(src, seg, n):
    out = torch.zeros((n,) + src.shape[1:], dtype=src.dtype)
    return out.index_add_(0, seg, src)
def _pad(x, pw):
    flat = tuple(v for pair in reversed(pw) for v in pair)
    return torch.nn.functional.pad(x, flat)

kernel_name = 'gather_scatter__edge_featured_mpnn_egc__graph'

def setup_inputs():

    _w = (lambda a: (lambda t: t.to(torch.bfloat16) if t.is_floating_point() else t)(torch.as_tensor(a)))
    N, deg, D, De = 10000, 16, 256, max(16, 1)
    E = N * deg
    return {
        "x": _w((lambda *s: torch.randn(*s, dtype=torch.bfloat16) * 0.1)(N, D)),
        "e_attr": _w((lambda *s: torch.randn(*s, dtype=torch.bfloat16) * 0.1)(E, De)),
        "src": _w((lambda lo, hi, *s: torch.randint(lo, hi, s))(0, N, E).to(torch.int64)),
        "dst": _w((lambda lo, hi, *s: torch.randint(lo, hi, s))(0, N, E).to(torch.int64)),
        "u_w": _w((lambda *s: torch.randn(*s, dtype=torch.bfloat16) * 0.05)(D, D)),
        "v_w": _w((lambda *s: torch.randn(*s, dtype=torch.bfloat16) * 0.05)(D, D)),
        "g_w": _w((lambda *s: torch.randn(*s, dtype=torch.bfloat16) * 0.1)(2 * D + De, D)),
    }

def reference(x, e_attr, src, dst, u_w, v_w, g_w):
    N, D = x.shape
    g_in = torch.concatenate([x[dst], x[src], e_attr], axis=-1)
    eta = _sigmoid(g_in @ g_w)
    hv = x @ v_w
    msg = eta * hv[src]
    agg = _segment_sum(msg, dst, N)
    return _silu(x @ u_w + agg)
```

```python
class Asm:
    def __init__(self): self.l = []
    def __call__(self, s, *a):
        for ln in s.split("\n"):
            ln = ln.strip()
            if ln: self.l.append(("    " if not ln.endswith(":") else "") + ln)
    def c(self, s): self.l.append("    ; " + s)
    def text(self): return "\n".join(self.l) + "\n"
def v(a, n=1): return f"v{a}" if n == 1 else f"v[{a}:{a+n-1}]"
def s(a, n=1): return f"s{a}" if n == 1 else f"s[{a}:{a+n-1}]"
def inter(*ls):
    o = []
    for i in range(max(map(len, ls))):
        for x in ls:
            if i < len(x): o.append(x[i])
    return o
def srd(a, d, ptr, off=0, nrec=0, stride=0, w3=0x20000, soff=None):
    if off or soff is not None:
        if soff is not None and off:
            a(f"s_add_u32 s{d}, s{ptr}, {off:#x}\ns_addc_u32 s{d+1}, s{ptr+1}, 0\ns_add_u32 s{d}, s{d}, s{soff}\ns_addc_u32 s{d+1}, s{d+1}, 0")
        elif soff is not None:
            a(f"s_add_u32 s{d}, s{ptr}, s{soff}\ns_addc_u32 s{d+1}, s{ptr+1}, 0")
        else:
            a(f"s_add_u32 s{d}, s{ptr}, {off:#x}\ns_addc_u32 s{d+1}, s{ptr+1}, 0")
        if stride: a(f"s_or_b32 s{d+1}, s{d+1}, {stride << 16:#x}")
    else:
        a(f"s_mov_b32 s{d}, s{ptr}")
        if stride: a(f"s_or_b32 s{d+1}, s{ptr+1}, {stride << 16:#x}")
        else: a(f"s_mov_b32 s{d+1}, s{ptr+1}")
    a(f"s_mov_b32 s{d+2}, {nrec:#x}\ns_mov_b32 s{d+3}, {w3:#x}")
def scan(a, op, regs, steps16=False):
    st = ["row_shr:1 row_mask:0xf bank_mask:0xf bound_ctrl:0", "row_shr:2 row_mask:0xf bank_mask:0xf bound_ctrl:0",
          "row_shr:4 row_mask:0xf bank_mask:0xf bound_ctrl:0", "row_shr:8 row_mask:0xf bank_mask:0xf bound_ctrl:0"]
    if not steps16: st += ["row_bcast:15 row_mask:0xa bank_mask:0xf", "row_bcast:31 row_mask:0xc bank_mask:0xf"]
    pad = max(0, 3 - len(regs))
    a("s_nop 1")
    for i, m in enumerate(st):
        for r in regs: a(f"{op}_dpp v{r}, v{r}, v{r} {m}")
        if pad and i + 1 < len(st): a(f"s_nop {pad-1}")
```

```python
from dsl import *
import layout as L

XAUS, TBLS, XT = 0, 40960, 81920
WB = 16384
H1, PERM = 0, 1024
SC = " sc1"

def k1(a, g):
    S_R, S_S, S_W = g.S_R, g.S_S, g.S_W
    R_X, R_GW, R_W1, R_O = 28, 32, 36, 40
    R_D, R_S, R_E, R_RE, R_RI, R_OF = 28, 32, 36, 44, 48, 52
    SX, SY, SZ, SW8, SP0, SP1 = 56, 57, 58, 59, 60, 61
    M0, M1 = 62, 64
    BF, ACC, PK, AR, AA = 0, 64, 80, 100, 116
    LANE, T0, T1, T2, T3, WA, XA_, OA = 120, 121, 122, 123, 124, 125, 126, 127
    lab = "egc_prep_kernel"
    a(f".p2align 8\n.type {lab},@function\n{lab}:")
    g.head(a, "k1")
    a(f"""v_and_b32 v{LANE}, 63, v0
    s_and_b32 s{SW8}, s{S_W}, 7
    s_cmp_ge_u32 s{S_W}, 8
    s_cbranch_scc1 k1_srole""")

    def w_dma(row0):
        a(f"""s_lshl_b32 s{SX}, s{S_W}, 12
        s_lshl_b32 s{SY}, s{S_S}, 7
        s_add_u32 s{SX}, s{SX}, s{SY}
        s_lshl_b32 s{SZ}, s{S_W}, 10""")
        for m in range(2):
            for j in range(4):
                a(f"""s_add_u32 m0, s{SZ}, {WB + m*32768 + j*8192}
                s_add_u32 s{SY}, s{SX}, {j*32768 + (row0*512 if m == 0 else 0)}
                buffer_load_dwordx4 v{WA}, s[{(R_GW if m == 0 else R_W1)}:{(R_GW if m == 0 else R_W1)+3}], s{SY} offen lds""")

    def frag_addrs():
        a(f"""v_lshrrev_b32 v{T0}, 4, v{LANE}
        v_bfe_u32 v{T1}, v{LANE}, 2, 2
        v_lshl_add_u32 v{T2}, v{T0}, 3, v{T1}
        v_lshlrev_b32 v{T2}, 7, v{T2}
        v_bfe_u32 v{T1}, v{LANE}, 3, 2
        s_and_b32 s{SX}, s{S_W}, 3
        v_xor_b32 v{T1}, s{SX}, v{T1}
        v_lshl_add_u32 v{T2}, v{T1}, 5, v{T2}
        v_and_b32 v{T1}, 3, v{LANE}
        v_lshl_add_u32 v{T2}, v{T1}, 3, v{T2}
        v_add_u32 v{T3}, {WB}, v{T2}""")
        a(f"""v_and_b32 v{T1}, 15, v{LANE}
        v_xor_b32 v{T2}, v{T0}, v{T1}
        v_lshlrev_b32 v{T2}, 4, v{T2}
        v_lshl_add_u32 v{T2}, v{T1}, 9, v{T2}
        s_lshr_b32 s{SY}, s{SW8}, 2
        s_mul_i32 s{SZ}, s{SY}, {5*8192}
        s_add_u32 s{SZ}, s{SZ}, {XT}
        v_add_u32 v{AA}, s{SZ}, v{T2}
        v_xor_b32 v{AA+1}, 64, v{AA}
        v_xor_b32 v{AA+2}, 0x80, v{AA}
        v_xor_b32 v{AA+3}, 0xc0, v{AA}
        s_mul_i32 s{SY}, s{SY}, {5*4096}
        s_lshl_b32 s{SX}, s{SX}, 6
        s_add_u32 s{SY}, s{SY}, s{SX}
        v_lshlrev_b32 v{T1}, 2, v{T1}
        v_lshl_add_u32 v{T1}, v{T0}, 10, v{T1}
        v_add_u32 v{OA}, s{SY}, v{T1}""")
    def read_b():
        for m in range(2):
            for ks in range(8):
                for hf in range(2):
                    r = BF + m*32 + ks*4 + hf*2
                    a(f"ds_read_b64_tr_b16 v[{r}:{r+1}], v{T3} offset:{m*32768 + ks*4096 + hf*512}")
        a("s_waitcnt lgkmcnt(0)")
    def rdA(n):
        i, ks = divmod(n, 8)
        r = AR + (n % 4) * 4
        return f"ds_read_b128 v[{r}:{r+3}], v{AA + ks % 4} offset:{i*8192 + (ks//4)*256}"
    def gemm(pack, hook):
        for n in range(3): a(rdA(n))
        pend = []
        for n in range(40):
            i, ks = divmod(n, 8)
            nds = sum(1 for x in [] )
            if n + 3 < 40: a(rdA(n + 3))
            a(f"s_waitcnt lgkmcnt({min(3, 39 - n)})")
            r = AR + (n % 4) * 4
            for m in range(2):
                c = ACC + (i % 2) * 8 + m * 4
                a(f"v_mfma_f32_16x16x32_bf16 v[{c}:{c+3}], v[{r}:{r+3}], v[{BF+m*32+ks*4}:{BF+m*32+ks*4+3}], " + ("0" if ks == 0 else f"v[{c}:{c+3}]"))
                if ks >= 2:
                    for _ in range(2):
                        if pend: a(pend.pop(0))
            if ks == 7:
                assert not pend
                pend = pack(i)
                hook(i)
        a("s_nop 7")
        for x in pend: a(x)
    def copy_out(lds, srd_, tid_):
        a(f"v_lshlrev_b32 v{T0}, 4, v{tid_}")
        for j in range(5): a(f"ds_read_b128 v[{4*j}:{4*j+3}], v{T0} offset:{lds + 8192*j}") if lds + 8192*j < 65536 else a(f"ds_read_b128 v[{4*j}:{4*j+3}], v{T1} offset:{lds + 8192*j - 32768}")
        for j in range(5):
            a(f"s_movk_i32 s{SX}, {8192*j if j < 4 else 0}") if j < 4 else a(f"s_mov_b32 s{SX}, 32768")
            a(f"s_waitcnt lgkmcnt({4-j})\nbuffer_store_dwordx4 v[{4*j}:{4*j+3}], v{T0}, s[{srd_}:{srd_+3}], s{SX} offen{SC}")

    srd(a, R_GW, g.P_GW, 0, 528 * 512)
    srd(a, R_W1, g.P_VW, 0, 256 * 512)
    srd(a, R_X, g.P_X, 0, L.N * 512)
    a(f"""v_lshrrev_b32 v{T0}, 3, v{LANE}
    v_bfe_u32 v{T1}, v{LANE}, 4, 1
    s_and_b32 s{SX}, s{S_W}, 1
    s_lshl_b32 s{SX}, s{SX}, 1
    v_or_b32 v{T1}, s{SX}, v{T1}
    v_lshlrev_b32 v{T1}, 1, v{T1}
    v_and_b32 v{T2}, 7, v{LANE}
    v_xor_b32 v{T1}, v{T1}, v{T2}
    v_lshlrev_b32 v{T1}, 4, v{T1}
    v_lshl_add_u32 v{WA}, v{T0}, 9, v{T1}""")
    w_dma(256)
    a(f"""v_lshrrev_b32 v{T0}, 5, v{LANE}
    s_lshl_b32 s{SX}, s{S_W}, 1
    v_add_u32 v{T1}, s{SX}, v{T0}
    v_and_b32 v{T2}, 31, v{LANE}
    v_xor_b32 v{T1}, v{T1}, v{T2}
    v_lshlrev_b32 v{T1}, 4, v{T1}
    v_lshl_add_u32 v{XA_}, v{T0}, 9, v{T1}
    s_mul_i32 s{SX}, s{S_R}, {L.RN*512}
    s_lshl_b32 s{SZ}, s{S_W}, 10
    s_add_u32 s{SX}, s{SX}, s{SZ}""")
    for j in range(10):
        a(f"""s_add_u32 m0, s{SZ}, {XT + j*8192}
        s_add_u32 s{SY}, s{SX}, {j*8192}
        buffer_load_dwordx4 v{XA_}, s[{R_X}:{R_X+3}], s{SY} offen lds""")
    a("s_barrier")
    frag_addrs()
    a(f"""s_mul_i32 s{SX}, s{S_S}, {L.TBL_SL}
    s_mul_i32 s{SY}, s{S_R}, {L.RN*256}
    s_add_u32 s{SX}, s{SX}, s{SY}""")
    srd(a, R_O, g.P_WS, L.WS_TBL, L.RN * 256, soff=SX)
    a(f"s_mov_b32 s{SP0}, 0x07060100\ns_mov_b32 s{SP1}, 0x07060302")
    a("s_waitcnt vmcnt(10)")
    g.stamp(a, 1)
    a("s_barrier")
    read_b()
    srd(a, R_W1, g.P_UW, 0, 256 * 512)
    a("s_barrier")
    g.stamp(a, 2)
    w_dma(0)
    a("s_waitcnt vmcnt(0)")
    g.stamp(a, 3)
    a("s_barrier")
    g.stamp(a, 4)
    def pack_tbl(i):
        x = ACC + (i % 2) * 8; h = x + 4; p = PK + 4 * i
        K = 0x8000 + (L.HVEXP << 23)
        o = [f"v_mul_f32 v{x+r}, 0xbfb8aa3b, v{x+r}" for r in range(4)]
        o += [f"v_add_u32 v{h+r}, {K:#x}, v{h+r}" for r in range(4)]
        o += [f"v_cvt_pk_bf16_f32 v{x}, v{x}, v{x+1}", f"v_cvt_pk_bf16_f32 v{x+2}, v{x+2}, v{x+3}"]
        o += [f"v_sub_u32_sdwa v{h+r}, v{h+r}, v{x+(r&2)} dst_sel:DWORD dst_unused:UNUSED_PAD src0_sel:DWORD src1_sel:WORD_{r&1}" for r in range(4)]
        o += [f"v_perm_b32 v{p+r}, v{h+r}, v{x+(r&2)}, s{SP1 if r&1 else SP0}" for r in range(4)]
        return o
    gemm(pack_tbl, lambda i: None)
    g.stamp(a, 5)
    a("s_barrier")
    for i in range(5):
        for r in range(4): a(f"ds_write_b32 v{OA}, v{PK+4*i+r} offset:{TBLS + i*4096 + r*256}")
    a(f"""s_lshl_b32 s{SX}, s{S_W}, 6
    v_add_u32 v{T2}, s{SX}, v{LANE}
    v_lshlrev_b32 v{T1}, 4, v{T2}
    v_add_u32 v{T1}, 0x8000, v{T1}
    s_waitcnt lgkmcnt(0)
    s_barrier""")
    g.stamp(a, 6)
    copy_out(TBLS, R_O, T2)
    if g.STAMPS:
        a("s_waitcnt vmcnt(0)"); g.stamp(a, 7); g.stamp_flush(a, 0)
    a("s_endpgm")

    DS, SR, RG, ID, RKK, CN, INC, GRN, TT = 2, 4, 6, 8, 10, 12, 13, 14, 16
    EV = 24
    a("k1_srole:")
    a(f"s_mul_i32 s{SX}, s2, {L.CH*4}")
    srd(a, R_D, g.P_DST, 0, L.CH * 4, soff=SX)
    a(f"""v_subrev_u32 v{TT}, 512, v0
    v_lshlrev_b32 v{T0}, 2, v{TT}
    buffer_load_dword v{DS}, v{T0}, s[{R_D}:{R_D+3}], 0 offen
    buffer_load_dword v{DS+1}, v{T0}, s[{R_D}:{R_D+3}], 0 offen offset:2048""")
    srd(a, R_S, g.P_SRC, 0, L.CH * 4, soff=SX)
    a(f"""buffer_load_dword v{SR}, v{T0}, s[{R_S}:{R_S+3}], 0 offen
    buffer_load_dword v{SR+1}, v{T0}, s[{R_S}:{R_S+3}], 0 offen offset:2048
    s_mul_i32 s{SX}, s2, {L.CH*32}""")
    srd(a, R_E, g.P_EA, 0, L.CH * 32, soff=SX)
    a.c("touch this chunk's e_attr lines (one dword per 64 B)")
    a(f"""v_lshlrev_b32 v{T1}, 6, v{TT}
    buffer_load_dword v{EV}, v{T1}, s[{R_E}:{R_E+3}], 0 offen
    v_mov_b32 v{T2}, 0
    v_lshlrev_b32 v{T1}, 2, v{LANE}
    ds_write_b32 v{T1}, v{T2} offset:{H1}
    s_mul_i32 s{SX}, s2, {L.CHS*32}""")
    srd(a, R_RE, g.P_WS, L.WS_EA, L.CH * 32, soff=SX)
    a(f"s_mul_i32 s{SX}, s2, {L.CHS*4}")
    srd(a, R_RI, g.P_WS, L.WS_ID, L.CHS * 4, soff=SX)
    a(f"s_lshl_b32 s{SX}, s2, 9")
    srd(a, R_OF, g.P_WS, L.WS_OFF, 512, soff=SX)
    a(f"s_mul_i32 s{SX}, s2, 40960")
    srd(a, R_O, g.P_WS, L.WS_XAU, 40960, soff=SX)
    a(f"""v_cmp_gt_u32 vcc, {L.CH-512}, v{TT}
    s_mov_b64 s[{M1}:{M1+1}], vcc
    v_add_u32 v{TT+1}, 512, v{TT}
    v_mov_b32 v{T2}, 1
    s_movk_i32 s{SY}, {-L.RN}
    s_waitcnt lgkmcnt(0)
    s_barrier
    s_waitcnt vmcnt(3)""")
    g.stamp(a, 1)
    for k in range(2): a(f"v_mul_u32_u24 v{RG+k}, 13358, v{DS+k}")
    for k in range(2): a(f"v_lshrrev_b32 v{RG+k}, 21, v{RG+k}")
    for k in range(2): a(f"v_mad_i32_i24 v{DS+k}, v{RG+k}, s{SY}, v{DS+k}")
    for k in range(2): a(f"v_lshlrev_b32 v{RG+k}, 2, v{RG+k}")
    a(f"""ds_add_rtn_u32 v{RKK}, v{RG}, v{T2} offset:{H1}
    s_mov_b64 exec, s[{M1}:{M1+1}]
    ds_add_rtn_u32 v{RKK+1}, v{RG+1}, v{T2} offset:{H1}
    s_mov_b64 exec, -1""")
    for k in range(2): a(f"v_lshl_or_b32 v{ID+k}, v{TT+k}, 22, v{DS+k}")
    a("s_waitcnt vmcnt(1)")
    for k in range(2): a(f"v_lshl_or_b32 v{ID+k}, v{SR+k}, 8, v{ID+k}")
    a(f"""s_waitcnt lgkmcnt(0)
    s_barrier
    ds_read_b32 v{CN}, v{T1} offset:{H1}
    s_waitcnt lgkmcnt(0)
    v_mov_b32 v{INC}, v{CN}""")
    scan(a, "v_add_u32", [INC])
    a(f"""v_sub_u32 v{INC}, v{INC}, v{CN}
    ds_bpermute_b32 v{DS}, v{RG}, v{INC}
    ds_bpermute_b32 v{DS+1}, v{RG+1}, v{INC}
    v_lshl_or_b32 v{GRN}, v{CN}, 10, v{INC}
    v_mov_b32 v{GRN+1}, 0
    s_waitcnt lgkmcnt(0)
    v_add_lshl_u32 v{DS}, v{DS}, v{RKK}, 2
    v_add_lshl_u32 v{DS+1}, v{DS+1}, v{RKK+1}, 2
    ds_write_b32 v{DS}, v{ID} offset:{PERM}
    s_mov_b64 exec, s[{M1}:{M1+1}]
    ds_write_b32 v{DS+1}, v{ID+1} offset:{PERM}
    s_mov_b64 exec, -1
    v_lshlrev_b32 v{T0}, 1, v{TT}
    v_and_b32 v{T0}, -4, v{T0}
    v_lshlrev_b32 v{T2}, 4, v{TT}
    v_and_b32 v{T3}, 16, v{T2}
    s_waitcnt lgkmcnt(0)
    s_barrier""")
    g.stamp(a, 2)
    for k in range(3): a(f"ds_read_b32 v{DS+k}, v{T0} offset:{PERM + 1024*k}")
    a(f"ds_read_b128 v[{EV+12}:{EV+15}], v{T2} offset:{PERM}")
    for k in range(3):
        a(f"""s_waitcnt lgkmcnt({3-k})
        v_lshrrev_b32 v{DS+k}, 22, v{DS+k}
        v_lshl_or_b32 v{DS+k}, v{DS+k}, 5, v{T3}
        buffer_load_dwordx4 v[{EV+4*k}:{EV+4*k+3}], v{DS+k}, s[{R_E}:{R_E+3}], 0 offen""")
    a(f"""s_waitcnt lgkmcnt(0)
    buffer_store_dwordx4 v[{EV+12}:{EV+15}], v{T2}, s[{R_RI}:{R_RI+3}], 0 offen{SC}
    v_lshlrev_b32 v{T0}, 3, v{TT}
    buffer_store_dwordx2 v[{GRN}:{GRN+1}], v{T0}, s[{R_OF}:{R_OF+3}], 0 offen{SC}
    v_mov_b32 v{XA_}, v{TT}
    v_mov_b32 v{WA}, v{T2}""")
    frag_addrs()
    for k in range(3):
        a(f"""s_movk_i32 s{SX}, {8192*k}
        s_waitcnt vmcnt({4})
        buffer_store_dwordx4 v[{EV+4*k}:{EV+4*k+3}], v{WA}, s[{R_RE}:{R_RE+3}], s{SX} offen{SC}""")
    g.stamp(a, 3)
    a("s_barrier")
    g.stamp(a, 4)
    read_b()
    a("s_barrier")
    g.stamp(a, 5)
    def pack_xau(i):
        x = ACC + (i % 2) * 8; h = x + 4; p = PK + 4 * i
        o = [f"v_mul_f32 v{x+r}, 0xbfb8aa3b, v{x+r}" for r in range(4)]
        o += [f"v_cvt_pk_bf16_f32 v{p+r}, v{x+r}, v{h+r}" for r in range(4)]
        return o
    gemm(pack_xau, lambda i: a("s_barrier") if i == 0 else None)
    for i in range(5):
        for r in range(4): a(f"ds_write_b32 v{OA}, v{PK+4*i+r} offset:{XAUS + i*4096 + r*256}")
    a("s_waitcnt lgkmcnt(0)\ns_barrier")
    g.stamp(a, 6)
    copy_out(XAUS, R_O, XA_)
    if g.STAMPS:
        a("s_waitcnt vmcnt(0)"); g.stamp(a, 7); g.stamp_flush(a, 0)
    a("k1_end:\ns_endpgm")
```

```python
import numpy as np
N, E, D = 10000, 160000, 256
RN = 157
NR = 64
CH = 625
CHS = 640
NCH = 256
TROWS = 10240
WS_TBL = 0
TBL_SL = TROWS * 256
WS_EA = 0x1000000
WS_ID = 0x1600000
WS_OFF = 0x1700000
WS_XAU = 0x1800000
WS_STAMP = 0x2400000
NSTAMP = 16
LOG2E = 1.4426950408889634
HVEXP = 20
def rne(a):
    u = a.astype(np.float32).view(np.uint32).astype(np.uint64)
    return ((u + 0x7FFF + ((u >> 16) & 1)) >> 16).astype(np.uint32) & 0xFFFF
def wg_rs(wg):
    x = wg & 7; q = wg >> 3
    return q + 32 * (x >> 2), x & 3
def emulate_k1(XA, XB, HV, XU, ea, src, dst):
    pad = lambda a: np.concatenate([a, np.zeros((TROWS - N, D), np.float32)])
    XA, XB, HV, XU = map(pad, (XA, XB, HV, XU))
    Lb = rne(XB * np.float32(-LOG2E))
    V = HV.view(np.uint32).astype(np.uint64)
    T = (V + 0x8000 + (HVEXP << 23) - Lb) & 0xFFFFFFFF
    tbl = ((T & 0xFFFF0000) | Lb).astype(np.uint32)
    tbl = tbl.reshape(TROWS, 4, 64).transpose(1, 0, 2).copy()
    xau = (rne(XA * np.float32(-LOG2E)) | (rne(XU) << 16)).astype(np.uint32)
    xw = np.zeros((256, 160, 64), np.uint32)
    for wg in range(256):
        r, s = wg_rs(wg)
        xw[wg] = xau[r * RN:r * RN + 160, 64 * s:64 * s + 64]
    rec_ea = np.zeros((NCH, CHS, 16), np.uint16); rec_id = np.zeros((NCH, CHS), np.uint32); off = np.zeros((NCH, NR, 2), np.uint32)
    for c in range(NCH):
        d = dst[c * CH:(c + 1) * CH].astype(np.int64); s_ = src[c * CH:(c + 1) * CH].astype(np.int64)
        rg = d // RN
        o = np.argsort(rg, kind="stable")
        rec_ea[c, :CH] = ea[c * CH:(c + 1) * CH][o]
        rec_id[c, :CH] = ((s_[o] << 8) | (d[o] - rg[o] * RN) | (o << 22)).astype(np.uint32)
        cnt = np.bincount(rg, minlength=NR); st = np.cumsum(cnt) - cnt
        off[c, :, 0] = st | (cnt << 10)
    return {WS_TBL: tbl, WS_EA: rec_ea, WS_ID: rec_id, WS_OFF: off, WS_XAU: xw}
def check_k1(rd, emu, host):
    bf = lambda a: (a.astype(np.uint32) << 16).view(np.float32)
    t = rd(WS_TBL, np.uint32, 4 * TROWS * 64).reshape(4, TROWS, 64)[:, :NR * RN]; e = emu[WS_TBL][:, :NR * RN]
    print("TBL lo maxerr", np.abs(bf(t & 0xFFFF) - bf(e & 0xFFFF)).max(), " hi maxerr", (np.abs(t.view(np.float32) - e.view(np.float32)) * 2.0**-HVEXP).max(), "exact frac", (t == e).mean())
    t = rd(WS_XAU, np.uint32, 256 * 160 * 64).reshape(256, 160, 64)[:, :RN]; e = emu[WS_XAU][:, :RN]
    print("XAU lo maxerr", np.abs(bf(t & 0xFFFF) - bf(e & 0xFFFF)).max(), " hi maxerr", np.abs(bf(t >> 16) - bf(e >> 16)).max(), "exact frac", (t == e).mean())
    o = rd(WS_OFF, np.uint32, NCH * NR * 2).reshape(NCH, NR, 2)
    print("OFF match", ((o[:, :, 0] & 0xFFFFF) == emu[WS_OFF][:, :, 0]).all())
    ids = rd(WS_ID, np.uint32, NCH * CHS).reshape(NCH, CHS)[:, :CH]; rea = rd(WS_EA, np.uint16, NCH * CHS * 16).reshape(NCH, CHS, 16)[:, :CH]
    ea, src, dst = host[1], host[2], host[3]
    ok = True
    for c in range(NCH):
        idx = (ids[c] >> 22).astype(np.int64)
        if sorted(idx) != list(range(CH)): ok = False; print("chunk", c, "not a perm"); break
        g = c * CH + idx
        rg = dst[g] // RN
        if not (np.diff(rg) >= 0).all() or not (((ids[c] >> 8) & 0x3FFF) == src[g]).all() or not ((ids[c] & 0xFF) == dst[g] - rg * RN).all() or not (rea[c] == ea[g]).all():
            ok = False; print("chunk", c, "bad"); break
    print("REC ok", ok)
```

```python
import sys
from dsl import *
import layout as L

STAMPS = "--stamps" in sys.argv
ABL = set(x[2:] for x in sys.argv if x.startswith("--"))
PRIO = [[int(y) for y in x[7:].split(",")] for x in sys.argv if x.startswith("--prio=")]
PRIO = PRIO[0] if PRIO else None
NAME = "gather_scatter__edge_featured_mpnn_egc__graph"

XAU = 0
SLOTCAP = 3136
ROW = 40960
EAD = ROW + (SLOTCAP + 64) * 4
HIST = EAD + (SLOTCAP + 64) * 2
QST = HIST + 1024
FLG = QST + 1024
MISC = FLG + 1024
BW = MISC + 256
MARK = BW + 2048
ECAP = 2752
EA0 = MARK + 8192
EA1 = EA0 + ECAP * 16
LDS2 = EA1 + ECAP * 16
assert LDS2 <= 163840 and MARK == 65536
ZROW = 10000 * 256

P_X, P_EA, P_SRC, P_DST, P_UW, P_VW, P_GW, P_OUT, P_DBG, P_WS = 4, 6, 8, 10, 12, 14, 16, 18, 20, 22
S_R, S_S, S_W, S_NV = 24, 25, 26, 27
R_OFF, R_ID, R_EA, R_TBL, R_OUT, R_GW, R_XAU = 28, 32, 36, 40, 44, 48, 52
ST0 = 70

def stamp(a, j):
    if STAMPS: a(f"s_memrealtime s[{ST0+2*j}:{ST0+2*j+1}]\ns_waitcnt lgkmcnt(0)")
def stamp_init(a):
    if STAMPS:
        for j in range(1, 16): a(f"s_mov_b64 s[{ST0+2*j}:{ST0+2*j+1}], 0")
def stamp_flush(a, k):
    if not STAMPS: return
    a(f"""s_lshl_b32 s56, s2, 4
    s_add_u32 s56, s56, s{S_W}
    s_lshl_b32 s56, s56, 7
    s_add_u32 s56, s56, {L.WS_STAMP + k*256*16*128:#x}
    s_add_u32 s58, s{P_WS}, s56
    s_addc_u32 s59, s{P_WS+1}, 0
    s_mov_b64 exec, 1
    v_mov_b32 v0, 0""")
    for j in range(16):
        a(f"v_mov_b32 v2, s{ST0+2*j}\nv_mov_b32 v3, s{ST0+2*j+1}\nglobal_store_dwordx2 v0, v[2:3], s[58:59] offset:{8*j}\ns_nop 1")

def head(a, label):
    a(f"""s_cmp_ge_u32 s2, 256
    s_cbranch_scc1 {label}_end
    s_load_dwordx16 s[4:19], s[0:1], 0
    s_load_dwordx4 s[20:23], s[0:1], 64""")
    if STAMPS: a(f"s_memrealtime s[{ST0}:{ST0+1}]")
    a(f"""v_lshrrev_b32 v1, 6, v0
    s_and_b32 s{S_S}, s2, 3
    v_readfirstlane_b32 s{S_W}, v1
    s_lshr_b32 s{S_R}, s2, 3
    s_bfe_u32 s56, s2, 0x10002
    s_lshl_b32 s56, s56, 5
    s_add_u32 s{S_R}, s{S_R}, s56
    s_mul_i32 s56, s{S_R}, {L.RN}
    s_sub_u32 s{S_NV}, {L.N}, s56
    s_min_u32 s{S_NV}, s{S_NV}, {L.RN}""")
    stamp_init(a)
    a("s_waitcnt lgkmcnt(0)")

G = [0, 16]; Dd = [32, 48]; AD = 64; A0 = 80; A1 = 84; B0 = 88; B1 = 92; SEL = 96; A2 = 100
XA = [104, 108]; CC = 112; ACC = 114; EIDX = 115; EADDR = 116; PROW = 117; PEAD = 118; KHC = 119
TMP = 120; LANE = 122; MHI = 123; TID = 124
GR, LEN, PRE, INC, DEL = 2, 3, 4, 5, 6
MK = 8
IDW = 12
HA = 16
RK = 20
MQ = 24
HD = 28
SP = 32
T0, T1, T2, T3 = 36, 37, 38, 39
CW = 40
QV = 44
ZV = 48
S_T, S_BASE, S_SL, S_N0, S_N1, S_Q0, S_NQ, S_NT, S_FO, S_RO, S_FIRST = 56, 57, 58, 59, 60, 61, 62, 63, 64, 65, 3
S_M = [66, 68, 4, 6]
S_FF, S_FR = 8, 10
S_E0, S_E1 = 12, 14
S_X, S_Y = 16, 17

def slot_of_reg(j):
    g, i, ab = j // 8, (j % 8) // 2, j % 2
    return (2 * g + ab) * 4 + i

def consts(a):
    a.c("SEL (16x16x32 A operand): lane(row=l%16,kq=l/16): 1.0 at element 2*(row%4) iff kq==row/4")
    a(f"""v_lshrrev_b32 v{T0}, 4, v{LANE}
    v_bfe_u32 v{T1}, v{LANE}, 2, 2
    v_and_b32 v{T2}, 3, v{LANE}
    v_cmp_eq_u32 vcc, v{T0}, v{T1}
    v_mov_b32 v{T3}, 0x3f80
    s_nop 0
    v_cndmask_b32 v{T2}, 7, v{T2}, vcc""")
    for k in range(4):
        a(f"v_cmp_eq_u32 vcc, {k}, v{T2}\ns_nop 1\nv_cndmask_b32 v{SEL+k}, 0, v{T3}, vcc")
    a.c("A2 (32x32x16 A operand): lane(row=l%32,kh=l/32): row=8a+4h+b, reg j=4a+b, quad=2*(j/8)+(j%2); 1.0 at element 2*quad iff kh==h")
    a(f"""v_lshrrev_b32 v{T0}, 5, v{LANE}
    v_bfe_u32 v{T1}, v{LANE}, 2, 1
    v_cmp_eq_u32 vcc, v{T0}, v{T1}
    v_bfe_u32 v{T1}, v{LANE}, 4, 1
    v_and_b32 v{T2}, 1, v{LANE}
    v_lshl_add_u32 v{T2}, v{T1}, 1, v{T2}
    v_mov_b32 v{PEAD}, v{T2}
    v_cndmask_b32 v{T2}, 7, v{T2}, vcc""")
    for k in range(4):
        a(f"v_cmp_eq_u32 vcc, {k}, v{T2}\ns_nop 1\nv_cndmask_b32 v{A2+k}, 0, v{T3}, vcc")
    a.c("PEAD = 2*slot(row): slot = quad*4 + ((j%8)/2), (j%8)/2 = 2*(a%2) + b/2 = 2*bit3 + bit1")
    a(f"""v_bfe_u32 v{T1}, v{LANE}, 3, 1
    v_bfe_u32 v{T2}, v{LANE}, 1, 1
    v_lshl_add_u32 v{T1}, v{T1}, 1, v{T2}
    v_lshl_add_u32 v{PEAD}, v{PEAD}, 2, v{T1}
    v_lshlrev_b32 v{PEAD}, 1, v{PEAD}
    v_mul_u32_u24 v{KHC}, {EA1-EA0}, v{T0}
    v_add_u32 v{KHC}, {EA0}, v{KHC}
    v_mov_b32 v{CC}, 0x30800000
    v_mov_b32 v{CC+1}, 0x30800000
    v_mov_b32 v{MHI}, 0xffff0000
    v_mov_b32 v{ACC}, 0""")
    for k in range(8): a(f"v_mov_b32 v{A0+k}, 0")

def level2(a):
    a.c("---- level 2: collect this range's records, sort by node ----")
    a(f"""v_mov_b32 v{TID}, v0
    v_and_b32 v{LANE}, 63, v0
    v_mov_b32 v{GR}, 0
    v_lshlrev_b32 v{T0}, 9, v{LANE}
    s_lshl_b32 s{S_X}, s{S_W}, 13
    s_lshl_b32 s{S_Y}, s{S_R}, 3
    s_add_u32 s{S_X}, s{S_X}, s{S_Y}""")
    a(f"""s_mov_b64 exec, 0xffff
    buffer_load_dword v{GR}, v{T0}, s[{R_OFF}:{R_OFF+3}], s{S_X} offen
    s_mov_b64 exec, -1""")
    a.c("edge-weight fragment: wave w computes dword m=w%4 of B[h=(w/4)%2]")
    a(f"""v_lshrrev_b32 v{T1}, 5, v{LANE}
    v_and_b32 v{T2}, 31, v{LANE}
    v_lshlrev_b32 v{T2}, 1, v{T2}
    v_lshl_add_u32 v{T1}, v{T1}, 12, v{T2}
    s_and_b32 s{S_X}, s{S_W}, 3
    s_lshl_b32 s{S_X}, s{S_X}, 10
    s_bfe_u32 s{S_Y}, s{S_W}, 0x10002
    s_lshl_b32 s{S_Y}, s{S_Y}, 6
    s_add_u32 s{S_X}, s{S_X}, s{S_Y}
    s_lshl_b32 s{S_Y}, s{S_S}, 7
    s_add_u32 s{S_X}, s{S_X}, s{S_Y}
    s_add_u32 s{S_X}, s{S_X}, {512*512}
    buffer_load_ushort v{CW}, v{T1}, s[{R_GW}:{R_GW+3}], s{S_X} offen
    buffer_load_ushort v{CW+1}, v{T1}, s[{R_GW}:{R_GW+3}], s{S_X} offen offset:512""")
    a.c("XAU tile -> LDS")
    a(f"""v_lshlrev_b32 v{T2}, 4, v{LANE}
    s_lshl_b32 s{S_X}, s{S_W}, 10
    s_mov_b32 m0, s{S_X}
    s_add_u32 s{S_Y}, s{S_X}, 16384
    buffer_load_dwordx4 v{T2}, s[{R_XAU}:{R_XAU+3}], s{S_X} offen lds
    s_mov_b32 m0, s{S_Y}
    s_add_u32 s{S_X}, s{S_X}, 32768
    buffer_load_dwordx4 v{T2}, s[{R_XAU}:{R_XAU+3}], s{S_Y} offen lds
    s_cmp_ge_u32 s{S_W}, 8
    s_cbranch_scc1 k2_noxau
    s_mov_b32 m0, s{S_X}
    s_nop 0
    buffer_load_dwordx4 v{T2}, s[{R_XAU}:{R_XAU+3}], s{S_X} offen lds
    k2_noxau:""")
    a.c("LDS init")
    for k in range(4): a(f"v_mov_b32 v{ZV+k}, {ZROW:#x}\nv_mov_b32 v{ZV+4+k}, 0")
    nrow = (EAD - ROW) // 16; nz = (BW - EAD) // 16
    a(f"""v_lshlrev_b32 v{T2}, 4, v{TID}
    v_lshlrev_b32 v{T3}, 3, v{TID}
    v_add_u32 v{T3}, {MARK}, v{T3}
    ds_write_b64 v{T3}, v[{ZV+4}:{ZV+5}]
    v_cmp_gt_u32 vcc, {nrow}, v{TID}
    s_mov_b64 exec, vcc
    ds_write_b128 v{T2}, v[{ZV}:{ZV+3}] offset:{ROW}
    v_cmp_gt_u32 vcc, {nz}, v{TID}
    s_mov_b64 exec, vcc
    ds_write_b128 v{T2}, v[{ZV+4}:{ZV+7}] offset:{EAD}
    s_mov_b64 exec, -1""")
    consts(a)
    a(f"v_lshlrev_b32 v{T0}, 2, v{LANE}")
    for k in range(4):
        a(f"v_add_u32 v{T1}, {k}, v{T0}\nv_cmp_gt_u32 vcc, s{S_NV}, v{T1}\ns_nop 1\nv_cndmask_b32 v{MQ+k}, 0, 4, vcc")
    a(f"""s_mov_b32 s{S_E0}, 0x0f0f0f0f
    s_mov_b32 s{S_E0+1}, 0x0f0f0f0f
    s_mov_b32 s{S_E1}, 0xf0f0f0f0
    s_mov_b32 s{S_E1+1}, 0xf0f0f0f0
    s_waitcnt lgkmcnt(0)
    s_barrier""")
    stamp(a, 1)
    if STAMPS: a(f"s_memtime s[{ST0+24}:{ST0+25}]\ns_waitcnt lgkmcnt(0)")
    a(f"""s_waitcnt vmcnt(4)""")
    stamp(a, 2)
    a(f"""v_bfe_u32 v{LEN}, v{GR}, 10, 10
    v_and_b32 v{GR}, 0x3ff, v{GR}
    v_mov_b32 v{INC}, v{LEN}""")
    scan(a, "v_add_u32", [INC], steps16=True)
    a(f"""v_mul_u32_u24 v{DEL}, {L.CHS}, v{LANE}
    v_sub_u32 v{PRE}, v{INC}, v{LEN}
    v_readlane_b32 s{S_T}, v{INC}, 15
    v_add_u32 v{DEL}, v{DEL}, v{GR}
    v_sub_u32 v{DEL}, v{DEL}, v{PRE}
    v_mov_b32 v{T0}, s{S_T}
    v_mov_b32 v{T1}, {MISC}
    s_mov_b64 exec, 1
    ds_add_rtn_u32 v{T2}, v{T1}, v{T0}
    s_mov_b64 exec, -1
    s_lshl_b32 s{S_X}, s{S_W}, 9
    s_add_u32 s{S_X}, s{S_X}, {MARK}
    v_lshl_add_u32 v{T0}, v{PRE}, 1, s{S_X}
    v_lshl_add_u32 v{T1}, v{LANE}, 1, s{S_X}
    v_cmp_lt_u32 vcc, 0, v{LEN}
    v_cmp_gt_u32 s[{S_M[0]}:{S_M[0]+1}], 64, v{LANE}
    s_movk_i32 s{S_Y}, 256
    v_cmp_gt_u32 s[{S_M[1]}:{S_M[1]+1}], s{S_Y}, v{PRE}
    s_and_b64 exec, vcc, s[{S_M[1]}:{S_M[1]+1}]
    ds_write_b16 v{T0}, v{DEL}
    s_mov_b64 exec, -1""")
    for j in range(4): a(f"ds_read_u16 v{MK+j}, v{T1} offset:{128*j}")
    for j in range(4):
        a(f"s_sub_i32 s{S_X}, s{S_T}, {64*j}\nv_cmp_gt_i32 s[{S_M[j]}:{S_M[j]+1}], s{S_X}, v{LANE}")
    a(f"""s_mul_i32 s{S_X}, s{S_W}, {16*L.CHS}
    v_add_u32 v{T0}, s{S_X}, v{LANE}
    s_waitcnt lgkmcnt(0)
    v_readfirstlane_b32 s{S_BASE}, v{T2}""")
    scan(a, "v_max_u32", [MK, MK + 1, MK + 2, MK + 3])
    a(f"""s_nop 0
    v_readlane_b32 s{S_X}, v{MK}, 63
    v_readlane_b32 s{S_Y}, v{MK+1}, 63
    v_readlane_b32 s{S_SL}, v{MK+2}, 63
    v_add_u32 v{MK}, v{MK}, v{T0}
    s_max_u32 s{S_Y}, s{S_Y}, s{S_X}
    s_max_u32 s{S_SL}, s{S_SL}, s{S_Y}
    v_max_u32 v{MK+1}, s{S_X}, v{MK+1}
    v_max_u32 v{MK+2}, s{S_Y}, v{MK+2}
    v_max_u32 v{MK+3}, s{S_SL}, v{MK+3}
    v_add3_u32 v{MK+1}, v{MK+1}, v{T0}, 64
    v_add_u32 v{T0}, 128, v{T0}
    v_add_u32 v{MK+2}, v{MK+2}, v{T0}
    v_add3_u32 v{MK+3}, v{MK+3}, v{T0}, 64""")
    for j in range(4):
        a(f"s_mov_b64 exec, s[{S_M[j]}:{S_M[j]+1}]\nbuffer_load_dword v{IDW+j}, v{MK+j}, s[{R_ID}:{R_ID+3}], 0 idxen")
    stamp(a, 3)
    a(f"s_lshl_b32 s{S_X}, s{S_BASE}, 4")
    for j in range(4):
        a(f"""s_mov_b64 exec, s[{S_M[j]}:{S_M[j]+1}]
        s_add_u32 m0, s{S_X}, {EA0 + 1024*j}
        s_cbranch_execz k2_idw{j}
        buffer_load_dwordx4 v{MK+j}, s[{R_EA}:{R_EA+3}], 0 idxen lds
        s_add_u32 m0, s{S_X}, {EA1 + 1024*j - 16}
        s_nop 0
        buffer_load_dwordx4 v{MK+j}, s[{R_EA}:{R_EA+3}], 0 idxen offset:16 lds""")
    a("s_waitcnt vmcnt(8)\ns_branch k2_idok")
    for j in range(3): a(f"k2_idw{j}:\ns_waitcnt vmcnt({2*j})\ns_branch k2_idok")
    a("k2_idw3:\ns_waitcnt vmcnt(6)\nk2_idok:\ns_mov_b64 exec, -1")
    a.c("edge-weight fragment dword -> LDS")
    a(f"""
    v_lshlrev_b32 v{CW}, 16, v{CW}
    v_lshlrev_b32 v{CW+1}, 16, v{CW+1}
    v_mul_f32 v{CW}, 0xbfb8aa3b, v{CW}
    v_mul_f32 v{CW+1}, 0xbfb8aa3b, v{CW+1}
    s_and_b32 s{S_X}, s{S_W}, 3
    s_lshl_b32 s{S_X}, s{S_X}, 2
    s_bfe_u32 s{S_Y}, s{S_W}, 0x10002
    s_lshl_b32 s{S_Y}, s{S_Y}, 10
    s_add_u32 s{S_X}, s{S_X}, s{S_Y}
    v_cvt_pk_bf16_f32 v{CW}, v{CW}, v{CW+1}
    v_lshl_add_u32 v{T1}, v{LANE}, 4, s{S_X}
    v_mov_b32 v{T3}, 1""")
    stamp(a, 4)
    for j in range(4):
        a(f"v_lshlrev_b32_sdwa v{HA+j}, 2, v{IDW+j} dst_sel:DWORD dst_unused:UNUSED_PAD src0_sel:DWORD src1_sel:BYTE_0")
    a(f"ds_write_b32 v{T1}, v{CW} offset:{BW}")
    for j in range(4):
        a(f"s_mov_b64 exec, s[{S_M[j]}:{S_M[j]+1}]\nds_add_rtn_u32 v{RK+j}, v{HA+j}, v{T3} offset:{HIST}")
    a(f"""s_mov_b64 exec, -1
    v_lshlrev_b32 v{T2}, 4, v{LANE}
    s_waitcnt lgkmcnt(0)
    s_barrier
    ds_read_b128 v[{HD}:{HD+3}], v{T2} offset:{HIST}""")
    for j in range(4): a(f"v_and_b32 v{IDW+j}, 0x3fff00, v{IDW+j}")
    a(f"v_add_u32 v{T0}, s{S_BASE}, v{LANE}\ns_waitcnt lgkmcnt(0)")
    for k in range(4): a(f"v_add_u32 v{HD+k}, 3, v{HD+k}")
    for k in range(4): a(f"v_and_b32 v{HD+k}, -4, v{HD+k}")
    for k in range(4): a(f"v_max_u32 v{HD+k}, v{HD+k}, v{MQ+k}")
    a(f"""v_add_u32 v{HD+1}, v{HD}, v{HD+1}
    v_add_u32 v{HD+2}, v{HD+1}, v{HD+2}
    v_add_u32 v{HD+3}, v{HD+2}, v{HD+3}
    v_mov_b32 v{INC}, v{HD+3}""")
    scan(a, "v_add_u32", [INC])
    a(f"""v_sub_u32 v{SP}, v{INC}, v{HD+3}
    v_readlane_b32 s{S_SL}, v{INC}, 63
    v_add_u32 v{SP+1}, v{SP}, v{HD}
    v_add_u32 v{SP+2}, v{SP}, v{HD+1}
    v_add_u32 v{SP+3}, v{SP}, v{HD+2}
    ds_write_b128 v{T2}, v[{SP}:{SP+3}] offset:{QST}""")
    for j in range(4): a(f"ds_read_b32 v{QV+j}, v{HA+j} offset:{QST}")
    a(f"""v_lshlrev_b32 v{T1}, 2, v{TID}
    v_and_b32 v{T1}, 0x3fc, v{T1}
    ds_read_b32 v{T2}, v{T1} offset:{QST+4}
    s_mul_i32 s{S_X}, s{S_SL}, s{S_W}
    s_add_u32 s{S_Y}, s{S_X}, s{S_SL}
    s_add_u32 s{S_X}, s{S_X}, 15
    s_add_u32 s{S_Y}, s{S_Y}, 15
    s_lshr_b32 s{S_X}, s{S_X}, 4
    s_lshr_b32 s{S_Y}, s{S_Y}, 4""")
    for (thr, dst) in ((S_X, S_N0), (S_Y, S_N1)):
        for k in range(4):
            a(f"v_cmp_gt_u32 vcc, s{thr}, v{SP+k}")
            if k == 0: a(f"s_bcnt1_i32_b64 s{dst}, vcc")
            else: a(f"s_bcnt1_i32_b64 s{S_FO}, vcc\ns_add_u32 s{dst}, s{dst}, s{S_FO}")
    a(f"""s_lshl_b32 s{S_X}, s{S_N0}, 2
    s_lshl_b32 s{S_Y}, s{S_N1}, 2
    v_mov_b32 v{HD}, s{S_X}
    v_mov_b32 v{HD+1}, s{S_Y}
    ds_read_b32 v{HD}, v{HD} offset:{QST}
    ds_read_b32 v{HD+1}, v{HD+1} offset:{QST}
    s_waitcnt lgkmcnt(2)""")
    for j in range(4): a(f"v_add_u32 v{QV+j}, v{QV+j}, v{RK+j}")
    for j in range(4):
        a(f"v_lshlrev_b32 v{HA+j}, 2, v{QV+j}\nv_lshlrev_b32 v{QV+j}, 1, v{QV+j}")
        a(f"v_add_u32 v{RK+j}, {64*j}, v{T0}")
    a(f"v_lshrrev_b32 v{T2}, 2, v{T2}\nv_cmp_gt_u32 vcc, s{S_NV}, v{TID}")
    for j in range(4):
        a(f"""s_mov_b64 exec, s[{S_M[j]}:{S_M[j]+1}]
        ds_write_b32 v{HA+j}, v{IDW+j} offset:{ROW}
        ds_write_b16 v{QV+j}, v{RK+j} offset:{EAD}""")
    a(f"""s_mov_b64 exec, vcc
    ds_write_b8 v{T2}, v{T3} offset:{FLG-1}
    s_mov_b64 exec, -1
    s_waitcnt lgkmcnt(0)
    v_readfirstlane_b32 s{S_Q0}, v{HD}
    v_readfirstlane_b32 s{S_NQ}, v{HD+1}
    s_barrier""")
    stamp(a, 5)
    if STAMPS: a(f"s_memtime s[{ST0+26}:{ST0+27}]\ns_waitcnt lgkmcnt(0)")
    a(f"""s_sub_u32 s{S_NQ}, s{S_NQ}, s{S_Q0}
    s_lshr_b32 s{S_NQ}, s{S_NQ}, 2
    s_lshl_b32 s{S_FO}, s{S_N0}, 8
    s_mov_b32 s{S_FIRST}, 1
    v_lshlrev_b32 v{T2}, 4, v{LANE}
    ds_read_b128 v[{B0}:{B0+3}], v{T2} offset:{BW}
    ds_read_b128 v[{B1}:{B1+3}], v{T2} offset:{BW+1024}
    s_lshl_b32 s{S_X}, s{S_Q0}, 2
    s_lshl_b32 s{S_Y}, s{S_Q0}, 1
    v_mov_b32 v{PROW}, s{S_X}
    v_add_u32 v{PEAD}, s{S_Y}, v{PEAD}
    s_lshr_b32 s{S_Q0}, s{S_Q0}, 2""")

def rd_ad(t):
    return [f"ds_read_b128 v[{AD+4*q}:{AD+4*q+3}], v{PROW} offset:{ROW + 64*t + 16*q}" for q in range(4)]
def gathers(g):
    return [f"buffer_load_dword v{g+j}, v{AD+slot_of_reg(j)}, s[{R_TBL}:{R_TBL+3}], 0 offen" for j in range(16)]
def rd_eidx(t): return [f"ds_read_u16 v{EIDX}, v{PEAD} offset:{EAD + 32*t}"]
def rd_a():
    return [f"v_lshl_add_u32 v{EADDR}, v{EIDX}, 4, v{KHC}",
            f"s_mov_b64 exec, s[{S_E0}:{S_E0+1}]", f"ds_read_b128 v[{A0}:{A0+3}], v{EADDR}",
            f"s_mov_b64 exec, s[{S_E1}:{S_E1+1}]", f"ds_read_b128 v[{A1}:{A1+3}], v{EADDR}", "s_mov_b64 exec, -1"]
def rd_xa(x):
    o = [f"s_mov_b32 m0, s{S_RO}"]
    for k in range(4):
        o += [f"s_bitcmp1_b32 s{S_FR}, {k}", f"ds_read_addtid_b32 v{x+k} offset:{XAU}", f"s_cselect_b32 s{S_X}, 256, 0"]
        o += [f"s_add_u32 m0, m0, s{S_X}" if k < 3 else f"s_add_u32 s{S_RO}, m0, s{S_X}"]
    o += [f"s_lshr_b64 s[{S_FR}:{S_FR+1}], s[{S_FR}:{S_FR+1}], 4"]
    return o
def bigs(d, x):
    D = f"v[{d}:{d+15}]"
    return [f"v_mfma_f32_32x32x16_bf16 {D}, v[{A0}:{A0+3}], v[{B0}:{B0+3}], 0",
            f"v_mfma_f32_32x32x16_bf16 {D}, v[{A1}:{A1+3}], v[{B1}:{B1+3}], {D}",
            f"v_mfma_f32_32x32x16_bf16 {D}, v[{A2}:{A2+3}], v[{x}:{x+3}], {D}"]
def smalls(d, g):
    return [f"v_mfma_f32_16x16x32_bf16 v[{d+4*q}:{d+4*q+3}], v[{SEL}:{SEL+3}], v[{g+4*q}:{g+4*q+3}], v[{d+4*q}:{d+4*q+3}]" for q in range(4)]
def pk(d, h):
    X = lambda i: f"v[{d+2*i}:{d+2*i+1}]"; H = lambda i: f"v[{h+2*i}:{h+2*i+1}]"; C = f"v[{CC}:{CC+1}]"
    return [f"v_pk_fma_f32 {X(i)}, {X(i)}, {C}, {C} clamp" for i in range(4)] + [
        f"v_pk_mul_f32 {H(0)}, {H(0)}, {X(1)}", f"v_pk_mul_f32 {H(2)}, {H(2)}, {X(3)}",
        f"v_pk_fma_f32 {H(0)}, {H(1)}, {X(0)}, {H(0)}", f"v_pk_fma_f32 {H(2)}, {H(3)}, {X(2)}, {H(2)}",
        f"v_pk_mul_f32 {X(0)}, {X(0)}, {X(1)}", f"v_pk_mul_f32 {X(2)}, {X(2)}, {X(3)}",
        f"v_pk_mul_f32 {X(1)}, {X(0)}, {X(2)}", f"v_pk_mul_f32 {X(3)}, {H(0)}, {X(2)}",
        f"v_pk_fma_f32 {X(3)}, {H(2)}, {X(0)}, {X(3)}"]

def mainloop(a):
    a.c("---- main loop over tiles of 4 quads ----")
    em = lambda ls: [a(x) for x in ls]
    a(f"""k2_block:
    s_cmp_eq_u32 s{S_NQ}, 0
    s_cbranch_scc1 k2_blockend
    v_add_u32 v{T2}, s{S_Q0}, v{LANE}
    ds_read_u8 v{T3}, v{T2} offset:{FLG}""")
    em(rd_ad(0)); em(rd_eidx(0))
    a(f"""s_min_u32 s{S_Y}, s{S_NQ}, 64
    s_add_u32 s{S_NT}, s{S_Y}, 3
    s_lshr_b32 s{S_NT}, s{S_NT}, 2
    s_mov_b32 s{S_RO}, s{S_FO}
    v_cmp_gt_u32 vcc, s{S_Y}, v{LANE}
    s_sub_u32 s{S_Y}, s{S_Y}, 1
    s_waitcnt lgkmcnt(0)""")
    em(gathers(G[0])); em(rd_ad(1))
    a(f"""v_cmp_ne_u32 s[{S_FF}:{S_FF+1}], 0, v{T3}
    s_nop 1
    s_and_b64 s[{S_FF}:{S_FF+1}], s[{S_FF}:{S_FF+1}], vcc
    s_mov_b64 s[{S_FR}:{S_FR+1}], s[{S_FF}:{S_FF+1}]
    s_bitset0_b64 s[{S_FR}:{S_FR+1}], s{S_Y}
    s_waitcnt lgkmcnt(0)""")
    em(gathers(G[1])); em(rd_ad(2))
    a(f"""s_cmp_eq_u32 s{S_FIRST}, 0
    s_cbranch_scc1 k2_nobar
    s_waitcnt vmcnt(32)
    s_barrier
    s_mov_b32 s{S_FIRST}, 0
    k2_nobar:""")
    stamp(a, 6)
    em(rd_a()); em(rd_eidx(1)); em(rd_xa(XA[0]))
    a("s_waitcnt lgkmcnt(0)")
    em(bigs(Dd[0], XA[0]))
    em(rd_a()); em(rd_eidx(2)); em(rd_xa(XA[1]))
    a("s_waitcnt vmcnt(16)")
    em(smalls(Dd[0], G[0]))
    a("s_nop 7")
    stamp(a, 7)
    if STAMPS: a(f"s_memtime s[{ST0+28}:{ST0+29}]\ns_waitcnt lgkmcnt(0)")
    if PRIO: a("s_setprio 3")
    a("k2_loop:")
    for u in range(2):
        c, n = u, 1 - u
        e = [f"v_exp_f32 v{Dd[c]+j}, v{Dd[c]+j}" for j in range(16)]
        b = bigs(Dd[n], XA[n])
        if "nomfma" in ABL or "nobig" in ABL: b = ["s_nop 0"] * 3
        if "big1" in ABL: b = [b[0], "s_nop 0", "s_nop 0"]
        if "big2" in ABL: b = [b[0], b[1], "s_nop 0"]
        if "noexp" in ABL: e = ["s_nop 0"] * 16
        a("s_waitcnt lgkmcnt(4)")
        em([b[0]] + e[0:4] + [b[1]] + e[4:8] + ["s_waitcnt lgkmcnt(0)", b[2]] + e[8:12])
        em(rd_a()); em(rd_eidx(3 + u)); em(e[12:16])
        PL = "plain" in ABL
        if PL:
            X = lambda i: f"v[{Dd[c]+2*i}:{Dd[c]+2*i+1}]"; H = lambda i: f"v[{G[c]+2*i}:{G[c]+2*i+1}]"
            em([f"v_pk_add_f32 {X(i)}, {X(i)}, 1.0 op_sel_hi:[1,0]" for i in range(8)])
            a(f"s_waitcnt vmcnt(0)")
            rc = [f"v_rcp_f32 v{Dd[c]+j}, v{Dd[c]+j}" for j in range(16)]
            sm = smalls(Dd[n], G[n])
            for q in range(4): em([sm[q]] + rc[3*q:3*q+3])
            em(rc[12:])
            em(inter([f"v_pk_mul_f32 {X(3)}, {X(3)}, {H(3)}"] + [f"v_pk_fma_f32 {X(3)}, {X(i)}, {H(i)}, {X(3)}" for i in range(3)],
                     [f"v_pk_mul_f32 {X(4)}, {X(4)}, {H(4)}"] + [f"v_pk_fma_f32 {X(4)}, {X(i)}, {H(i)}, {X(4)}" for i in (5, 6)] + [f"v_pk_fma_f32 {X(7)}, {X(7)}, {H(7)}, {X(4)}"]))
            a(f"s_cmp_le_u32 s{S_NT}, 2\ns_cbranch_scc1 k2_loaded{u}")
            em(gathers(G[c])); em(rd_ad(3 + u))
            a(f"k2_loaded{u}:")
        else:
            if "nopk" not in ABL: em(inter(pk(Dd[c], G[c]), pk(Dd[c] + 8, G[c] + 8)))
            a(f"s_cmp_le_u32 s{S_NT}, 2\ns_cbranch_scc1 k2_noload{u}")
            if "noload" not in ABL: em(gathers(G[c]))
            em(rd_ad(3 + u))
            a(f"s_waitcnt vmcnt(16)\nk2_loaded{u}:")
            rc = [f"v_rcp_f32 v{Dd[c]+8*(k//2)+2+(k%2)}, v{Dd[c]+8*(k//2)+2+(k%2)}" for k in range(4)]
            em(inter(smalls(Dd[n], G[n]) if not ({"nomfma", "nosmall"} & ABL) else [], rc))
        for k in range(4):
            if PL: a(f"v_add_f32 v{ACC}, v{ACC}, v{Dd[c]+8*(k//2)+6+(k%2)}")
            else: a(f"v_fmac_f32 v{ACC}, v{Dd[c]+8*(k//2)+6+(k%2)}, v{Dd[c]+8*(k//2)+2+(k%2)}")
            a(f"""s_bitcmp1_b32 s{S_FF}, {k}
            s_cbranch_scc0 k2_nofl{u}_{k}
            v_and_b32 v{TMP}, v{MHI}, v{XA[c]+k}
            s_mov_b32 m0, s{S_FO}
            v_fmamk_f32 v{TMP}, v{ACC}, {0x35800000 if PL else 0x26800000:#x}, v{TMP}
            v_mov_b32 v{ACC}, 0
            ds_write_addtid_b32 v{TMP} offset:{XAU}
            s_add_u32 s{S_FO}, s{S_FO}, 256
            k2_nofl{u}_{k}:""")
        em(rd_xa(XA[c]))
        a(f"s_lshr_b64 s[{S_FF}:{S_FF+1}], s[{S_FF}:{S_FF+1}], 4")
        if u == 1: a(f"v_add_u32 v{PROW}, 128, v{PROW}\nv_add_u32 v{PEAD}, 64, v{PEAD}")
        a(f"s_sub_u32 s{S_NT}, s{S_NT}, 1")
        if PRIO:
            a(f"""s_cmp_gt_u32 s{S_NT}, {PRIO[0]}
            s_cbranch_scc1 k2_pr{u}
            s_setprio 2
            s_cmp_gt_u32 s{S_NT}, {PRIO[1]}
            s_cbranch_scc1 k2_pr{u}
            s_setprio 1
            s_cmp_gt_u32 s{S_NT}, {PRIO[2]}
            s_cbranch_scc1 k2_pr{u}
            s_setprio 0
            k2_pr{u}:""")
        a(f"s_cmp_eq_u32 s{S_NT}, 0")
        a("s_cbranch_scc1 k2_loopend" if u == 0 else "s_cbranch_scc0 k2_loop")
    a(f"""k2_loopend:
    s_cmp_le_u32 s{S_NQ}, 64
    s_cbranch_scc1 k2_epi
    s_sub_u32 s{S_NQ}, s{S_NQ}, 64
    s_add_u32 s{S_Q0}, s{S_Q0}, 64
    s_waitcnt lgkmcnt(0)
    s_nop 7
    s_branch k2_block""")
    for u in range(2): a(f"k2_noload{u}:\ns_waitcnt vmcnt(0)\ns_branch k2_loaded{u}")
    a(f"""k2_blockend:
    s_waitcnt vmcnt(0)
    s_barrier""")

def epilogue(a):
    a.c("---- epilogue: silu + store, 8 nodes per round ----")
    E = 0
    a(f"""k2_epi:""")
    stamp(a, 8)
    if STAMPS: a(f"s_memtime s[{ST0+30}:{ST0+31}]\ns_waitcnt lgkmcnt(0)")
    a(f"""s_waitcnt lgkmcnt(0)
    s_nop 7
    s_nop 7
    v_lshrrev_b32 v{T0}, 3, v{LANE}
    v_and_b32 v{T1}, 7, v{LANE}
    v_add_u32 v{T0}, s{S_N0}, v{T0}
    v_lshlrev_b32 v{T2}, 8, v{T0}
    v_lshl_add_u32 v{T2}, v{T1}, 5, v{T2}
    v_lshlrev_b32 v{T3}, 9, v{T0}
    v_lshl_add_u32 v{T3}, v{T1}, 4, v{T3}
    s_mul_i32 s{S_X}, s{S_R}, {L.RN*512}
    s_lshl_b32 s{S_Y}, s{S_S}, 7
    s_add_u32 s{S_X}, s{S_X}, s{S_Y}
    v_mov_b32 v{CW}, 0xbfb8aa3b
    v_mov_b32 v{CW+1}, 0xbfb8aa3b
    k2_eloop:
    s_cmp_ge_u32 s{S_N0}, s{S_N1}
    s_cbranch_scc1 k2_done
    ds_read_b128 v[{E}:{E+3}], v{T2} offset:{XAU}
    ds_read_b128 v[{E+4}:{E+7}], v{T2} offset:{XAU+16}
    v_cmp_gt_u32 vcc, s{S_N1}, v{T0}
    v_add_u32 v{T0}, 8, v{T0}
    v_add_u32 v{T2}, 0x800, v{T2}
    s_waitcnt lgkmcnt(0)""")
    for i in range(4): a(f"v_pk_mul_f32 v[{E+8+2*i}:{E+9+2*i}], v[{E+2*i}:{E+2*i+1}], v[{CW}:{CW+1}]")
    for i in range(8): a(f"v_exp_f32 v{E+8+i}, v{E+8+i}")
    for i in range(4): a(f"v_pk_add_f32 v[{E+8+2*i}:{E+9+2*i}], v[{E+8+2*i}:{E+9+2*i}], 1.0 op_sel_hi:[1,0]")
    for i in range(8): a(f"v_rcp_f32 v{E+8+i}, v{E+8+i}")
    for i in range(4): a(f"v_pk_mul_f32 v[{E+2*i}:{E+2*i+1}], v[{E+2*i}:{E+2*i+1}], v[{E+8+2*i}:{E+9+2*i}]")
    for i in range(4): a(f"v_cvt_pk_bf16_f32 v{E+16+i}, v{E+2*i}, v{E+2*i+1}")
    a(f"""s_mov_b64 exec, vcc
    buffer_store_dwordx4 v[{E+16}:{E+19}], v{T3}, s[{R_OUT}:{R_OUT+3}], s{S_X} offen
    s_mov_b64 exec, -1
    v_add_u32 v{T3}, 0x1000, v{T3}
    s_add_u32 s{S_N0}, s{S_N0}, 8
    s_branch k2_eloop
    k2_done:""")

def k2(a):
    lab = "egc_edge_kernel"
    a(f".p2align 8\n.type {lab},@function\n{lab}:")
    head(a, "k2")
    srd(a, R_OFF, P_WS, L.WS_OFF, L.NCH * L.NR * 8)
    srd(a, R_GW, P_GW, 0, 528 * 512)
    a(f"s_mul_i32 s56, s2, 40960")
    srd(a, R_XAU, P_WS, L.WS_XAU, 40960, soff=56)
    srd(a, R_ID, P_WS, L.WS_ID, L.NCH * L.CHS, stride=4)
    srd(a, R_EA, P_WS, L.WS_EA, L.NCH * L.CHS, stride=32)
    a(f"s_mul_i32 s56, s{S_S}, {L.TBL_SL}")
    srd(a, R_TBL, P_WS, L.WS_TBL, L.TBL_SL, stride=4, w3=0x800000, soff=56)
    srd(a, R_OUT, P_OUT, 0, L.N * 512)
    level2(a); mainloop(a); epilogue(a)
    if STAMPS:
        a("s_waitcnt vmcnt(0)"); stamp(a, 9); stamp_flush(a, 1)
    a("k2_end:\ns_endpgm")

def desc(lab, nv):
    return f""".amdhsa_kernel {lab}
  .amdhsa_next_free_vgpr {nv}
  .amdhsa_next_free_sgpr 102
  .amdhsa_accum_offset {nv}
  .amdhsa_group_segment_fixed_size 0
  .amdhsa_kernarg_size 80
  .amdhsa_user_sgpr_count 2
  .amdhsa_user_sgpr_kernarg_segment_ptr 1
  .amdhsa_system_sgpr_workgroup_id_x 1
  .amdhsa_float_denorm_mode_32 3
.end_amdhsa_kernel
"""

if __name__ == "__main__":
    a = Asm()
    try:
        import gen_k1
        gen_k1.k1(a, sys.modules[__name__])
    except ImportError:
        a(".p2align 8\n.type egc_prep_kernel,@function\negc_prep_kernel:\ns_endpgm")
    k2(a)
    hdr = f"""; EGC message passing: launch 1 = node GEMMs + edge partition, launch 2 = per-range edge processing
; @launch kernel=egc_prep_kernel grid=(256,1,1) block=(1024,1,1) lds=163840
; @launch kernel=egc_edge_kernel grid=(256,1,1) block=(1024,1,1) lds={LDS2}
.amdgcn_target "amdgcn-amd-amdhsa--gfx950"
.text
"""
    out = hdr + a.text() + '.section .rodata,"a"\n.p2align 6\n' + desc("egc_prep_kernel", 128) + ".p2align 6\n" + desc("egc_edge_kernel", 128)
    open(sys.argv[1], "w").write(out)
```

```python
import sys
import layout as L
src, dst, kA, jA, opA, kB, jB, opB, mult = sys.argv[1:10]
kA, jA, kB, jB, mult = map(int, (kA, jA, kB, jB, mult))
role = sys.argv[10] if len(sys.argv) > 10 else 'a'
s = open(src).read()
lines = s.split("\n")
last = max(i for i, l in enumerate(lines) if l.startswith("; @launch"))
if "kernel=" not in lines[last]:
    lines[last] = lines[last].replace("@launch ", "@launch kernel=gather_scatter__edge_featured_mpnn_egc__graph_kernel ")
lines.insert(last + 1, "; @launch kernel=egc_diag_kernel grid=(1,1,1) block=(64,1,1) lds=0")
s = "\n".join(lines)
def red(op, r, t):
    if op == "max": return f"v_max_u32 v{r}, v{r}, v{t}\n"
    return f"v_add_u32 v{t}, -1, v{t}\nv_min_u32 v{r}, v{r}, v{t}\n"
k = f""".p2align 8
.type egc_diag_kernel,@function
egc_diag_kernel:
s_cmp_ge_u32 s2, 1
s_cbranch_scc1 dg_end
s_load_dwordx2 s[4:5], s[0:1], 72
s_waitcnt lgkmcnt(0)
s_add_u32 s6, s4, {L.WS_STAMP + kA*256*16*128 + 8*jA:#x}
s_addc_u32 s7, s5, 0
s_add_u32 s8, s4, {L.WS_STAMP + kB*256*16*128 + 8*jB:#x}
s_addc_u32 s9, s5, 0
v_lshlrev_b32 v1, 7, v0
v_mov_b32 v2, {0 if opA=='max' else -1}
v_mov_b32 v3, {0 if opB=='max' else -1}
s_mov_b32 s10, 0
dg_l:
"""
for u in range(16):
    k += f"global_load_dword v{8+u}, v1, s[6:7]\nglobal_load_dword v{24+u}, v1, s[8:9]\nv_add_u32 v1, 0x2000, v1\n"
k += "s_waitcnt vmcnt(0)\n"
for u in range(16): k += red(opA, 2, 8+u) + red(opB, 3, 24+u)
k += f"""s_add_u32 s10, s10, 1
s_cmp_lt_u32 s10, 4
s_cbranch_scc1 dg_l
s_mov_b32 s10, 0
s_mov_b32 s11, {0 if opA=='max' else -1}
s_mov_b32 s12, {0 if opB=='max' else -1}
dg_r:
v_readlane_b32 s13, v2, s10
v_readlane_b32 s14, v3, s10
s_{opA}_u32 s11, s11, s13
s_bitcmp1_b32 s10, 3
{ {'a': 's_nop 0', 's': 's_cselect_b32 s14, s12, s14', 'g': 's_cselect_b32 s14, s14, s12'}[role] }
s_{opB}_u32 s12, s12, s14
s_add_u32 s10, s10, 1
s_cmp_lt_u32 s10, 64
s_cbranch_scc1 dg_r
s_sub_u32 s11, s12, s11
s_min_u32 s11, s11, 20000
s_mul_i32 s11, s11, {mult}
s_memrealtime s[16:17]
s_waitcnt lgkmcnt(0)
dg_s:
s_memrealtime s[18:19]
s_waitcnt lgkmcnt(0)
s_sub_u32 s13, s18, s16
s_cmp_lt_u32 s13, s11
s_cbranch_scc1 dg_s
dg_end:
s_endpgm
"""
d = """.p2align 6
.amdhsa_kernel egc_diag_kernel
  .amdhsa_next_free_vgpr 48
  .amdhsa_next_free_sgpr 32
  .amdhsa_accum_offset 48
  .amdhsa_group_segment_fixed_size 0
  .amdhsa_kernarg_size 80
  .amdhsa_user_sgpr_count 2
  .amdhsa_user_sgpr_kernarg_segment_ptr 1
  .amdhsa_system_sgpr_workgroup_id_x 1
.end_amdhsa_kernel
"""
open(dst, "w").write(s.replace(".section .rodata", k + ".section .rodata", 1) + d)
```

```python
import sys
from dsl import *
import layout as L

OPT = {}
for x in sys.argv[2:]:
    if x.startswith("--"):
        k, _, val = x[2:].partition("=")
        OPT[k] = val
STAMPS = "stamps" in OPT
PRIO = [int(y) for y in OPT.get("prio", "4,2,1").split(",")]
NAME = "gather_scatter__edge_featured_mpnn_egc__graph_kernel"
SC = " sc1"

SLOTCAP = 3136
ROW = 0
EAD = ROW + (SLOTCAP + 64) * 4
HIST = EAD + (SLOTCAP + 64) * 2
QST = HIST + 1024
FLG = QST + 1024
MISC = FLG + 1024
BND = MISC + 64
BW = MISC + 256
XAU = BW + 2048
assert XAU == 24576
RS = 272
STG = 32 * RS
XP = 1056
XST = 16 * XP
XT = XAU + STG
X0 = 131072
WM = [0, 32768, 65536, 98304]
EA = XAU + 160 * RS
CNT = 163328
H1 = 163584
ECAP = (CNT - EA) // 32
REORD = XT + 4 * XST; REID = REORD + 20480
assert REORD + 23040 <= X0 and REORD % 16 == 0 and EA % 32 == 0
RING = X0
assert RING + 2 * STG >= X0 + XST and RING + 3 * STG <= CNT
MARK = REORD; MARK2 = REORD + 8192
LDSZ = 163840
C_S1, C_S2, C_S3, C_S4, C_W, C_F, C_X, C_E, C_REC, C_OVF, C_IDX, C_G2, C_D, C_I, C_TAG, C_BT = 0, 4, 8, 12, 16, 20, 24, 44, 48, 52, 56, 60, 64, 68, 72, 128
WS_GO = 0x1740000
NJ = 7
NK = 2 * NJ
SPIN = 0x40000

P_X, P_EA, P_SRC, P_DST, P_UW, P_VW, P_GW, P_OUT, P_DBG, P_WS = 4, 6, 8, 10, 12, 14, 16, 18, 20, 22
S_R, S_S, S_W, S_NV = 24, 25, 26, 27
R_TBL, R_OUT = 28, 32
RA, RB, RC, RD, RE = 36, 40, 44, 48, 52
S_X, S_Y, S_Z, S_T, S_BASE, S_SL, S_N0, S_N1, S_Q0, S_NQ, S_NT, S_FO, S_RO, S_FIRST = range(56, 70)
S_G = 3
S_M = [4 + 2 * j for j in range(7)]
TAG = 18
S_FF, S_FR, S_E0, S_E1 = 8, 10, 12, 14
ST0 = 70

CLK = [int(y) for y in OPT.get("clk", "11,12").split(",")]
def stamp(a, j):
    if not STAMPS: return
    if "only" in OPT and str(j) not in OPT["only"].split(","): return
    a(f"s_memrealtime s[{ST0+2*j}:{ST0+2*j+1}]")
    if j in CLK: a(f"s_memtime s[{ST0+28+2*CLK.index(j)}:{ST0+29+2*CLK.index(j)}]")
    a("s_waitcnt lgkmcnt(0)")
def stamp_flush(a):
    if not STAMPS: return
    a(f"""s_lshl_b32 s56, s2, 4
    s_add_u32 s56, s56, s{S_W}
    s_lshl_b32 s56, s56, 7
    s_add_u32 s56, s56, {L.WS_STAMP:#x}
    s_add_u32 s58, s{P_WS}, s56
    s_addc_u32 s59, s{P_WS+1}, 0
    s_mov_b64 exec, 1
    v_mov_b32 v0, 0""")
    for j in range(16):
        a(f"v_mov_b32 v2, s{ST0+2*j}\nv_mov_b32 v3, s{ST0+2*j+1}\nglobal_store_dwordx2 v0, v[2:3], s[58:59] offset:{8*j}\ns_nop 1")

G = [0, 16]; Dd = [32, 48]; AD = 64; A0 = 80; A1 = 84; B0 = 88; B1 = 92; SEL = 96; A2 = 100
XA = [104, 108]; CC = 112; ACC = 114; EIDX = 115; EADDR = 116; PROW = 117; PEAD = 118; KHC = 119
LANE = 120; TID = 121
T0, T1, T2, T3 = 122, 123, 124, 125
CB, ONE = 126, 127

def slot_of_reg(j):
    g, i, ab = j // 8, (j % 8) // 2, j % 2
    return (2 * g + ab) * 4 + i

def consts(a):
    a.c("SEL (16x16x32 A operand): lane(row=l%16,kq=l/16): 1.0 at element 2*(row%4) iff kq==row/4")
    a(f"""v_lshrrev_b32 v{T0}, 4, v{LANE}
    v_bfe_u32 v{T1}, v{LANE}, 2, 2
    v_and_b32 v{T2}, 3, v{LANE}
    v_cmp_eq_u32 vcc, v{T0}, v{T1}
    v_mov_b32 v{T3}, 0x3f80
    v_mov_b32 v{CC}, 0x30800000
    v_cndmask_b32 v{T2}, 7, v{T2}, vcc""")
    for k in range(4):
        a(f"v_cmp_eq_u32 vcc, {k}, v{T2}\nv_mov_b32 v{A0+2*k}, 0\nv_mov_b32 v{A0+2*k+1}, 0\nv_cndmask_b32 v{SEL+k}, 0, v{T3}, vcc")
    a.c("A2 (32x32x16 A operand): row=8a+4h+b, reg j=4a+b, quad=2*(j/8)+(j%2); 1.0 at element 2*quad iff kh==h")
    a(f"""v_lshrrev_b32 v{T0}, 5, v{LANE}
    v_bfe_u32 v{T1}, v{LANE}, 2, 1
    v_cmp_eq_u32 vcc, v{T0}, v{T1}
    v_bfe_u32 v{T1}, v{LANE}, 4, 1
    v_and_b32 v{T2}, 1, v{LANE}
    v_lshl_add_u32 v{PEAD}, v{T1}, 1, v{T2}
    v_cndmask_b32 v{T2}, 7, v{PEAD}, vcc""")
    fill = [f"v_bfe_u32 v{T1}, v{LANE}, 3, 1", f"v_lshl_add_u32 v{PEAD}, v{PEAD}, 1, v{T1}",
            f"v_bfe_u32 v{T1}, v{LANE}, 1, 1", f"v_lshl_add_u32 v{PEAD}, v{PEAD}, 1, v{T1}",
            f"v_lshlrev_b32 v{PEAD}, 1, v{PEAD}", f"v_lshlrev_b32 v{KHC}, 4, v{T0}",
            f"v_add_u32 v{KHC}, {EA}, v{KHC}", f"v_mov_b32 v{CC+1}, 0x30800000"]
    for k in range(4):
        a(f"v_cmp_eq_u32 vcc, {k}, v{T2}\n{fill[2*k]}\n{fill[2*k+1]}\nv_cndmask_b32 v{A2+k}, 0, v{T3}, vcc")
    a(f"v_mov_b32 v{ACC}, 0")

def minq(a, MQ):
    a(f"v_lshlrev_b32 v{T0}, 2, v{LANE}\nv_sub_u32 v{T0}, s{S_NV}, v{T0}")
    for k in range(4):
        a(f"v_cmp_lt_i32 vcc, {k}, v{T0}\ns_nop 1\nv_cndmask_b32 v{MQ+k}, 0, 4, vcc")

def hist_scan(a, HD, MQ, SP, INC, between=None):
    a(f"v_lshlrev_b32 v{T2}, 4, v{LANE}\nds_read_b128 v[{HD}:{HD+3}], v{T2} offset:{HIST}")
    if between: between()
    a("s_waitcnt lgkmcnt(0)")
    for k in range(4): a(f"v_add_u32 v{HD+k}, 3, v{HD+k}")
    for k in range(4): a(f"v_and_b32 v{HD+k}, -4, v{HD+k}")
    for k in range(4): a(f"v_max_u32 v{HD+k}, v{HD+k}, v{MQ+k}")
    a(f"""v_add_u32 v{HD+1}, v{HD}, v{HD+1}
    v_add_u32 v{HD+2}, v{HD+1}, v{HD+2}
    v_add_u32 v{HD+3}, v{HD+2}, v{HD+3}
    v_mov_b32 v{INC}, v{HD+3}""")
    scan(a, "v_add_u32", [INC])
    a(f"""v_sub_u32 v{SP}, v{INC}, v{HD+3}
    v_readlane_b32 s{S_SL}, v{INC}, 63
    v_add_u32 v{SP+1}, v{SP}, v{HD}
    v_add_u32 v{SP+2}, v{SP}, v{HD+1}
    v_add_u32 v{SP+3}, v{SP}, v{HD+2}
    ds_write_b128 v{T2}, v[{SP}:{SP+3}] offset:{QST}""")

_lab = [0]
def spin(a, off, tv, ts, n=8, sl=0):
    _lab[0] += 1; k = _lab[0]
    a(f"""sp{k}:
    s_cmp_ge_u32 s{ts}, {n}
    s_cbranch_scc1 sp{k}e
    {"s_sleep " + str(sl) if sl else ""}
    ds_read_b32 v{tv}, v{CB} offset:{off}
    s_waitcnt lgkmcnt(0)
    v_readfirstlane_b32 s{ts}, v{tv}
    s_branch sp{k}
    sp{k}e:""")
def sync(a, off, tv, ts, wait=True, n=8, sl=0):
    a(f"""s_mov_b64 exec, 1
    ds_add_rtn_u32 v{tv}, v{CB}, v{ONE} offset:{off}
    s_mov_b64 exec, -1
    s_waitcnt lgkmcnt(0)
    v_readfirstlane_b32 s{ts}, v{tv}
    s_add_u32 s{ts}, s{ts}, 1""")
    if wait: spin(a, off, tv, ts, n, sl)

def common_srds(a):
    a(f"s_mul_i32 s{S_X}, s{S_S}, {L.TBL_SL}")
    srd(a, R_TBL, P_WS, L.WS_TBL, L.TBL_SL, stride=4, w3=0x800000, soff=S_X)
    srd(a, R_OUT, P_OUT, 0, L.N * 512)

def arrive(a, off):
    a(f"s_mov_b64 exec, 1\nds_add_u32 v{CB}, v{ONE} offset:{off}\ns_mov_b64 exec, -1")

def s_role(a):
    DS, SR, RG, ID, RKK, CN, INC, GRN = 2, 4, 6, 8, 10, 12, 13, 14
    EV = 20
    CW, NON = 36, 38
    ZV = 40
    LA, GA, CA_ = 16, 17, 18
    M1 = 60
    order = OPT.get("order", "s")
    def pre():
        if "touch" in OPT:
            a(f"""s_cmp_lg_u32 s{S_W}, 7
            s_cbranch_scc1 s_notouch
            s_mul_i32 s{S_X}, s{S_R}, {L.RN*512}
            s_load_dword s{S_Q0}, s[{P_X}:{P_X+1}], s{S_X}
            s_load_dword s{S_Q0}, s[{P_OUT}:{P_OUT+1}], s{S_X}
            s_mul_i32 s{S_X}, s2, {L.CH*32}
            s_load_dword s{S_Q0}, s[{P_EA}:{P_EA+1}], s{S_X}
            s_load_dword s{S_Q0}, s[{P_DBG}:{P_DBG+1}], 0x80
            s_mul_i32 s{S_X}, s{S_S}, {L.TBL_SL}""")
            for k in range(2): a(f"s_load_dword s{S_Q0}, s[{P_WS}:{P_WS+1}], s{S_X}\ns_add_u32 s{S_X}, s{S_X}, {L.TBL_SL//2 - 64}")
            a(f"s_load_dword s{S_Q0}, s[{P_WS}:{P_WS+1}], s{S_X}")
            for off in (L.WS_EA + 0x1ff000, L.WS_EA + 0x3ff000, L.WS_EA + 0x5ff000, L.WS_ID + 0xff000):
                a(f"s_mov_b32 s{S_X}, {off:#x}\ns_load_dword s{S_Q0}, s[{P_WS}:{P_WS+1}], s{S_X}")
            a("s_notouch:")
        if "code" in OPT:
            a(f"""s_getpc_b64 s[{S_Z}:{S_Z+1}]
            s_mul_i32 s{S_X}, s{S_W}, {13*128}""")
            for k in range(13): a(f"s_load_dword s{S_Q0}, s[{S_Z}:{S_Z+1}], s{S_X}\ns_add_u32 s{S_X}, s{S_X}, 128")
    def ld_ids():
        a(f"""buffer_load_dword v{DS}, v{T0}, s[{RA}:{RA+3}], 0 offen
        buffer_load_dword v{DS+1}, v{T0}, s[{RA}:{RA+3}], 0 offen offset:2048
        buffer_load_dword v{SR}, v{T0}, s[{RB}:{RB+3}], 0 offen
        buffer_load_dword v{SR+1}, v{T0}, s[{RB}:{RB+3}], 0 offen offset:2048""")
    def ld_ea():
        a(f"""s_movk_i32 s{S_X}, 16384
        buffer_load_dwordx4 v[{EV}:{EV+3}], v{LA}, s[{RC}:{RC+3}], 0 offen
        buffer_load_dwordx4 v[{EV+4}:{EV+7}], v{LA}, s[{RC}:{RC+3}], 0 offen offset:16
        buffer_load_dwordx4 v[{EV+8}:{EV+11}], v{LA}, s[{RC}:{RC+3}], s{S_X} offen
        buffer_load_dwordx4 v[{EV+12}:{EV+15}], v{LA}, s[{RC}:{RC+3}], s{S_X} offen offset:16""")
    a(f"""v_mov_b32 v{T2}, 0
    v_mov_b32 v{T3}, 0
    v_lshl_add_u32 v{T1}, v{LANE}, 3, v{CB}
    ds_write_b64 v{T1}, v[{T2}:{T3}]""")
    if order == "g": a("s_waitcnt lgkmcnt(0)\ns_barrier"); pre()
    a(f"s_mul_i32 s{S_X}, s2, {L.CH*4}")
    srd(a, RA, P_DST, 0, L.CH * 4, soff=S_X)
    srd(a, RB, P_SRC, 0, L.CH * 4, soff=S_X)
    a(f"v_lshlrev_b32 v{T0}, 2, v0\nv_lshlrev_b32 v{LA}, 5, v0")
    if order in ("s", "d"): ld_ids()
    if order == "d": a("s_waitcnt lgkmcnt(0)\ns_barrier"); pre()
    a(f"s_mul_i32 s{S_X}, s2, {L.CH*32}")
    srd(a, RC, P_EA, 0, L.CH * 32, soff=S_X)
    if order == "s":
        ld_ea(); a("s_waitcnt lgkmcnt(0)\ns_barrier"); pre()
    else:
        a(f"s_mov_b32 s{S_X}, 0")
        spin(a, C_I, T1, S_X, n=int(OPT.get("ni", 8)), sl=1)
        if order == "g": ld_ids()
        ld_ea()
    a(f"s_mul_i32 s{S_X}, s2, {L.CHS*32}")
    srd(a, RD, P_WS, L.WS_EA, L.CH * 32, soff=S_X)
    a(f"s_mul_i32 s{S_X}, s2, {L.CHS*4}")
    srd(a, RE, P_WS, L.WS_ID, L.CHS * 4, soff=S_X)
    common_srds(a)
    a(f"""v_cmp_gt_u32 vcc, {L.CH-512}, v0
    s_mov_b64 s[{M1}:{M1+1}], vcc
    v_lshl_add_u32 v{T1}, v{LANE}, 2, v{CB}
    v_lshlrev_b32 v{GA}, 4, v0
    v_add_u32 v{LA}, {REORD}, v{GA}
    v_lshrrev_b32 v{T0}, 5, v{LANE}
    v_and_b32 v{T2}, 31, v{LANE}
    v_lshlrev_b32 v{T2}, 1, v{T2}
    v_lshl_add_u32 v{CA_}, v{T0}, 12, v{T2}
    s_movk_i32 s{S_Y}, {-L.RN}
    s_mov_b32 s{S_Z}, {H1}
    s_waitcnt vmcnt(6)""")
    stamp(a, 1)
    for k in range(2): a(f"v_mul_u32_u24 v{RG+k}, 13358, v{DS+k}")
    for k in range(2): a(f"v_lshrrev_b32 v{RG+k}, 21, v{RG+k}")
    for k in range(2): a(f"v_mad_i32_i24 v{DS+k}, v{RG+k}, s{S_Y}, v{DS+k}")
    for k in range(2): a(f"v_lshl_add_u32 v{RG+k}, v{RG+k}, 2, s{S_Z}")
    a(f"""ds_add_rtn_u32 v{RKK}, v{RG}, v{ONE}
    s_mov_b64 exec, s[{M1}:{M1+1}]
    ds_add_rtn_u32 v{RKK+1}, v{RG+1}, v{ONE}""")
    sync(a, C_S1, T0, S_X)
    a(f"ds_read_b32 v{CN}, v{T1} offset:{H1-CNT}")
    srd(a, RA, P_GW, 0, 528 * 512)
    a(f"s_waitcnt lgkmcnt(0)\nv_mov_b32 v{INC}, v{CN}")
    scan(a, "v_add_u32", [INC])
    a(f"""v_sub_u32 v{INC}, v{INC}, v{CN}
    ds_bpermute_b32 v{T2}, v{RG}, v{INC}
    ds_bpermute_b32 v{T3}, v{RG+1}, v{INC}
    v_lshl_or_b32 v{GRN}, v{CN}, 10, v{INC}
    s_mov_b32 s{S_X}, {REORD}
    s_mov_b32 s{S_Y}, {REID}
    s_waitcnt vmcnt(4)
    v_lshl_or_b32 v{ID}, v{SR}, 8, v{DS}
    v_lshl_or_b32 v{ID+1}, v{SR+1}, 8, v{DS+1}
    s_waitcnt lgkmcnt(0)
    v_add_u32 v{DS}, v{T2}, v{RKK}
    v_add_u32 v{DS+1}, v{T3}, v{RKK+1}
    v_lshl_add_u32 v{RG}, v{DS}, 5, s{S_X}
    v_lshl_add_u32 v{RG+1}, v{DS+1}, 5, s{S_X}
    v_lshl_add_u32 v{DS}, v{DS}, 2, s{S_Y}
    v_lshl_add_u32 v{DS+1}, v{DS+1}, 2, s{S_Y}
    s_lshl_b32 s{S_X}, s2, 9""")
    srd(a, RB, P_WS, L.WS_OFF, 512, soff=S_X)
    a(f"""s_and_b32 s{S_T}, s{S_W}, 3
    s_lshl_b32 s{S_T}, s{S_T}, 10
    s_lshr_b32 s{S_Y}, s{S_W}, 2
    s_lshl_b32 s{S_Y}, s{S_Y}, 6
    s_add_u32 s{S_T}, s{S_T}, s{S_Y}
    s_lshl_b32 s{S_Y}, s{S_S}, 7
    s_add_u32 s{S_T}, s{S_T}, s{S_Y}
    s_add_u32 s{S_T}, s{S_T}, {512*512}""")
    MQ = 52
    consts(a)
    minq(a, MQ)
    a(f"""s_lshr_b32 s{S_X}, s2, 3
    s_add_u32 s{S_X}, s{S_X}, {L.N}
    s_lshl_b32 s{S_X}, s{S_X}, 8""")
    for k in range(4): a(f"v_mov_b32 v{ZV+k}, s{S_X}\nv_mov_b32 v{ZV+4+k}, 0")
    a(f"s_mov_b32 s{S_X}, 0\ns_waitcnt vmcnt(0)")
    stamp(a, 2)
    spin(a, C_F, T0, S_X, sl=1)
    a(f"""ds_write_b128 v{RG}, v[{EV}:{EV+3}]
    ds_write_b128 v{RG}, v[{EV+4}:{EV+7}] offset:16
    ds_write_b32 v{DS}, v{ID}
    s_mov_b64 exec, s[{M1}:{M1+1}]
    ds_write_b128 v{RG+1}, v[{EV+8}:{EV+11}]
    ds_write_b128 v{RG+1}, v[{EV+12}:{EV+15}] offset:16
    ds_write_b32 v{DS+1}, v{ID+1}""")
    sync(a, C_S2, T0, S_X)
    for k in range(3): a(f"ds_read_b128 v[{EV+4*k}:{EV+4*k+3}], v{LA} offset:{8192*k}")
    a(f"ds_read_b128 v[{EV+12}:{EV+15}], v{LA} offset:{REID-REORD}")
    a(f"s_movk_i32 s{S_Y}, 8192\ns_movk_i32 s{S_Z}, 16384")
    for k, so in enumerate(("0", f"s{S_Y}", f"s{S_Z}")):
        a(f"s_waitcnt lgkmcnt({3-k})\nbuffer_store_dwordx4 v[{EV+4*k}:{EV+4*k+3}], v{GA}, s[{RD}:{RD+3}], {so} offen{SC}")
    a(f"""s_waitcnt lgkmcnt(0)
    buffer_store_dwordx4 v[{EV+12}:{EV+15}], v{GA}, s[{RE}:{RE+3}], 0 offen{SC}
    global_load_dwordx2 v[{NON}:{NON+1}], v{ZV+4}, s[{P_DBG}:{P_DBG+1}] offset:32 sc1
    buffer_load_ushort v{CW}, v{CA_}, s[{RA}:{RA+3}], s{S_T} offen
    buffer_load_ushort v{CW+1}, v{CA_}, s[{RA}:{RA+3}], s{S_T} offen offset:512""")
    stamp(a, 3)
    GR, LEN, PRE, DEL, PA = 2, 4, 5, 6, 7
    MKB, IOT = 8, 48
    IDX, IDW, HA, RK, QV = 20, 28, 64, 72, 20
    HD, SP, INC2 = 56, 60, 12
    MA1 = 13
    a.c("LDS init of the list area")
    nrow = (EAD - ROW) // 16; nz = (BW - EAD) // 16
    a(f"""ds_write_b128 v{GA}, v[{ZV}:{ZV+3}] offset:{ROW}
    ds_write_b128 v{GA}, v[{ZV+4}:{ZV+7}] offset:{EAD}
    v_cmp_gt_u32 vcc, {nrow-512}, v0
    s_mov_b64 exec, vcc
    ds_write_b128 v{GA}, v[{ZV}:{ZV+3}] offset:{ROW+8192}
    v_cmp_gt_u32 vcc, {nz-512}, v0
    s_mov_b64 exec, vcc
    ds_write_b128 v{GA}, v[{ZV+4}:{ZV+7}] offset:{EAD+8192}
    s_mov_b64 exec, -1""")
    a(f"s_mul_i32 s{S_X}, s{S_W}, {32*L.CHS*4}")
    srd(a, RE, P_WS, L.WS_ID, 32 * L.CHS, stride=4, soff=S_X)
    srd(a, RC, P_WS, L.WS_OFF, L.NCH * L.NR * 8)
    a(f"""s_and_b32 s{S_X}, s{S_W}, 3
    s_lshl_b32 s{S_X}, s{S_X}, 2
    s_lshr_b32 s{S_Y}, s{S_W}, 2
    s_lshl_b32 s{S_Y}, s{S_Y}, 10
    s_add_u32 s{S_X}, s{S_X}, s{S_Y}
    v_lshl_add_u32 v{T1}, v{LANE}, 4, s{S_X}
    v_lshlrev_b32 v{T2}, 3, v{LANE}
    v_mul_u32_u24 v{IOT}, 0x80008, v{LANE}
    v_add_u32 v{IOT}, 0x10000, v{IOT}
    v_add_u32 v{IOT+1}, 0x20002, v{IOT}
    v_add_u32 v{IOT+2}, 0x40004, v{IOT}
    v_add_u32 v{IOT+3}, 0x60006, v{IOT}
    v_mul_u32_u24 v{DEL}, {L.CHS}, v{LANE}
    v_lshlrev_b32 v{PA}, 9, v{LANE}
    v_mov_b32 v{GR}, 0
    s_lshl_b32 s{S_N0}, s{S_W}, 10
    s_add_u32 s{S_N0}, s{S_N0}, {MARK}
    v_lshl_add_u32 v{MA1}, v{LANE}, 1, s{S_N0}
    s_lshl_b32 s{S_Z}, s{S_W}, 14
    s_lshl_b32 s{S_Y}, s{S_R}, 3
    s_add_u32 s{S_Z}, s{S_Z}, s{S_Y}
    s_mov_b32 s{S_Y}, {SPIN}
    s_waitcnt vmcnt(0)
    s_nonce:
    v_readfirstlane_b32 s{TAG+1}, v{NON+1}
    v_readfirstlane_b32 s{TAG}, v{NON}
    s_sub_u32 s{S_Y}, s{S_Y}, 1
    s_cbranch_scc1 s_nonceok
    s_cmp_lg_u32 s{TAG+1}, 0
    s_cbranch_scc1 s_nonceok
    global_load_dwordx2 v[{NON}:{NON+1}], v{ZV+4}, s[{P_DBG}:{P_DBG+1}] offset:32 sc1
    s_waitcnt vmcnt(0)
    s_branch s_nonce
    s_nonceok:
    s_and_b32 s{S_N1}, s{TAG+1}, 0xfff
    v_lshl_or_b32 v{GRN}, s{S_N1}, 20, v{GRN}
    v_mov_b32 v{GRN+1}, s{TAG}
    s_mov_b64 exec, 1
    ds_write_b64 v{CB}, v[{NON}:{NON+1}] offset:{C_TAG}""")
    sync(a, C_S3, T0, S_X, wait=False)
    a(f"""s_cmp_lg_u32 s{S_X}, 8
    s_cbranch_scc1 s_nopub
    buffer_store_dwordx2 v[{GRN}:{GRN+1}], v{T2}, s[{RB}:{RB+3}], 0 offen{SC}
    s_nopub:""")
    stamp(a, 4)
    a(f"""v_lshlrev_b32 v{CW}, 16, v{CW}
    v_lshlrev_b32 v{CW+1}, 16, v{CW+1}
    v_mul_f32 v{CW}, 0xbfb8aa3b, v{CW}
    v_mul_f32 v{CW+1}, 0xbfb8aa3b, v{CW+1}
    v_cvt_pk_bf16_f32 v{CW}, v{CW}, v{CW+1}
    ds_write_b32 v{T1}, v{CW} offset:{BW}""")
    spin(a, C_S3, T0, S_X)
    a(f"ds_write_b128 v{LA}, v[{ZV+4}:{ZV+7}]")
    if int(OPT.get("pdel", 8)): a(f"s_sleep {int(OPT.get('pdel', 8))}")
    stamp(a, 5)
    a(f"""s_mov_b32 s{S_Y}, {SPIN}
    s_mov_b32 exec_hi, 0
    s_poll:
    buffer_load_dwordx2 v[{GR}:{GR+1}], v{PA}, s[{RC}:{RC+3}], s{S_Z} offen{SC}
    s_waitcnt vmcnt(0)
    v_lshrrev_b32 v{T0}, 20, v{GR}
    v_cmp_ne_u32 vcc, s{TAG}, v{GR+1}
    v_cmp_ne_u32 s[{S_M[0]}:{S_M[0]+1}], s{S_N1}, v{T0}
    s_or_b64 vcc, vcc, s[{S_M[0]}:{S_M[0]+1}]
    s_cbranch_scc0 s_pollok
    s_sleep 2
    s_sub_u32 s{S_Y}, s{S_Y}, 1
    s_cbranch_scc0 s_poll
    v_mov_b32 v{GR}, 0
    s_pollok:
    s_mov_b64 exec, -1""")
    stamp(a, 6)
    a(f"""v_bfe_u32 v{LEN}, v{GR}, 10, 10
    v_and_b32 v{GR}, 0x3ff, v{GR}
    v_mov_b32 v{INC2}, v{LEN}
    v_add_u32 v{DEL}, v{DEL}, v{GR}""")
    a("s_nop 0")
    for m in ("row_shr:1", "row_shr:2", "row_shr:4", "row_shr:8"):
        a(f"v_add_u32_dpp v{INC2}, v{INC2}, v{INC2} {m} row_mask:0xf bank_mask:0xf bound_ctrl:0\ns_nop 1")
    a(f"""v_add_u32_dpp v{INC2}, v{INC2}, v{INC2} row_bcast:15 row_mask:0xa bank_mask:0xf
    v_cmp_lt_u32 vcc, 0, v{LEN}
    v_sub_u32 v{PRE}, v{INC2}, v{LEN}
    v_readlane_b32 s{S_T}, v{INC2}, 31
    v_sub_u32 v{DEL}, v{DEL}, v{PRE}
    v_lshl_add_u32 v{T0}, v{PRE}, 1, s{S_N0}
    v_add_u32 v{INC2}, 31, v{INC2}
    s_cmp_gt_u32 s{S_T}, {64*NJ}
    s_cselect_b64 exec, 0, vcc
    ds_write_b16 v{T0}, v{DEL}
    s_mov_b64 exec, -1
    ds_read_b128 v[{MKB}:{MKB+3}], v{LA}
    v_and_b32 v{INC2}, 0xffffffe0, v{INC2}
    s_mov_b32 exec_lo, 0x80000000
    s_mov_b32 exec_hi, 0
    ds_add_rtn_u32 v{T0}, v{CB}, v{INC2} offset:{C_REC}
    s_mov_b64 exec, -1
    s_waitcnt lgkmcnt(1)""")
    for k in range(4): a(f"v_pk_max_u16 v{MKB+k}, v{MKB+k}, v{MKB+k} op_sel:[0,0] op_sel_hi:[1,0]")
    for k in range(1, 4): a(f"v_pk_max_u16 v{MKB+k}, v{MKB+k}, v{MKB+k-1} op_sel:[0,1] op_sel_hi:[1,1]")
    a(f"v_lshrrev_b32 v{INC2}, 16, v{MKB+3}")
    scan(a, "v_max_u32", [INC2])
    a(f"""v_mov_b32 v{PRE}, 0
    s_waitcnt lgkmcnt(0)
    v_mov_b32_dpp v{PRE}, v{INC2} wave_shr:1 row_mask:0xf bank_mask:0xf
    v_readlane_b32 s{S_BASE}, v{T0}, 31""")
    for k in range(4): a(f"v_pk_max_u16 v{MKB+k}, v{MKB+k}, v{PRE} op_sel:[0,0] op_sel_hi:[1,0]")
    for k in range(4): a(f"v_pk_add_u16 v{HD+k}, v{MKB+k}, v{IOT+k}")
    a(f"ds_write_b128 v{LA}, v[{HD}:{HD+3}]")
    for j in range(NJ): a(f"ds_read_u16 v{IDX+j}, v{MA1} offset:{128*j}")
    a(f"ds_write_b128 v{LA}, v[{MKB}:{MKB+3}] offset:{MARK2-MARK}")
    a.c("capacity guard")
    a(f"""s_add_u32 s{S_X}, s{S_BASE}, s{S_T}
    s_cmp_gt_u32 s{S_X}, {ECAP - 32}
    s_cselect_b32 s{S_T}, {64*NJ+1}, s{S_T}
    s_cmp_gt_u32 s{S_T}, {64*NJ}
    s_cbranch_scc0 s_fits
    s_mov_b32 s{S_T}, 0
    ds_write_b32 v{CB}, v{ONE} offset:{C_OVF}
    s_waitcnt lgkmcnt(0)
    s_fits:""")
    for j in range(NJ):
        a(f"s_sub_i32 s{S_X}, s{S_T}, {64*j}\nv_cmp_gt_i32 s[{S_M[j]}:{S_M[j]+1}], s{S_X}, v{LANE}")
    a(f"""v_mov_b32 v{T2}, s{S_BASE}
    v_mov_b32 v{T3}, s{S_T}
    v_lshl_add_u32 v{T1}, s{S_W}, 3, v{CB}
    s_waitcnt lgkmcnt(1)""")
    for j in range(NJ):
        a(f"s_mov_b64 exec, s[{S_M[j]}:{S_M[j]+1}]")
        if j >= 5: a("s_cbranch_execz s_idsdone")
        a(f"buffer_load_dword v{IDW+j}, v{IDX+j}, s[{RE}:{RE+3}], 0 idxen{SC}")
    a(f"""s_idsdone:
    s_mov_b64 exec, 1
    ds_write_b64 v{T1}, v[{T2}:{T3}] offset:{C_BT}
    ds_add_u32 v{CB}, v{ONE} offset:{C_IDX}
    s_mov_b64 exec, -1""")
    stamp(a, 7)
    a("s_waitcnt vmcnt(0)")
    stamp(a, 8)
    for j in range(NJ):
        a(f"v_lshlrev_b32_sdwa v{HA+j}, 2, v{IDW+j} dst_sel:DWORD dst_unused:UNUSED_PAD src0_sel:DWORD src1_sel:BYTE_0")
    for j in range(NJ):
        a(f"s_mov_b64 exec, s[{S_M[j]}:{S_M[j]+1}]")
        if j >= 5: a("s_cbranch_execz s_histdone")
        a(f"ds_add_rtn_u32 v{RK+j}, v{HA+j}, v{ONE} offset:{HIST}")
    a("s_histdone:")
    sync(a, C_S4, T0, S_X)
    def btw():
        for j in range(NJ): a(f"v_and_b32 v{IDW+j}, 0x3fff00, v{IDW+j}")
        a(f"v_add_u32 v{T0}, s{S_BASE}, v{LANE}\nv_lshlrev_b32 v{T1}, 2, v0\nv_and_b32 v{T1}, 0x3fc, v{T1}")
    hist_scan(a, HD, MQ, SP, INC2, btw)
    for j in range(NJ): a(f"ds_read_b32 v{QV+j}, v{HA+j} offset:{QST}")
    a(f"""ds_read_b32 v{T3}, v{T1} offset:{QST+4}
    s_lshl_b32 s{S_Z}, s{S_W}, 1
    s_add_u32 s{S_Z}, s{S_Z}, 1
    s_mul_i32 s{S_X}, s{S_SL}, s{S_Z}
    s_add_u32 s{S_X}, s{S_X}, 15""")
    BV = 8
    for t in range(2):
        a(f"s_lshr_b32 s{S_Y}, s{S_X}, 4\ns_add_u32 s{S_X}, s{S_X}, s{S_SL}")
        for k in range(4):
            a(f"v_cmp_gt_u32 vcc, s{S_Y}, v{SP+k}")
            if k == 0: a(f"s_bcnt1_i32_b64 s{S_N0}, vcc")
            else: a(f"s_bcnt1_i32_b64 s{S_FO}, vcc\ns_add_u32 s{S_N0}, s{S_N0}, s{S_FO}")
        a(f"""v_mov_b32 v{BV+2*t}, s{S_N0}
        v_lshlrev_b32 v{BV+2*t+1}, 2, v{BV+2*t}
        ds_read_b32 v{BV+2*t+1}, v{BV+2*t+1} offset:{QST}""")
    a(f"""s_lshl_b32 s{S_X}, s{S_Z}, 3
    v_mov_b32 v{T1}, s{S_X}
    v_cmp_gt_u32 vcc, s{S_NV}, v0
    s_cmp_gt_u32 s{S_SL}, {SLOTCAP}
    s_cbranch_scc1 s_scatdone
    s_waitcnt lgkmcnt(2)
    v_lshrrev_b32 v{T3}, 2, v{T3}
    s_mov_b64 exec, vcc
    ds_write_b8 v{T3}, v{ONE} offset:{FLG-1}""")
    for j in range(NJ):
        a(f"s_mov_b64 exec, s[{S_M[j]}:{S_M[j]+1}]")
        if j >= 5: a("s_cbranch_execz s_scatdone")
        a(f"""v_add_lshl_u32 v{HA+j}, v{QV+j}, v{RK+j}, 2
        v_add_lshl_u32 v{QV+j}, v{QV+j}, v{RK+j}, 1
        v_add_u32 v{RK+j}, {64*j}, v{T0}
        ds_write_b32 v{HA+j}, v{IDW+j} offset:{ROW}
        ds_write_b16 v{QV+j}, v{RK+j} offset:{EAD}""")
    a(f"""s_scatdone:
    s_mov_b64 exec, 1
    s_waitcnt lgkmcnt(0)
    ds_write_b64 v{T1}, v[{BV}:{BV+1}] offset:{BND}
    ds_write_b64 v{T1}, v[{BV+2}:{BV+3}] offset:{BND+8}
    s_mov_b64 exec, -1
    s_cmp_lg_u32 s{S_W}, 0
    s_cbranch_scc1 k_join
    s_lshl_b32 s{S_X}, s{S_S}, 6
    s_add_u32 s{S_X}, s{S_X}, s{S_R}
    s_lshl_b32 s{S_X}, s{S_X}, 7
    s_add_u32 s{S_X}, s{S_X}, {WS_GO:#x}
    s_mov_b32 s{S_Y}, {SPIN}
    s_gopoll:
    s_load_dwordx2 s[{S_Q0}:{S_Q0+1}], s[{P_WS}:{P_WS+1}], s{S_X} glc
    s_waitcnt lgkmcnt(0)
    s_cmp_eq_u64 s[{S_Q0}:{S_Q0+1}], s[{TAG}:{TAG+1}]
    s_cbranch_scc1 k_join
    s_sub_u32 s{S_Y}, s{S_Y}, 1
    s_cbranch_scc0 s_gopoll
    s_branch k_join""")

def g_role(a):
    R_X, R_GW, R_VW, R_UW, R_O = RA, RB, RC, RD, RE
    BF, ACC_, AR, CO, XR, OA, CA, SA = 0, 64, 96, 112, 116, 117, 118, 119
    WA0, WA1, BA, CV, XA_ = 96, 97, 98, T2, T3
    SP0, SP1, SD1, SXL, SXB = S_T, S_BASE, S_SL, S_N0, S_N1
    order = OPT.get("order", "s")
    a("g_role:")
    a(f"s_sub_u32 s{S_G}, s{S_W}, 8")
    a.c("launch nonce: workgroup 0 publishes the clock")
    a(f"""s_or_b32 s{S_X}, s2, s{S_G}
    s_cbranch_scc1 g_nononce
    s_memrealtime s[{S_Z}:{S_Z+1}]
    v_mov_b32 v4, 0
    s_waitcnt lgkmcnt(0)
    s_bitset1_b32 s{S_Z+1}, 31
    v_mov_b32 v2, s{S_Z}
    v_mov_b32 v3, s{S_Z+1}
    s_mov_b64 exec, 1
    global_store_dwordx2 v4, v[2:3], s[{P_DBG}:{P_DBG+1}] offset:32 sc1
    s_mov_b64 exec, -1
    g_nononce:""")
    srd(a, R_GW, P_GW, 0, 528 * 512)
    srd(a, R_VW, P_VW, 0, 256 * 512)
    a(f"""v_lshrrev_b32 v{T0}, 3, v{LANE}
    v_and_b32 v{T1}, 2, v{T0}
    v_and_b32 v{T2}, 7, v{LANE}
    v_xor_b32 v{T1}, v{T1}, v{T2}
    v_lshlrev_b32 v{T1}, 4, v{T1}
    v_lshl_add_u32 v{WA0}, v{T0}, 9, v{T1}
    v_xor_b32 v{WA1}, 64, v{WA0}
    s_lshl_b32 s{S_X}, s{S_G}, 12
    s_lshl_b32 s{S_Y}, s{S_S}, 7
    s_add_u32 s{S_X}, s{S_X}, s{S_Y}
    s_lshl_b32 s{S_Z}, s{S_G}, 10""")
    srd(a, R_UW, P_UW, 0, 256 * 512)
    srd(a, R_X, P_X, 0, L.N * 512)
    a(f"""v_lshrrev_b32 v{T0}, 5, v{LANE}
    v_xor_b32 v{T1}, v{T0}, v{LANE}
    v_lshlrev_b32 v{XA_}, 4, v{T1}
    s_mul_i32 s{SXB}, s{S_R}, {L.RN*512}
    s_add_u32 s{SXB}, s{SXB}, s{S_Z}
    s_mul_i32 s{SXL}, s{S_G}, {XP}
    s_barrier""")
    for m, (sr, row0) in enumerate(((R_GW, 256), (R_VW, 0), (R_GW, 0), (R_UW, 0))):
        for j in range(4):
            a(f"""s_add_u32 m0, s{S_Z}, {WM[m] + j*8192}
            s_add_u32 s{S_Y}, s{S_X}, {j*32768 + row0*512}
            buffer_load_dwordx4 v{WA0 + m % 2}, s[{sr}:{sr+3}], s{S_Y} offen lds""")
    vm = []
    def xdma(st):
        for j in range(2):
            a(f"""s_add_u32 m0, s{SXL}, {(X0 if st == 0 else XT + (st-1)*XST) + j*8*XP}
            s_add_u32 s{S_Y}, s{SXB}, {st*16384 + j*8192}
            buffer_load_dwordx4 v{XA_}, s[{R_X}:{R_X+3}], s{S_Y} offen lds""")
            vm.append("x%d" % st)
    xdma(0)
    arrive(a, C_I)
    a.c("weight-fragment address: lane = (kh, m, r, c)")
    a(f"""v_bfe_u32 v{T1}, v{LANE}, 2, 2
    v_lshl_add_u32 v{T1}, v{T0}, 3, v{T1}
    v_lshlrev_b32 v{BA}, 7, v{T1}
    v_bfe_u32 v{T1}, v{LANE}, 3, 2
    s_and_b32 s{S_X}, s{S_G}, 3
    v_xor_b32 v{T1}, s{S_X}, v{T1}
    v_lshl_add_u32 v{BA}, v{T1}, 5, v{BA}
    v_and_b32 v{T1}, 1, v{LANE}
    v_lshl_add_u32 v{BA}, v{T1}, 4, v{BA}
    v_bfe_u32 v{T2}, v{LANE}, 1, 1
    v_lshl_add_u32 v{BA}, v{T2}, 3, v{BA}
    v_bfe_u32 v{T2}, v{LANE}, 4, 1
    v_lshl_add_u32 v{BA}, v{T2}, 15, v{BA}
    s_cmp_ge_u32 s{S_G}, 4
    s_cselect_b32 s{S_Y}, {WM[2]}, {WM[0]}
    v_add_u32 v{BA}, s{S_Y}, v{BA}
    s_mov_b32 s{S_Y}, {RING + 2*STG}
    s_cselect_b32 s{S_Y}, {XAU}, s{S_Y}
    s_mov_b32 s{SD1}, {-2*STG}
    s_cselect_b32 s{SD1}, {STG}, s{SD1}
    s_lshl_b32 s{S_X}, s{S_X}, 6
    s_add_u32 s{S_Y}, s{S_Y}, s{S_X}
    v_xor_b32 v{T2}, v{T0}, v{T1}
    v_lshlrev_b32 v{T2}, 4, v{T2}
    v_lshl_add_u32 v{XR}, v{T1}, 9, v{T2}
    v_bfe_u32 v{T1}, v{LANE}, 1, 4
    v_mul_u32_u24 v{T1}, {XP}, v{T1}
    v_add_u32 v{XR}, v{XR}, v{T1}
    v_add_u32 v{XR}, {X0}, v{XR}
    v_and_b32 v{T1}, 31, v{LANE}
    v_mul_u32_u24 v{T1}, {RS}, v{T1}
    v_lshl_add_u32 v{T1}, v{T0}, 5, v{T1}
    v_add_u32 v{OA}, s{S_Y}, v{T1}
    v_lshl_add_u32 v{SA}, v{LANE}, 4, s{S_Z}
    v_lshrrev_b32 v{T1}, 8, v{SA}
    v_lshl_add_u32 v{CA}, v{T1}, 4, v{SA}
    v_add_u32 v{CA}, {RING}, v{CA}
    s_mul_i32 s{S_X}, s{S_S}, {L.TBL_SL}
    s_mul_i32 s{S_Y}, s{S_R}, {L.RN*256}
    s_add_u32 s{S_X}, s{S_X}, s{S_Y}""")
    srd(a, R_O, P_WS, L.WS_TBL, L.RN * 256, soff=S_X)
    common_srds(a)
    a(f"s_mov_b32 s{SP0}, 0x07060100\ns_mov_b32 s{SP1}, 0x07060302")
    if "gprio" in OPT: a(f"s_setprio {OPT['gprio']}")
    a("s_waitcnt vmcnt(2)")
    stamp(a, 1)
    sync(a, C_W, T0, S_X)
    for ks in range(16):
        for hf in range(2):
            r = BF + ks*4 + hf*2
            a(f"ds_read_b64_tr_b16 v[{r}:{r+1}], v{BA} offset:{ks*2048 + hf*512}")
    a(f"s_mul_i32 s{S_X}, s{S_G}, {32*L.CHS*32}")
    srd(a, R_UW, P_WS, L.WS_EA, 32 * L.CHS * 32, soff=S_X)
    a("s_waitcnt vmcnt(0)")
    sync(a, C_F, T0, S_X)
    stamp(a, 2)
    NX0 = int(OPT.get("nx0", 2))
    ds = []
    def dsop(tag, ins): a(ins); ds.append(tag)
    def dscnt(tag):
        i = max(k for k, t in enumerate(ds) if t == tag)
        return min(15, len(ds) - 1 - i)
    def dswait(tag): a(f"s_waitcnt lgkmcnt({dscnt(tag)})")
    def vmwait(tag):
        i = max(k for k, t in enumerate(vm) if t == tag)
        return len(vm) - 1 - i
    def rdA(n):
        st, ks = divmod(n, 16)
        if n == 16: a(f"v_add_u32 v{XR}, {(XT - X0) & 0xffffffff:#x}, v{XR}")
        r = AR + (n % 4) * 4
        dsop(("A", n), f"ds_read_b128 v[{r}:{r+3}], v{XR} offset:{max(st-1, 0)*XST + ks*32}")
    K = 0x8000 + (L.HVEXP << 23)
    def pack(st):
        x = ACC_ + (st % 2) * 16; h = x + 8
        o = [f"v_mul_f32 v{x+r}, 0xbfb8aa3b, v{x+r}" for r in range(8)]
        o += [f"v_add_u32 v{h+r}, {K:#x}, v{h+r}" for r in range(8)]
        o += [f"v_cvt_pk_bf16_f32 v{x+r}, v{x+r}, v{x+r+1}" for r in range(0, 8, 2)]
        o += [f"v_sub_u32_sdwa v{h+r}, v{h+r}, v{x+(r&6)} dst_sel:DWORD dst_unused:UNUSED_PAD src0_sel:DWORD src1_sel:WORD_{r&1}" for r in range(8)]
        o += [f"v_perm_b32 v{h+r}, v{h+r}, v{x+(r&6)}, s{SP1 if r&1 else SP0}" for r in range(8)]
        return o
    def wr(st):
        h = ACC_ + (st % 2) * 16 + 8
        for q in range(2): dsop(("W", st), f"ds_write_b128 v{OA}, v[{h+4*q}:{h+4*q+3}] offset:{16*q}")
        if st < 4: a(f"v_add_u32 v{OA}, " + (f"s{SD1}" if st % 3 == 0 else f"{STG}") + f", v{OA}")
    def copy_rd(st, r=CO): dsop(("C", st), f"ds_read_b128 v[{r}:{r+3}], v{CA} offset:{((st+2)%3)*STG}")
    def copy_st(st, r=CO):
        dswait(("C", st))
        a(f"s_mov_b32 s{S_X}, {st*8192}\nbuffer_store_dwordx4 v[{r}:{r+3}], v{SA}, s[{R_O}:{R_O+3}], s{S_X} offen{SC}")
        vm.append(("st", st))
    for n in range(3): rdA(n)
    for st in range(1, 1 + NX0): xdma(st)
    if "xwait" in OPT:
        a("s_waitcnt vmcnt(0)"); sync(a, 80, T0, S_X)
        if "sleepg" in OPT: a("s_sleep 100\ns_sleep 100")
    stamp(a, 3)
    pend = []
    ARAT, RDAT = int(OPT.get("arat", 8)), int(OPT.get("rdat", 11))
    for n in range(80):
        st, ks = divmod(n, 16)
        c_off = C_X + 4 * st
        if ks == ARAT:
            if st < 4: a(f"s_waitcnt vmcnt({vmwait('x%d' % (st+1))})")
            a("s_mov_b64 exec, 1")
            dsop(("S", st), f"ds_add_u32 v{CB}, v{ONE} offset:{c_off}")
            a("s_mov_b64 exec, -1")
            if st + 1 + NX0 <= 4: xdma(st + 1 + NX0)
        if ks == RDAT: dsop(("R", st), f"ds_read_b32 v{CV}, v{CB} offset:{c_off}")
        if ks == 13:
            dswait(("R", st))
            a(f"v_readfirstlane_b32 s{S_X}, v{CV}")
            if "nospin" not in OPT: spin(a, c_off, CV, S_X, sl=int(OPT.get("gsl", 0)))
            if st == 1: stamp(a, 4)
            if st == 3: stamp(a, 5)
            if st >= 2: copy_rd(st - 2)
        if ks == 15 and st >= 2: copy_st(st - 2)
        if n + 3 < 80: rdA(n + 3)
        dswait(("A", n))
        r = AR + (n % 4) * 4
        c = ACC_ + (st % 2) * 16
        a(f"v_mfma_f32_32x32x16_bf16 v[{c}:{c+15}], v[{BF+ks*4}:{BF+ks*4+3}], v[{r}:{r+3}], " + ("0" if ks == 0 else f"v[{c}:{c+15}]"))
        if ks >= 4:
            for _ in range(4):
                if pend:
                    x_ = pend.pop(0)
                    if "nopack" not in OPT: a(x_)
        if ks == 14 and st >= 1:
            assert not pend
            wr(st - 1)
        if ks == 15: pend = pack(st)
    a("s_nop 11")
    for x in pend: a(x)
    wr(4)
    stamp(a, 6)
    sync(a, C_E, T0, S_X)
    copy_rd(3); copy_rd(4, AR)
    dsop("I", f"ds_read_b32 v{T0}, v{CB} offset:{C_IDX}")
    copy_st(3); copy_st(4, AR)
    EX = 64
    def drain(k):
        sync(a, C_D, T0, S_X, wait=False)
        a(f"""s_cmp_lg_u32 s{S_X}, 8
        s_cbranch_scc1 g_noarr{k}
        s_lshl_b32 s{S_Y}, s{S_S}, 6
        s_mov_b32 s{S_Q0}, 1
        s_atomic_add s{S_Q0}, s[{P_DBG}:{P_DBG+1}], s{S_Y} glc
        s_mov_b32 s{S_X}, 0""")
        spin(a, C_S3, T0, S_X)
        a(f"""ds_read_b64 v[{T0}:{T1}], v{CB} offset:{C_TAG}
        s_waitcnt lgkmcnt(0)
        s_cmp_lg_u32 s{S_Q0}, 63
        s_cbranch_scc1 g_noarr{k}
        v_readfirstlane_b32 s{TAG}, v{T0}
        v_readfirstlane_b32 s{TAG+1}, v{T1}
        s_lshl_b32 s{S_X}, s{S_S}, 13
        s_add_u32 s{S_X}, s{S_X}, {WS_GO:#x}
        s_add_u32 s{S_Y}, s{S_X}, 8192
        g_bc{k}:
        s_atomic_swap_x2 s[{TAG}:{TAG+1}], s[{P_WS}:{P_WS+1}], s{S_X}
        s_add_u32 s{S_X}, s{S_X}, 128
        s_cmp_lt_u32 s{S_X}, s{S_Y}
        s_cbranch_scc1 g_bc{k}
        g_noarr{k}:""")
    def dma(k):
        if k % 4 == 0: a(f"s_add_u32 m0, s{S_Z}, {1024*k}\ns_movk_i32 s{S_N1}, {1024*k}")
        a(f"buffer_load_dwordx4 v{EX+k}, s[{R_UW}:{R_UW+3}], s{S_N1} offen offset:{1024*(k%4)}{SC} lds")
    a(f"""s_setprio 0
    s_waitcnt lgkmcnt(0)
    v_readfirstlane_b32 s{S_NT}, v{T0}
    s_cmp_ge_u32 s{S_NT}, 8
    s_cbranch_scc1 g_idxok
    s_waitcnt vmcnt(0)""")
    drain(0)
    a(f"s_mov_b32 s{S_X}, 0")
    spin(a, C_IDX, T0, S_X, sl=1)
    a(f"""g_idxok:
    v_and_b32 v{T2}, 62, v{LANE}
    s_add_u32 s{S_X}, s{S_Z}, {MARK2}
    v_add_u32 v{T2}, s{S_X}, v{T2}
    v_lshl_add_u32 v{T3}, s{S_G}, 3, v{CB}
    ds_read_b64 v[{CO}:{CO+1}], v{T3} offset:{C_BT}""")
    for k in range(NK): a(f"ds_read_u16 v{EX+k}, v{T2} offset:{64*k}")
    a(f"v_lshlrev_b32 v{T1}, 4, v{LANE}")
    sync(a, C_G2, T0, S_X, wait=False)
    a(f"v_readfirstlane_b32 s{S_BASE}, v{CO}\nv_readfirstlane_b32 s{S_T}, v{CO+1}")
    for k in range(NK): a(f"v_lshl_add_u32 v{EX+k}, v{EX+k}, 5, v{T1}")
    a(f"s_lshl_b32 s{S_Z}, s{S_BASE}, 5\ns_add_u32 s{S_Z}, s{S_Z}, {EA}")
    spin(a, C_G2, T0, S_X)
    stamp(a, 7)
    N1 = 4
    a(f"""s_cmp_lt_u32 s{S_NT}, 8
    s_cbranch_scc1 g_dma0
    s_cmp_gt_u32 s{S_T}, {32*(N1-1)}
    s_cbranch_scc0 g_few""")
    for k in range(N1): dma(k)
    a(f"s_waitcnt vmcnt({N1})\ns_branch g_dr\ng_few:\ns_waitcnt vmcnt(0)\ng_dr:")
    drain(1)
    a(f"s_cmp_gt_u32 s{S_T}, {32*(N1-1)}\ns_cbranch_scc1 g_dma{N1}")
    for k in range(NK):
        a(f"g_dma{k}:\ns_cmp_gt_u32 s{S_T}, {32*k}\ns_cbranch_scc0 g_dmadone")
        dma(k)
    a("g_dmadone:")
    stamp(a, 8)
    consts(a)

def rd_ad(t): return [f"ds_read_b128 v[{AD+4*q}:{AD+4*q+3}], v{PROW} offset:{ROW + 64*t + 16*q}" for q in range(4)]
def gathers(g): return [f"buffer_load_dword v{g+j}, v{AD+slot_of_reg(j)}, s[{R_TBL}:{R_TBL+3}], 0 offen{SC}" for j in range(16)]
def rd_eidx(t): return [f"ds_read_u16 v{EIDX}, v{PEAD} offset:{EAD + 32*t}"]
def rd_a():
    return [f"v_lshl_add_u32 v{EADDR}, v{EIDX}, 5, v{KHC}",
            f"s_mov_b64 exec, s[{S_E0}:{S_E0+1}]", f"ds_read_b128 v[{A0}:{A0+3}], v{EADDR}",
            f"s_mov_b64 exec, s[{S_E1}:{S_E1+1}]", f"ds_read_b128 v[{A1}:{A1+3}], v{EADDR}", "s_mov_b64 exec, -1"]
def rd_xa(x):
    o = [f"s_mov_b32 m0, s{S_RO}"]
    for k in range(4):
        o += [f"s_bitcmp1_b32 s{S_FR}, {k}", f"ds_read_addtid_b32 v{x+k} offset:{XAU}", f"s_cselect_b32 s{S_X}, {RS}, 0"]
        o += [f"s_add_u32 m0, m0, s{S_X}" if k < 3 else f"s_add_u32 s{S_RO}, m0, s{S_X}"]
    o += [f"s_lshr_b64 s[{S_FR}:{S_FR+1}], s[{S_FR}:{S_FR+1}], 4"]
    return o
def bigs(d, x):
    D = f"v[{d}:{d+15}]"
    return [f"v_mfma_f32_32x32x16_bf16 {D}, v[{A0}:{A0+3}], v[{B0}:{B0+3}], 0",
            f"v_mfma_f32_32x32x16_bf16 {D}, v[{A1}:{A1+3}], v[{B1}:{B1+3}], {D}",
            f"v_mfma_f32_32x32x16_bf16 {D}, v[{A2}:{A2+3}], v[{x}:{x+3}], {D}"]
def smalls(d, g):
    return [f"v_mfma_f32_16x16x32_bf16 v[{d+4*q}:{d+4*q+3}], v[{SEL}:{SEL+3}], v[{g+4*q}:{g+4*q+3}], v[{d+4*q}:{d+4*q+3}]" for q in range(4)]
def pk(d, h):
    X = lambda i: f"v[{d+2*i}:{d+2*i+1}]"; H = lambda i: f"v[{h+2*i}:{h+2*i+1}]"; C = f"v[{CC}:{CC+1}]"
    return [f"v_pk_fma_f32 {X(i)}, {X(i)}, {C}, {C} clamp" for i in range(4)] + [
        f"v_pk_mul_f32 {H(0)}, {H(0)}, {X(1)}", f"v_pk_mul_f32 {H(2)}, {H(2)}, {X(3)}",
        f"v_pk_fma_f32 {H(0)}, {H(1)}, {X(0)}, {H(0)}", f"v_pk_fma_f32 {H(2)}, {H(3)}, {X(2)}, {H(2)}",
        f"v_pk_mul_f32 {X(0)}, {X(0)}, {X(1)}", f"v_pk_mul_f32 {X(2)}, {X(2)}, {X(3)}",
        f"v_pk_mul_f32 {X(1)}, {X(0)}, {X(2)}", f"v_pk_mul_f32 {X(3)}, {H(0)}, {X(2)}",
        f"v_pk_fma_f32 {X(3)}, {H(2)}, {X(0)}, {X(3)}"]

def mainloop(a):
    em = lambda ls: [a(x) for x in ls]
    a(f"""k_join:
    s_lshl_b32 s{S_X}, s{S_W}, 3
    v_mov_b32 v{T0}, s{S_X}
    v_lshlrev_b32 v{T2}, 4, v{LANE}
    s_mov_b32 s{S_E0}, 0x0f0f0f0f
    s_mov_b32 s{S_E0+1}, 0x0f0f0f0f
    s_mov_b32 s{S_E1}, 0xf0f0f0f0
    s_mov_b32 s{S_E1+1}, 0xf0f0f0f0
    s_mov_b32 s{S_FIRST}, 1
    s_waitcnt lgkmcnt(0)""")
    stamp(a, 9)
    a("s_barrier")
    a(f"""ds_read_b64 v[0:1], v{T0} offset:{BND}
    ds_read_b64 v[2:3], v{T0} offset:{BND+8}
    ds_read_b32 v4, v{ACC} offset:{BND+132}
    ds_read_b128 v[{B0}:{B0+3}], v{T2} offset:{BW}
    ds_read_b128 v[{B1}:{B1+3}], v{T2} offset:{BW+1024}
    s_waitcnt lgkmcnt(2)
    v_readfirstlane_b32 s{S_SL}, v4
    v_readfirstlane_b32 s{S_N0}, v0
    v_readfirstlane_b32 s{S_Q0}, v1
    v_readfirstlane_b32 s{S_N1}, v2
    v_readfirstlane_b32 s{S_NQ}, v3
    v_lshlrev_b32 v{PROW}, 2, v1
    v_lshl_add_u32 v{PEAD}, v1, 1, v{PEAD}
    s_sub_u32 s{S_NQ}, s{S_NQ}, s{S_Q0}
    s_lshr_b32 s{S_NQ}, s{S_NQ}, 2
    s_lshr_b32 s{S_Q0}, s{S_Q0}, 2
    s_mul_i32 s{S_FO}, s{S_N0}, {RS}
    s_cmp_gt_u32 s{S_SL}, {SLOTCAP}
    s_cselect_b32 s{S_NQ}, 0, s{S_NQ}""")
    a(f"""k2_block:
    s_cmp_eq_u32 s{S_NQ}, 0
    s_cbranch_scc1 k2_blockend
    s_setprio 3
    v_add_u32 v{T2}, s{S_Q0}, v{LANE}""")
    em(rd_ad(0))
    a(f"ds_read_u8 v{T3}, v{T2} offset:{FLG}")
    em(rd_eidx(0))
    a(f"""s_min_u32 s{S_Y}, s{S_NQ}, 64
    s_add_u32 s{S_NT}, s{S_Y}, 3
    s_lshr_b32 s{S_NT}, s{S_NT}, 2
    s_mov_b32 s{S_RO}, s{S_FO}
    v_cmp_gt_u32 vcc, s{S_Y}, v{LANE}
    s_sub_u32 s{S_Y}, s{S_Y}, 1
    s_waitcnt lgkmcnt(0)""")
    em(gathers(G[0])); em(rd_ad(1))
    a(f"""v_cmp_ne_u32 s[{S_FF}:{S_FF+1}], 0, v{T3}
    s_and_b64 s[{S_FF}:{S_FF+1}], s[{S_FF}:{S_FF+1}], vcc
    s_mov_b64 s[{S_FR}:{S_FR+1}], s[{S_FF}:{S_FF+1}]
    s_bitset0_b64 s[{S_FR}:{S_FR+1}], s{S_Y}
    s_cmp_eq_u32 s{S_FIRST}, 0
    s_cbranch_scc1 k2_nobar
    s_waitcnt vmcnt(16)
    s_barrier
    s_mov_b32 s{S_FIRST}, 0
    k2_nobar:""")
    stamp(a, 10)
    a("s_waitcnt lgkmcnt(0)")
    em(rd_a()); em(rd_eidx(1)); em(rd_xa(XA[0]))
    em(gathers(G[1])); em(rd_ad(2))
    a("s_waitcnt lgkmcnt(4)")
    em(bigs(Dd[0], XA[0]))
    em(rd_a()); em(rd_eidx(2)); em(rd_xa(XA[1]))
    a("s_waitcnt vmcnt(16)")
    em(smalls(Dd[0], G[0]))
    a("s_nop 7")
    stamp(a, 11)
    a("k2_loop:")
    for u in range(2):
        c, n = u, 1 - u
        e = [f"v_exp_f32 v{Dd[c]+j}, v{Dd[c]+j}" for j in range(16)]
        b = bigs(Dd[n], XA[n])
        a("s_waitcnt lgkmcnt(4)")
        em([b[0]] + e[0:4] + [b[1]] + e[4:8] + ["s_waitcnt lgkmcnt(0)", b[2]] + e[8:12])
        em(rd_a()); em(rd_eidx(3 + u)); em(e[12:16])
        em(inter(pk(Dd[c], G[c]), pk(Dd[c] + 8, G[c] + 8)))
        a(f"s_cmp_le_u32 s{S_NT}, 2\ns_cbranch_scc1 k2_noload{u}")
        em(gathers(G[c]))
        em(rd_ad(3 + u))
        a(f"s_waitcnt vmcnt(16)\nk2_loaded{u}:")
        rc = [f"v_rcp_f32 v{Dd[c]+8*(k//2)+2+(k%2)}, v{Dd[c]+8*(k//2)+2+(k%2)}" for k in range(4)]
        em(inter(smalls(Dd[n], G[n]), rc))
        for k in range(4):
            a(f"""v_fmac_f32 v{ACC}, v{Dd[c]+8*(k//2)+6+(k%2)}, v{Dd[c]+8*(k//2)+2+(k%2)}
            s_bitcmp1_b32 s{S_FF}, {k}
            s_cbranch_scc0 k2_nofl{u}_{k}
            s_mov_b32 m0, s{S_FO}
            v_fmac_f32 v{XA[c]+k}, v{ACC}, v{CC}
            v_mov_b32 v{ACC}, 0
            ds_write_addtid_b32 v{XA[c]+k} offset:{XAU}
            s_add_u32 s{S_FO}, s{S_FO}, {RS}
            k2_nofl{u}_{k}:""")
        em(rd_xa(XA[c]))
        a(f"s_lshr_b64 s[{S_FF}:{S_FF+1}], s[{S_FF}:{S_FF+1}], 4")
        if u == 1: a(f"v_add_u32 v{PROW}, 128, v{PROW}\nv_add_u32 v{PEAD}, 64, v{PEAD}")
        a(f"""s_sub_u32 s{S_NT}, s{S_NT}, 1
        s_cmp_gt_u32 s{S_NT}, {PRIO[0]}
        s_cbranch_scc1 {'k2_mid' if u == 0 else 'k2_loop'}
        s_setprio 2
        s_cmp_gt_u32 s{S_NT}, {PRIO[1]}
        s_cbranch_scc1 {'k2_mid' if u == 0 else 'k2_loop'}
        s_setprio 1
        s_cmp_gt_u32 s{S_NT}, {PRIO[2]}
        s_cbranch_scc1 {'k2_mid' if u == 0 else 'k2_loop'}
        s_setprio 0
        s_cmp_eq_u32 s{S_NT}, 0""")
        a("s_cbranch_scc1 k2_loopend\nk2_mid:" if u == 0 else "s_cbranch_scc0 k2_loop")
    a(f"""k2_loopend:
    s_cmp_le_u32 s{S_NQ}, 64
    s_cbranch_scc1 k2_epi
    s_sub_u32 s{S_NQ}, s{S_NQ}, 64
    s_add_u32 s{S_Q0}, s{S_Q0}, 64
    s_waitcnt lgkmcnt(0)
    s_nop 7
    s_branch k2_block""")
    for u in range(2): a(f"k2_noload{u}:\ns_waitcnt vmcnt(0)\ns_branch k2_loaded{u}")
    a(f"""k2_blockend:
    s_waitcnt vmcnt(0)
    s_barrier""")

def epilogue(a):
    E = 0; CW = 64; C2 = 66
    a("k2_epi:")
    stamp(a, 12)
    a(f"""v_lshrrev_b32 v{T0}, 3, v{LANE}
    v_and_b32 v{T1}, 7, v{LANE}
    v_add_u32 v{T0}, s{S_N0}, v{T0}
    v_mul_u32_u24 v{T2}, {RS}, v{T0}
    v_lshl_add_u32 v{T2}, v{T1}, 5, v{T2}
    v_lshlrev_b32 v{T3}, 9, v{T0}
    v_lshl_add_u32 v{T3}, v{T1}, 4, v{T3}
    s_mul_i32 s{S_X}, s{S_R}, {L.RN*512}
    s_lshl_b32 s{S_Y}, s{S_S}, 7
    s_add_u32 s{S_X}, s{S_X}, s{S_Y}
    s_waitcnt lgkmcnt(0)
    v_mov_b32 v{CW}, 0xb5b8aa3b
    v_mov_b32 v{CW+1}, 0xb5b8aa3b
    v_mov_b32 v{C2}, 0x49800000
    v_mov_b32 v{C2+1}, 0x49800000
    k2_eloop:
    s_cmp_ge_u32 s{S_N0}, s{S_N1}
    s_cbranch_scc1 k2_done
    ds_read_b128 v[{E}:{E+3}], v{T2} offset:{XAU}
    ds_read_b128 v[{E+4}:{E+7}], v{T2} offset:{XAU+16}
    v_cmp_gt_u32 vcc, s{S_N1}, v{T0}
    v_add_u32 v{T0}, 8, v{T0}
    v_add_u32 v{T2}, {8*RS}, v{T2}
    s_waitcnt lgkmcnt(0)""")
    for i in range(4): a(f"v_pk_mul_f32 v[{E+8+2*i}:{E+9+2*i}], v[{E+2*i}:{E+2*i+1}], v[{CW}:{CW+1}]")
    for i in range(8): a(f"v_exp_f32 v{E+8+i}, v{E+8+i}")
    for i in range(4): a(f"v_pk_fma_f32 v[{E+8+2*i}:{E+9+2*i}], v[{E+8+2*i}:{E+9+2*i}], v[{C2}:{C2+1}], v[{C2}:{C2+1}]")
    for i in range(8): a(f"v_rcp_f32 v{E+8+i}, v{E+8+i}")
    for i in range(4): a(f"v_pk_mul_f32 v[{E+2*i}:{E+2*i+1}], v[{E+2*i}:{E+2*i+1}], v[{E+8+2*i}:{E+9+2*i}]")
    for i in range(4): a(f"v_cvt_pk_bf16_f32 v{E+16+i}, v{E+2*i}, v{E+2*i+1}")
    a(f"""s_mov_b64 exec, vcc
    buffer_store_dwordx4 v[{E+16}:{E+19}], v{T3}, s[{R_OUT}:{R_OUT+3}], s{S_X} offen{OPT.get('outsc', ' sc1')}
    s_mov_b64 exec, -1
    v_add_u32 v{T3}, 0x1000, v{T3}
    s_add_u32 s{S_N0}, s{S_N0}, 8
    s_branch k2_eloop
    k2_done:""")

def kernel(a):
    a(f".globl {NAME}\n.p2align 8\n.type {NAME},@function\n{NAME}:")
    a(f"""s_cmp_ge_u32 s2, 256
    s_cbranch_scc1 k_end
    s_load_dwordx16 s[4:19], s[0:1], 0
    s_load_dwordx4 s[20:23], s[0:1], 64""")
    if STAMPS: a(f"s_memrealtime s[{ST0}:{ST0+1}]")
    a(f"""v_lshrrev_b32 v1, 6, v0
    s_and_b32 s{S_S}, s2, 3
    v_readfirstlane_b32 s{S_W}, v1
    s_lshr_b32 s{S_R}, s2, 3
    s_bfe_u32 s{S_X}, s2, 0x10002
    s_lshl_b32 s{S_X}, s{S_X}, 5
    s_add_u32 s{S_R}, s{S_R}, s{S_X}
    s_mul_i32 s{S_X}, s{S_R}, {L.RN}
    s_sub_u32 s{S_NV}, {L.N}, s{S_X}
    s_min_u32 s{S_NV}, s{S_NV}, {L.RN}
    v_and_b32 v{LANE}, 63, v0
    v_mov_b32 v{TID}, v0
    v_mov_b32 v{CB}, {CNT}
    v_mov_b32 v{ONE}, 1""")
    if STAMPS:
        for j in range(1, 16): a(f"s_mov_b64 s[{ST0+2*j}:{ST0+2*j+1}], 0")
    a(f"""s_cmp_ge_u32 s{S_W}, 8
    s_waitcnt lgkmcnt(0)
    s_cbranch_scc1 g_role""")
    s_role(a); g_role(a); mainloop(a); epilogue(a)
    if STAMPS:
        a("s_waitcnt vmcnt(0)"); stamp(a, 13); stamp_flush(a)
    a("k_end:\ns_endpgm")

if __name__ == "__main__":
    a = Asm()
    kernel(a)
    hdr = open("gather_scatter__edge_featured_mpnn_egc__graph.s.ref").read().split("; Override launch")[0]
    out = hdr + f"""; @launch grid=(256,1,1) block=(1024,1,1) lds={LDSZ}
.amdgcn_target "amdgcn-amd-amdhsa--gfx950"
.text
""" + a.text() + f""".section .rodata,"a"
.p2align 6
.amdhsa_kernel {NAME}
  .amdhsa_next_free_vgpr 128
  .amdhsa_next_free_sgpr 102
  .amdhsa_accum_offset 128
  .amdhsa_group_segment_fixed_size 0
  .amdhsa_kernarg_size 80
  .amdhsa_user_sgpr_count 2
  .amdhsa_user_sgpr_kernarg_segment_ptr 1
  .amdhsa_system_sgpr_workgroup_id_x 1
  .amdhsa_float_denorm_mode_32 3
.end_amdhsa_kernel
"""
    open(sys.argv[1], "w").write(out)
```

```python
import sys
from dsl import *
import layout as L

OPT = {}
for x in sys.argv[2:]:
    if x.startswith("--"):
        k, _, val = x[2:].partition("=")
        OPT[k] = val
STAMPS = "stamps" in OPT
PRIO = [int(y) for y in OPT.get("prio", "4,2,1").split(",")]
NAME = "gather_scatter__edge_featured_mpnn_egc__graph_kernel"
SC = " sc1"

SLOTCAP = 3136
RS = 272
STG = 32 * RS
XP = 1056
XST = 16 * XP
XAU = 0
WB = 3 * XST
HIST = WB
QST = HIST + 1024
FLG = QST + 1024
BND = FLG + 1024
EAD = BND + 256
BW = EAD + (SLOTCAP + 64) * 2
ROW = BW + 2048
EA = ROW + (SLOTCAP + 64) * 4
XS = [0, XST, 2 * XST, EA, EA + XST]
REORD = WB + 65536; REID = REORD + 20480
RING = REORD + 23040
CNT = 163328
H1 = 163584
NE = 128
EA_E = CNT - 8 * NE * 32
LCAP = (EA_E - EA) // 32
assert ROW + 400 < 65536 and EA % 32 == 0 and XS[4] + XST <= REORD and RING + 2 * STG <= CNT and EA_E >= REORD + 8192
MARK = REORD
LDSZ = 163840
C_S1, C_S2, C_S3, C_S4, C_W, C_FP, C_X, C_E, C_REC, C_OVF, C_WA, C_FA, C_D, C_I, C_TAG, C_PE, C_AE, C_R2, C_L, C_X0 = 0, 4, 8, 12, 16, 20, 24, 44, 48, 52, 56, 60, 64, 68, 72, 80, 84, 88, 92, 96
WS_GO = 0x1740000
NGO = int(OPT.get('ngo', 8))
NJ = 7
NK = 2 * NJ
SPIN = 0x40000

P_X, P_EA, P_SRC, P_DST, P_UW, P_VW, P_GW, P_OUT, P_DBG, P_WS = 4, 6, 8, 10, 12, 14, 16, 18, 20, 22
S_R, S_S, S_W, S_NV = 24, 25, 26, 27
R_TBL, R_OUT = 28, 32
RA, RB, RC, RD, RE = 36, 40, 44, 48, 52
S_X, S_Y, S_Z, S_T, S_BASE, S_SL, S_N0, S_N1, S_Q0, S_NQ, S_NT, S_FO, S_RO, S_FIRST = range(56, 70)
S_G = 3
S_M = [4 + 2 * j for j in range(7)]
TAG = 18
S_FF, S_FR, S_E0, S_E1 = 8, 10, 12, 14
ST0 = 70

CLK = [int(y) for y in OPT.get("clk", "11,12").split(",")]
def stamp(a, j):
    if not STAMPS: return
    if "only" in OPT and str(j) not in OPT["only"].split(","): return
    a(f"s_memrealtime s[{ST0+2*j}:{ST0+2*j+1}]")
    if j in CLK: a(f"s_memtime s[{ST0+28+2*CLK.index(j)}:{ST0+29+2*CLK.index(j)}]")
    a("s_waitcnt lgkmcnt(0)")
def stamp_flush(a):
    if not STAMPS: return
    a(f"""s_lshl_b32 s56, s2, 4
    s_add_u32 s56, s56, s{S_W}
    s_lshl_b32 s56, s56, 7
    s_add_u32 s56, s56, {L.WS_STAMP:#x}
    s_add_u32 s58, s{P_WS}, s56
    s_addc_u32 s59, s{P_WS+1}, 0
    s_mov_b64 exec, 1
    v_mov_b32 v0, 0""")
    for j in range(16):
        a(f"v_mov_b32 v2, s{ST0+2*j}\nv_mov_b32 v3, s{ST0+2*j+1}\nglobal_store_dwordx2 v0, v[2:3], s[58:59] offset:{8*j}\ns_nop 1")

G = [0, 16]; Dd = [32, 48]; AD = 64; A0 = 80; A1 = 84; B0 = 88; B1 = 92; SEL = 96; A2 = 100
XA = [104, 108]; CC = 112; ACC = 114; EIDX = 115; EADDR = 116; PROW = 117; PEAD = 118; KHC = 119
LANE = 120; TID = 121
T0, T1, T2, T3 = 122, 123, 124, 125
CB, ONE = 126, 127

def slot_of_reg(j):
    g, i, ab = j // 8, (j % 8) // 2, j % 2
    return (2 * g + ab) * 4 + i

def consts(a):
    a.c("SEL (16x16x32 A operand): lane(row=l%16,kq=l/16): 1.0 at element 2*(row%4) iff kq==row/4")
    a(f"""v_lshrrev_b32 v{T0}, 4, v{LANE}
    v_bfe_u32 v{T1}, v{LANE}, 2, 2
    v_and_b32 v{T2}, 3, v{LANE}
    v_cmp_eq_u32 vcc, v{T0}, v{T1}
    v_mov_b32 v{T3}, 0x3f80
    v_mov_b32 v{CC}, 0x30800000
    v_cndmask_b32 v{T2}, 7, v{T2}, vcc""")
    for k in range(4):
        a(f"v_cmp_eq_u32 vcc, {k}, v{T2}\nv_mov_b32 v{A0+2*k}, 0\nv_mov_b32 v{A0+2*k+1}, 0\nv_cndmask_b32 v{SEL+k}, 0, v{T3}, vcc")
    a.c("A2 (32x32x16 A operand): row=8a+4h+b, reg j=4a+b, quad=2*(j/8)+(j%2); 1.0 at element 2*quad iff kh==h")
    a(f"""v_lshrrev_b32 v{T0}, 5, v{LANE}
    v_bfe_u32 v{T1}, v{LANE}, 2, 1
    v_cmp_eq_u32 vcc, v{T0}, v{T1}
    v_bfe_u32 v{T1}, v{LANE}, 4, 1
    v_and_b32 v{T2}, 1, v{LANE}
    v_lshl_add_u32 v{PEAD}, v{T1}, 1, v{T2}
    v_cndmask_b32 v{T2}, 7, v{PEAD}, vcc""")
    fill = [f"v_bfe_u32 v{T1}, v{LANE}, 3, 1", f"v_lshl_add_u32 v{PEAD}, v{PEAD}, 1, v{T1}",
            f"v_bfe_u32 v{T1}, v{LANE}, 1, 1", f"v_lshl_add_u32 v{PEAD}, v{PEAD}, 1, v{T1}",
            f"v_lshlrev_b32 v{PEAD}, 1, v{PEAD}", f"v_lshlrev_b32 v{KHC}, 4, v{T0}",
            f"v_mov_b32 v{ACC}, 0", f"v_mov_b32 v{CC+1}, 0x30800000"]
    for k in range(4):
        a(f"v_cmp_eq_u32 vcc, {k}, v{T2}\n{fill[2*k]}\n{fill[2*k+1]}\nv_cndmask_b32 v{A2+k}, 0, v{T3}, vcc")

def minq(a, MQ):
    a(f"v_lshlrev_b32 v{T0}, 2, v{LANE}\nv_sub_u32 v{T0}, s{S_NV}, v{T0}")
    for k in range(4):
        a(f"v_cmp_lt_i32 vcc, {k}, v{T0}\ns_nop 1\nv_cndmask_b32 v{MQ+k}, 0, 4, vcc")

def hist_scan(a, HD, MQ, SP, INC, between=None):
    a(f"v_lshlrev_b32 v{T2}, 4, v{LANE}\nds_read_b128 v[{HD}:{HD+3}], v{T2} offset:{HIST}")
    if between: between()
    a("s_waitcnt lgkmcnt(0)")
    for k in range(4): a(f"v_add_u32 v{HD+k}, 3, v{HD+k}")
    for k in range(4): a(f"v_and_b32 v{HD+k}, -4, v{HD+k}")
    for k in range(4): a(f"v_max_u32 v{HD+k}, v{HD+k}, v{MQ+k}")
    a(f"""v_add_u32 v{HD+1}, v{HD}, v{HD+1}
    v_add_u32 v{HD+2}, v{HD+1}, v{HD+2}
    v_add_u32 v{HD+3}, v{HD+2}, v{HD+3}
    v_mov_b32 v{INC}, v{HD+3}""")
    scan(a, "v_add_u32", [INC])
    a(f"""v_sub_u32 v{SP}, v{INC}, v{HD+3}
    v_readlane_b32 s{S_SL}, v{INC}, 63
    v_add_u32 v{SP+1}, v{SP}, v{HD}
    v_add_u32 v{SP+2}, v{SP}, v{HD+1}
    v_add_u32 v{SP+3}, v{SP}, v{HD+2}
    ds_write_b128 v{T2}, v[{SP}:{SP+3}] offset:{QST}""")

_lab = [0]
def spin(a, off, tv, ts, n=8, sl=0):
    _lab[0] += 1; k = _lab[0]
    a(f"""sp{k}:
    s_cmp_ge_u32 s{ts}, {n}
    s_cbranch_scc1 sp{k}e
    {"s_sleep " + str(sl) if sl else ""}
    ds_read_b32 v{tv}, v{CB} offset:{off}
    s_waitcnt lgkmcnt(0)
    v_readfirstlane_b32 s{ts}, v{tv}
    s_branch sp{k}
    sp{k}e:""")
def sync(a, off, tv, ts, wait=True, n=8, sl=0):
    a(f"""s_mov_b64 exec, 1
    ds_add_rtn_u32 v{tv}, v{CB}, v{ONE} offset:{off}
    s_mov_b64 exec, -1
    s_waitcnt lgkmcnt(0)
    v_readfirstlane_b32 s{ts}, v{tv}
    s_add_u32 s{ts}, s{ts}, 1""")
    if wait: spin(a, off, tv, ts, n, sl)

def common_srds(a):
    a(f"s_mul_i32 s{S_X}, s{S_S}, {L.TBL_SL}")
    srd(a, R_TBL, P_WS, L.WS_TBL, L.TBL_SL, stride=4, w3=0x800000, soff=S_X)
    srd(a, R_OUT, P_OUT, 0, L.N * 512)

def arrive(a, off):
    a(f"s_mov_b64 exec, 1\nds_add_u32 v{CB}, v{ONE} offset:{off}\ns_mov_b64 exec, -1")

def s_role(a):
    DS, SR, RG, ID, RKK, CN, INC, GRN = 2, 4, 6, 8, 10, 12, 13, 14
    EV = 20
    CW, NON = 36, 38
    ZV = 40
    LA, GA, CA_ = 16, 17, 18
    M1 = 60
    order = OPT.get("order", "s")
    def pre():
        if "touch" in OPT:
            a(f"""s_cmp_lg_u32 s{S_W}, 7
            s_cbranch_scc1 s_notouch
            s_mul_i32 s{S_X}, s{S_R}, {L.RN*512}
            s_load_dword s{S_Q0}, s[{P_X}:{P_X+1}], s{S_X}
            s_load_dword s{S_Q0}, s[{P_OUT}:{P_OUT+1}], s{S_X}
            s_mul_i32 s{S_X}, s2, {L.CH*32}
            s_load_dword s{S_Q0}, s[{P_EA}:{P_EA+1}], s{S_X}
            s_load_dword s{S_Q0}, s[{P_DBG}:{P_DBG+1}], 0x80
            s_mul_i32 s{S_X}, s{S_S}, {L.TBL_SL}""")
            for k in range(2): a(f"s_load_dword s{S_Q0}, s[{P_WS}:{P_WS+1}], s{S_X}\ns_add_u32 s{S_X}, s{S_X}, {L.TBL_SL//2 - 64}")
            a(f"s_load_dword s{S_Q0}, s[{P_WS}:{P_WS+1}], s{S_X}")
            for off in (L.WS_EA + 0x1ff000, L.WS_EA + 0x3ff000, L.WS_EA + 0x5ff000, L.WS_ID + 0xff000):
                a(f"s_mov_b32 s{S_X}, {off:#x}\ns_load_dword s{S_Q0}, s[{P_WS}:{P_WS+1}], s{S_X}")
            a("s_notouch:")
        if "code" in OPT:
            a(f"""s_getpc_b64 s[{S_Z}:{S_Z+1}]
            s_mul_i32 s{S_X}, s{S_W}, {13*128}""")
            for k in range(13): a(f"s_load_dword s{S_Q0}, s[{S_Z}:{S_Z+1}], s{S_X}\ns_add_u32 s{S_X}, s{S_X}, 128")
    def ld_ids():
        a(f"""buffer_load_dword v{DS}, v{T0}, s[{RA}:{RA+3}], 0 offen
        buffer_load_dword v{DS+1}, v{T0}, s[{RA}:{RA+3}], 0 offen offset:2048
        buffer_load_dword v{SR}, v{T0}, s[{RB}:{RB+3}], 0 offen
        buffer_load_dword v{SR+1}, v{T0}, s[{RB}:{RB+3}], 0 offen offset:2048""")
    def ld_ea():
        a(f"""s_movk_i32 s{S_X}, 16384
        buffer_load_dwordx4 v[{EV}:{EV+3}], v{LA}, s[{RC}:{RC+3}], 0 offen
        buffer_load_dwordx4 v[{EV+4}:{EV+7}], v{LA}, s[{RC}:{RC+3}], 0 offen offset:16
        buffer_load_dwordx4 v[{EV+8}:{EV+11}], v{LA}, s[{RC}:{RC+3}], s{S_X} offen
        buffer_load_dwordx4 v[{EV+12}:{EV+15}], v{LA}, s[{RC}:{RC+3}], s{S_X} offen offset:16""")
    a(f"""v_mov_b32 v{T2}, 0
    v_mov_b32 v{T3}, 0
    v_lshl_add_u32 v{T1}, v{LANE}, 3, v{CB}
    ds_write_b64 v{T1}, v[{T2}:{T3}]""")
    if order == "g": a("s_waitcnt lgkmcnt(0)\ns_barrier"); pre()
    a(f"s_mul_i32 s{S_X}, s2, {L.CH*4}")
    srd(a, RA, P_DST, 0, L.CH * 4, soff=S_X)
    srd(a, RB, P_SRC, 0, L.CH * 4, soff=S_X)
    a(f"v_lshlrev_b32 v{T0}, 2, v0\nv_lshlrev_b32 v{LA}, 5, v0")
    if order in ("s", "d"): ld_ids()
    if order == "d": a("s_waitcnt lgkmcnt(0)\ns_barrier"); pre()
    a(f"s_mul_i32 s{S_X}, s2, {L.CH*32}")
    srd(a, RC, P_EA, 0, L.CH * 32, soff=S_X)
    if order == "s":
        ld_ea(); a("s_waitcnt lgkmcnt(0)\ns_barrier"); pre()
    else:
        a(f"s_mov_b32 s{S_X}, 0")
        spin(a, C_I, T1, S_X, n=4, sl=1)
        if order == "g": ld_ids()
        ld_ea()
    a(f"s_mul_i32 s{S_X}, s2, {L.CHS*32}")
    srd(a, RD, P_WS, L.WS_EA, L.CH * 32, soff=S_X)
    a(f"s_mul_i32 s{S_X}, s2, {L.CHS*4}")
    srd(a, RE, P_WS, L.WS_ID, L.CHS * 4, soff=S_X)
    common_srds(a)
    a(f"""v_cmp_gt_u32 vcc, {L.CH-512}, v0
    s_mov_b64 s[{M1}:{M1+1}], vcc
    v_lshl_add_u32 v{T1}, v{LANE}, 2, v{CB}
    v_lshlrev_b32 v{GA}, 4, v0
    v_add_u32 v{LA}, {REORD}, v{GA}
    v_lshrrev_b32 v{T0}, 5, v{LANE}
    v_and_b32 v{T2}, 31, v{LANE}
    v_lshlrev_b32 v{T2}, 1, v{T2}
    v_lshl_add_u32 v{CA_}, v{T0}, 12, v{T2}
    s_movk_i32 s{S_Y}, {-L.RN}
    s_mov_b32 s{S_Z}, {H1}
    s_waitcnt vmcnt(6)""")
    stamp(a, 1)
    for k in range(2): a(f"v_mul_u32_u24 v{RG+k}, 13358, v{DS+k}")
    for k in range(2): a(f"v_lshrrev_b32 v{RG+k}, 21, v{RG+k}")
    for k in range(2): a(f"v_mad_i32_i24 v{DS+k}, v{RG+k}, s{S_Y}, v{DS+k}")
    for k in range(2): a(f"v_lshl_add_u32 v{RG+k}, v{RG+k}, 2, s{S_Z}")
    a(f"""ds_add_rtn_u32 v{RKK}, v{RG}, v{ONE}
    s_mov_b64 exec, s[{M1}:{M1+1}]
    ds_add_rtn_u32 v{RKK+1}, v{RG+1}, v{ONE}""")
    sync(a, C_S1, T0, S_X)
    a(f"ds_read_b32 v{CN}, v{T1} offset:{H1-CNT}")
    srd(a, RA, P_GW, 0, 528 * 512)
    a(f"s_waitcnt lgkmcnt(0)\nv_mov_b32 v{INC}, v{CN}")
    scan(a, "v_add_u32", [INC])
    a(f"""v_sub_u32 v{INC}, v{INC}, v{CN}
    ds_bpermute_b32 v{T2}, v{RG}, v{INC}
    ds_bpermute_b32 v{T3}, v{RG+1}, v{INC}
    v_lshl_or_b32 v{GRN}, v{CN}, 10, v{INC}
    s_mov_b32 s{S_X}, {REORD}
    s_mov_b32 s{S_Y}, {REID}
    s_waitcnt vmcnt(4)
    v_lshl_or_b32 v{ID}, v{SR}, 8, v{DS}
    v_lshl_or_b32 v{ID+1}, v{SR+1}, 8, v{DS+1}
    s_waitcnt lgkmcnt(0)
    v_add_u32 v{DS}, v{T2}, v{RKK}
    v_add_u32 v{DS+1}, v{T3}, v{RKK+1}
    v_lshl_add_u32 v{RG}, v{DS}, 5, s{S_X}
    v_lshl_add_u32 v{RG+1}, v{DS+1}, 5, s{S_X}
    v_lshl_add_u32 v{DS}, v{DS}, 2, s{S_Y}
    v_lshl_add_u32 v{DS+1}, v{DS+1}, 2, s{S_Y}
    s_lshl_b32 s{S_X}, s2, 9""")
    srd(a, RB, P_WS, L.WS_OFF, 512, soff=S_X)
    a(f"""s_and_b32 s{S_T}, s{S_W}, 3
    s_lshl_b32 s{S_T}, s{S_T}, 10
    s_lshr_b32 s{S_Y}, s{S_W}, 2
    s_lshl_b32 s{S_Y}, s{S_Y}, 6
    s_add_u32 s{S_T}, s{S_T}, s{S_Y}
    s_lshl_b32 s{S_Y}, s{S_S}, 7
    s_add_u32 s{S_T}, s{S_T}, s{S_Y}
    s_add_u32 s{S_T}, s{S_T}, {512*512}""")
    a(f"v_mov_b32 v{ZV+4}, 0\ns_waitcnt vmcnt(0)")
    stamp(a, 2)
    a(f"""ds_write_b128 v{RG}, v[{EV}:{EV+3}]
    ds_write_b128 v{RG}, v[{EV+4}:{EV+7}] offset:16
    ds_write_b32 v{DS}, v{ID}
    s_mov_b64 exec, s[{M1}:{M1+1}]
    ds_write_b128 v{RG+1}, v[{EV+8}:{EV+11}]
    ds_write_b128 v{RG+1}, v[{EV+12}:{EV+15}] offset:16
    ds_write_b32 v{DS+1}, v{ID+1}""")
    sync(a, C_S2, T0, S_X)
    for k in range(3): a(f"ds_read_b128 v[{EV+4*k}:{EV+4*k+3}], v{LA} offset:{8192*k}")
    a(f"ds_read_b128 v[{EV+12}:{EV+15}], v{LA} offset:{REID-REORD}")
    a(f"s_movk_i32 s{S_Y}, 8192\ns_movk_i32 s{S_Z}, 16384")
    for k, so in enumerate(("0", f"s{S_Y}", f"s{S_Z}")):
        a(f"s_waitcnt lgkmcnt({3-k})\nbuffer_store_dwordx4 v[{EV+4*k}:{EV+4*k+3}], v{GA}, s[{RD}:{RD+3}], {so} offen{SC}")
    a(f"""s_waitcnt lgkmcnt(0)
    buffer_store_dwordx4 v[{EV+12}:{EV+15}], v{GA}, s[{RE}:{RE+3}], 0 offen{SC}
    global_load_dwordx2 v[{NON}:{NON+1}], v{ZV+4}, s[{P_DBG}:{P_DBG+1}] offset:32 sc1
    buffer_load_ushort v{CW}, v{CA_}, s[{RA}:{RA+3}], s{S_T} offen
    buffer_load_ushort v{CW+1}, v{CA_}, s[{RA}:{RA+3}], s{S_T} offen offset:512""")
    stamp(a, 3)
    GR, LEN, PRE, DEL, PA = 2, 4, 5, 6, 7
    MKB, IOT = 8, 48
    IDX, IDW, HA, RK, QV = 20, 28, 64, 72, 20
    HD, SP, INC2 = 56, 60, 12
    MA1 = 13
    MQ = 52
    consts(a)
    minq(a, MQ)
    a(f"""s_lshr_b32 s{S_X}, s2, 3
    s_add_u32 s{S_X}, s{S_X}, {L.N}
    s_lshl_b32 s{S_X}, s{S_X}, 8""")
    for k in range(4): a(f"v_mov_b32 v{ZV+k}, s{S_X}\nv_mov_b32 v{ZV+4+k}, 0")
    a(f"s_mul_i32 s{S_X}, s{S_W}, {32*L.CHS*32}")
    srd(a, RD, P_WS, L.WS_EA, 32 * L.CHS * 32, soff=S_X)
    a(f"s_mul_i32 s{S_X}, s{S_W}, {32*L.CHS*4}")
    srd(a, RE, P_WS, L.WS_ID, 32 * L.CHS, stride=4, soff=S_X)
    srd(a, RC, P_WS, L.WS_OFF, L.NCH * L.NR * 8)
    a(f"""s_and_b32 s{S_X}, s{S_W}, 3
    s_lshl_b32 s{S_X}, s{S_X}, 2
    s_lshr_b32 s{S_Y}, s{S_W}, 2
    s_lshl_b32 s{S_Y}, s{S_Y}, 10
    s_add_u32 s{S_X}, s{S_X}, s{S_Y}
    v_lshl_add_u32 v{T1}, v{LANE}, 4, s{S_X}
    v_lshlrev_b32 v{T2}, 3, v{LANE}
    v_mul_u32_u24 v{IOT}, 0x80008, v{LANE}
    v_add_u32 v{IOT}, 0x10000, v{IOT}
    v_add_u32 v{IOT+1}, 0x20002, v{IOT}
    v_add_u32 v{IOT+2}, 0x40004, v{IOT}
    v_add_u32 v{IOT+3}, 0x60006, v{IOT}
    v_mul_u32_u24 v{DEL}, {L.CHS}, v{LANE}
    v_lshlrev_b32 v{PA}, 9, v{LANE}
    v_mov_b32 v{GR}, 0
    s_lshl_b32 s{S_N0}, s{S_W}, 10
    s_add_u32 s{S_N0}, s{S_N0}, {MARK}
    v_lshl_add_u32 v{MA1}, v{LANE}, 1, s{S_N0}
    s_lshl_b32 s{S_Z}, s{S_W}, 14
    s_lshl_b32 s{S_Y}, s{S_R}, 3
    s_add_u32 s{S_Z}, s{S_Z}, s{S_Y}
    s_mov_b32 s{S_Y}, {SPIN}
    s_waitcnt vmcnt(0)
    s_nonce:
    v_readfirstlane_b32 s{TAG+1}, v{NON+1}
    v_readfirstlane_b32 s{TAG}, v{NON}
    s_sub_u32 s{S_Y}, s{S_Y}, 1
    s_cbranch_scc1 s_nonceok
    s_cmp_lg_u32 s{TAG+1}, 0
    s_cbranch_scc1 s_nonceok
    global_load_dwordx2 v[{NON}:{NON+1}], v{ZV+4}, s[{P_DBG}:{P_DBG+1}] offset:32 sc1
    s_waitcnt vmcnt(0)
    s_branch s_nonce
    s_nonceok:
    s_and_b32 s{S_N1}, s{TAG+1}, 0xfff
    v_lshl_or_b32 v{GRN}, s{S_N1}, 20, v{GRN}
    v_mov_b32 v{GRN+1}, s{TAG}
    s_mov_b64 exec, 1
    ds_write_b64 v{CB}, v[{NON}:{NON+1}] offset:{C_TAG}""")
    sync(a, C_S3, T0, S_X, wait=False)
    a(f"""s_cmp_lg_u32 s{S_X}, 8
    s_cbranch_scc1 s_nopub
    buffer_store_dwordx2 v[{GRN}:{GRN+1}], v{T2}, s[{RB}:{RB+3}], 0 offen{SC}
    s_nopub:""")
    stamp(a, 4)
    a(f"""v_lshlrev_b32 v{CW}, 16, v{CW}
    v_lshlrev_b32 v{CW+1}, 16, v{CW+1}
    v_mul_f32 v{CW}, 0xbfb8aa3b, v{CW}
    v_mul_f32 v{CW+1}, 0xbfb8aa3b, v{CW+1}
    v_cvt_pk_bf16_f32 v{CW}, v{CW}, v{CW+1}""")
    a(f"v_mov_b32 v{CA_}, v{T1}\nv_mov_b32 v{GRN}, v{CW}")
    spin(a, C_S3, T0, S_X)
    a(f"ds_write_b128 v{LA}, v[{ZV+4}:{ZV+7}]")
    if int(OPT.get("pdel", 0)): a(f"s_sleep {int(OPT.get('pdel', 0))}")
    if "pgate" in OPT:
        a(f"s_mov_b32 s{S_X}, 0")
        spin(a, {"fa": C_FA, "x0": C_X0, "0": C_X, "1": C_X+4, "2": C_X+8}[OPT["pgate"]], T0, S_X, n=4, sl=2)
    stamp(a, 5)
    if "sprio" in OPT: a(f"s_setprio {OPT['sprio']}")
    a(f"""s_mov_b32 s{S_Y}, {SPIN}
    s_mov_b32 exec_hi, 0
    s_poll:
    buffer_load_dwordx2 v[{GR}:{GR+1}], v{PA}, s[{RC}:{RC+3}], s{S_Z} offen{SC}
    s_waitcnt vmcnt(0)
    v_lshrrev_b32 v{T0}, 20, v{GR}
    v_cmp_ne_u32 vcc, s{TAG}, v{GR+1}
    v_cmp_ne_u32 s[{S_M[0]}:{S_M[0]+1}], s{S_N1}, v{T0}
    s_or_b64 vcc, vcc, s[{S_M[0]}:{S_M[0]+1}]
    s_cbranch_scc0 s_pollok
    s_mov_b64 exec, vcc
    s_sleep {int(OPT.get("psl", 4))}
    s_sub_u32 s{S_Y}, s{S_Y}, 1
    s_cbranch_scc0 s_poll
    v_mov_b32 v{GR}, 0
    s_pollok:
    s_mov_b64 exec, -1""")
    stamp(a, 6)
    a(f"""v_bfe_u32 v{LEN}, v{GR}, 10, 10
    v_and_b32 v{GR}, 0x3ff, v{GR}
    v_mov_b32 v{INC2}, v{LEN}
    v_add_u32 v{DEL}, v{DEL}, v{GR}""")
    a("s_nop 0")
    for m in ("row_shr:1", "row_shr:2", "row_shr:4", "row_shr:8"):
        a(f"v_add_u32_dpp v{INC2}, v{INC2}, v{INC2} {m} row_mask:0xf bank_mask:0xf bound_ctrl:0\ns_nop 1")
    a(f"""v_add_u32_dpp v{INC2}, v{INC2}, v{INC2} row_bcast:15 row_mask:0xa bank_mask:0xf
    v_cmp_lt_u32 vcc, 0, v{LEN}
    v_sub_u32 v{PRE}, v{INC2}, v{LEN}
    v_readlane_b32 s{S_T}, v{INC2}, 31
    v_sub_u32 v{DEL}, v{DEL}, v{PRE}
    v_lshl_add_u32 v{T0}, v{PRE}, 1, s{S_N0}
    v_subrev_u32 v{INC2}, {NE}, v{INC2}
    s_cmp_gt_u32 s{S_T}, {64*NJ}
    s_cselect_b64 exec, 0, vcc
    ds_write_b16 v{T0}, v{DEL}
    s_mov_b64 exec, -1
    ds_read_b128 v[{MKB}:{MKB+3}], v{LA}
    v_max_i32 v{INC2}, 0, v{INC2}
    s_mov_b32 exec_lo, 0x80000000
    s_mov_b32 exec_hi, 0
    ds_add_rtn_u32 v{T0}, v{CB}, v{INC2} offset:{C_REC}
    s_mov_b64 exec, -1
    s_waitcnt lgkmcnt(1)""")
    for k in range(4): a(f"v_pk_max_u16 v{MKB+k}, v{MKB+k}, v{MKB+k} op_sel:[0,0] op_sel_hi:[1,0]")
    for k in range(1, 4): a(f"v_pk_max_u16 v{MKB+k}, v{MKB+k}, v{MKB+k-1} op_sel:[0,1] op_sel_hi:[1,1]")
    a(f"v_lshrrev_b32 v{INC2}, 16, v{MKB+3}")
    scan(a, "v_max_u32", [INC2])
    a(f"""v_mov_b32 v{PRE}, 0
    s_waitcnt lgkmcnt(0)
    v_mov_b32_dpp v{PRE}, v{INC2} wave_shr:1 row_mask:0xf bank_mask:0xf
    v_readlane_b32 s{S_BASE}, v{T0}, 31""")
    for k in range(4): a(f"v_pk_max_u16 v{MKB+k}, v{MKB+k}, v{PRE} op_sel:[0,0] op_sel_hi:[1,0]")
    for k in range(4): a(f"v_pk_add_u16 v{HD+k}, v{MKB+k}, v{IOT+k}")
    a(f"ds_write_b128 v{LA}, v[{HD}:{HD+3}]")
    for j in range(NJ): a(f"ds_read_u16 v{IDX+j}, v{MA1} offset:{128*j}")
    a(f"ds_write_b128 v{LA}, v[{MKB}:{MKB+3}]")
    a.c("capacity guard")
    a(f"""s_add_u32 s{S_X}, s{S_BASE}, s{S_T}
    s_cmp_gt_u32 s{S_X}, {LCAP + NE}
    s_cselect_b32 s{S_T}, {64*NJ+1}, s{S_T}
    s_cmp_gt_u32 s{S_T}, {64*NJ}
    s_cbranch_scc0 s_fits
    s_mov_b32 s{S_T}, 0
    ds_write_b32 v{CB}, v{ONE} offset:{C_OVF}
    s_waitcnt lgkmcnt(0)
    s_fits:""")
    for j in range(NJ):
        a(f"s_sub_i32 s{S_X}, s{S_T}, {64*j}\nv_cmp_gt_i32 s[{S_M[j]}:{S_M[j]+1}], s{S_X}, v{LANE}")
    EX = 36
    S_ED = S_RO
    a(f"""v_and_b32 v{T2}, 62, v{LANE}
    v_add_u32 v{T2}, s{S_N0}, v{T2}
    v_lshlrev_b32 v{T1}, 4, v{LANE}
    s_waitcnt lgkmcnt(1)""")
    for j in range(NJ):
        a(f"s_mov_b64 exec, s[{S_M[j]}:{S_M[j]+1}]")
        if j >= 5: a("s_cbranch_execz s_idsdone")
        a(f"buffer_load_dword v{IDW+j}, v{IDX+j}, s[{RE}:{RE+3}], 0 idxen{SC}")
    a(f"""s_idsdone:
    s_mov_b64 exec, -1
    s_mov_b32 s{S_X}, 0""")
    for k in range(4): a(f"v_mov_b32 v{HD+k}, {(BW//32) * 0x10001:#x}")
    spin(a, C_FA, T0, S_X, n=4)
    a.c("LDS init of the list area")
    a(f"""ds_write_b32 v{CA_}, v{GRN} offset:{BW}
    v_add_u32 v{T0}, 8192, v{GA}
    ds_write_b128 v{GA}, v[{ZV}:{ZV+3}] offset:{ROW}
    v_cmp_gt_u32 vcc, {(BW-EAD)//16}, v0
    s_mov_b64 exec, vcc
    ds_write_b128 v{GA}, v[{HD}:{HD+3}] offset:{EAD}
    v_cmp_gt_u32 vcc, {(EA-ROW)//16-512}, v0
    s_mov_b64 exec, vcc
    ds_write_b128 v{T0}, v[{ZV}:{ZV+3}] offset:{ROW}
    v_cmp_gt_u32 vcc, {(EAD-HIST)//16}, v0
    s_mov_b64 exec, vcc
    ds_write_b128 v{GA}, v[{ZV+4}:{ZV+7}] offset:{HIST}""")
    arrive(a, C_L)
    a(f"""ds_read_b32 v{T0}, v{CB} offset:{C_PE}
    ds_read_b32 v{T3}, v{CB} offset:{C_L}""")
    for k in range(NK): a(f"ds_read_u16 v{EX+k}, v{T2} offset:{64*k}")
    a(f"""s_lshl_b32 s{S_NT}, s{S_W}, 12
    s_add_u32 s{S_NT}, s{S_NT}, {EA_E}
    s_waitcnt lgkmcnt(0)""")
    for k in range(NK): a(f"v_lshl_add_u32 v{EX+k}, v{EX+k}, 5, v{T1}")
    EW = int(OPT.get('ew', 2))
    def early(k0, k1, thr):
        a(f"s_mov_b32 m0, s{S_NT}\ns_mov_b32 s{S_ED}, 4")
        for k in range(k0, k1):
            if thr: a(f"s_waitcnt vmcnt({EW-1})")
            a(f"buffer_load_dwordx4 v{EX+k}, s[{RD}:{RD+3}], 0 offen offset:{1024*k}{SC} lds")
    stamp(a, 7)
    a(f"""v_readfirstlane_b32 s{S_ED}, v{T0}
    v_readfirstlane_b32 s{S_X}, v{T3}
    s_cmp_ge_u32 s{S_ED}, 4
    s_cbranch_scc0 s_noe1""")
    early(0, 2, False)
    a("s_waitcnt vmcnt(2)\ns_branch s_e1\ns_noe1:\ns_waitcnt vmcnt(0)\ns_e1:")
    spin(a, C_L, T0, S_X)
    stamp(a, 8)
    for j in range(NJ):
        a(f"v_lshlrev_b32_sdwa v{HA+j}, 2, v{IDW+j} dst_sel:DWORD dst_unused:UNUSED_PAD src0_sel:DWORD src1_sel:BYTE_0")
    for j in range(NJ):
        a(f"s_mov_b64 exec, s[{S_M[j]}:{S_M[j]+1}]")
        if j >= 5: a("s_cbranch_execz s_histdone")
        a(f"ds_add_rtn_u32 v{RK+j}, v{HA+j}, v{ONE} offset:{HIST}")
    a("s_histdone:")
    sync(a, C_S4, T0, S_X)
    def btw():
        for j in range(NJ): a(f"v_and_b32 v{IDW+j}, 0x3fff00, v{IDW+j}")
        a(f"""s_add_u32 s{S_X}, s{S_BASE}, {EA//32 - NE}
        s_lshr_b32 s{S_Y}, s{S_NT}, 5
        v_add_u32 v{T0}, s{S_X}, v{LANE}
        v_add_u32 v{PRE}, s{S_Y}, v{LANE}
        v_lshlrev_b32 v{T1}, 2, v0
        v_and_b32 v{T1}, 0x3fc, v{T1}""")
    hist_scan(a, HD, MQ, SP, INC2, btw)
    for j in range(NJ): a(f"ds_read_b32 v{QV+j}, v{HA+j} offset:{QST}")
    a(f"""ds_read_b32 v{T3}, v{T1} offset:{QST+4}
    s_lshl_b32 s{S_Z}, s{S_W}, 1
    s_add_u32 s{S_Z}, s{S_Z}, 1
    s_mul_i32 s{S_X}, s{S_SL}, s{S_Z}
    s_add_u32 s{S_X}, s{S_X}, 15""")
    BV = 8
    for t in range(2):
        a(f"s_lshr_b32 s{S_Y}, s{S_X}, 4\ns_add_u32 s{S_X}, s{S_X}, s{S_SL}")
        for k in range(4):
            a(f"v_cmp_gt_u32 vcc, s{S_Y}, v{SP+k}")
            if k == 0: a(f"s_bcnt1_i32_b64 s{S_N0}, vcc")
            else: a(f"s_bcnt1_i32_b64 s{S_FO}, vcc\ns_add_u32 s{S_N0}, s{S_N0}, s{S_FO}")
        a(f"""v_mov_b32 v{BV+2*t}, s{S_N0}
        v_lshlrev_b32 v{BV+2*t+1}, 2, v{BV+2*t}
        ds_read_b32 v{BV+2*t+1}, v{BV+2*t+1} offset:{QST}""")
    a(f"""s_lshl_b32 s{S_X}, s{S_Z}, 3
    v_mov_b32 v{T1}, s{S_X}
    v_cmp_gt_u32 vcc, s{S_NV}, v0
    s_cmp_gt_u32 s{S_SL}, {SLOTCAP}
    s_cbranch_scc1 s_scatdone
    s_waitcnt lgkmcnt(2)
    v_lshrrev_b32 v{T3}, 2, v{T3}
    s_mov_b64 exec, vcc
    ds_write_b8 v{T3}, v{ONE} offset:{FLG-1}""")
    for j in range(NJ):
        a(f"s_mov_b64 exec, s[{S_M[j]}:{S_M[j]+1}]")
        if j >= 5: a("s_cbranch_execz s_scatdone")
        a(f"""v_add_lshl_u32 v{HA+j}, v{QV+j}, v{RK+j}, 2
        v_add_lshl_u32 v{QV+j}, v{QV+j}, v{RK+j}, 1
        v_add_u32 v{RK+j}, {64*j}, v{PRE if 64*j < NE else T0}
        ds_write_b32 v{HA+j}, v{IDW+j} offset:{ROW}
        ds_write_b16 v{QV+j}, v{RK+j} offset:{EAD}""")
    a(f"""s_scatdone:
    s_mov_b64 exec, 1
    s_waitcnt lgkmcnt(0)
    ds_write_b64 v{T1}, v[{BV}:{BV+1}] offset:{BND}
    ds_write_b64 v{T1}, v[{BV+2}:{BV+3}] offset:{BND+8}
    s_mov_b64 exec, -1
    s_cmp_ge_u32 s{S_ED}, 4
    s_cbranch_scc1 s_e2""")
    spin(a, C_PE, T0, S_ED, n=4, sl=1)
    early(0, 2, False)
    a(f"s_e2:")
    early(2, 4, True)
    a(f"s_mov_b32 s{S_X}, 0")
    spin(a, C_AE, T0, S_X, n=4, sl=1)
    a(f"""s_lshl_b32 s{S_Z}, s{S_BASE}, 5
    s_lshl_b32 s{S_Y}, s{S_T}, 1""")
    for k in range(4, NK):
        a(f"""s_sub_i32 s{S_X}, s{S_Y}, {64*k}
        v_cmp_gt_i32 vcc, s{S_X}, v{LANE}""")
        if k % 4 == 0: a(f"s_add_u32 m0, s{S_Z}, {EA + 1024*k - 32*NE}\ns_movk_i32 s{S_N1}, {1024*k}")
        a(f"""s_mov_b64 exec, vcc
        s_cbranch_execz s_ldone
        s_waitcnt vmcnt({EW-1})
        buffer_load_dwordx4 v{EX+k}, s[{RD}:{RD+3}], s{S_N1} offen offset:{1024*(k%4)}{SC} lds""")
    a(f"""s_ldone:
    s_mov_b64 exec, -1
    s_branch k_join""")

def g_role(a):
    R_X, R_GW, R_W1, R_O = RA, RB, RC, RE
    BF, ACC_, AR, CO = 0, 64, 96, 112
    XR, OA, CA, SA, CV, XA_ = T1, TID, T2, LANE, T0, T3
    WA0, WA1, BA, U0, U1, U2, WL = 96, 97, 98, 99, 100, 101, 102
    SP0, SP1, SD1, SXL, SXB, SMK, STG_ = S_T, S_BASE, S_SL, S_N0, S_N1, S_Q0, S_NQ
    a("g_role:")
    a(f"s_and_b32 s{S_G}, s{S_W}, 3")
    a.c("launch nonce: workgroup 0 publishes the clock")
    a(f"""s_sub_u32 s{S_X}, s{S_W}, 15
    s_or_b32 s{S_X}, s2, s{S_X}
    s_cbranch_scc1 g_nononce
    s_memrealtime s[{S_Z}:{S_Z+1}]
    v_mov_b32 v4, 0
    s_waitcnt lgkmcnt(0)
    s_bitset1_b32 s{S_Z+1}, 31
    v_mov_b32 v2, s{S_Z}
    v_mov_b32 v3, s{S_Z+1}
    s_mov_b64 exec, 1
    global_store_dwordx2 v4, v[2:3], s[{P_DBG}:{P_DBG+1}] offset:32 sc1
    s_mov_b64 exec, -1
    g_nononce:""")
    srd(a, R_GW, P_GW, 0, 528 * 512)
    a(f"""v_lshrrev_b32 v{U0}, 3, v{LANE}
    v_and_b32 v{U1}, 2, v{U0}
    v_and_b32 v{U2}, 7, v{LANE}
    v_xor_b32 v{U1}, v{U1}, v{U2}
    v_lshlrev_b32 v{U1}, 4, v{U1}
    v_lshl_add_u32 v{WA0}, v{U0}, 9, v{U1}
    v_xor_b32 v{WA1}, 64, v{WA0}
    s_lshl_b32 s{S_X}, s{S_G}, 12
    s_lshl_b32 s{S_Y}, s{S_S}, 7
    s_add_u32 s{S_X}, s{S_X}, s{S_Y}
    s_lshl_b32 s{S_Z}, s{S_G}, 10
    v_lshrrev_b32 v{U0}, 5, v{LANE}
    v_xor_b32 v{U1}, v{U0}, v{LANE}
    v_lshlrev_b32 v{XA_}, 4, v{U1}
    s_cmp_ge_u32 s{S_W}, 12
    s_cbranch_scc1 a_pro""")
    vm = []
    def xdma(st):
        for j in range(4):
            a(f"""s_add_u32 m0, s{SXL}, {XS[st] + j*4*XP}
            s_add_u32 s{S_Y}, s{SXB}, {st*16384 + j*4096}
            buffer_load_dwordx4 v{XA_}, s[{R_X}:{R_X+3}], s{S_Y} offen lds""")
            vm.append("x%d" % st)
    def addrs(P):
        a.c("weight-fragment address: lane = (kh, m, r, c)")
        a(f"""v_bfe_u32 v{U1}, v{LANE}, 2, 2
        v_lshl_add_u32 v{U1}, v{U0}, 3, v{U1}
        v_lshlrev_b32 v{BA}, 7, v{U1}
        v_bfe_u32 v{U1}, v{LANE}, 3, 2
        v_xor_b32 v{U1}, s{S_G}, v{U1}
        v_lshl_add_u32 v{BA}, v{U1}, 5, v{BA}
        v_and_b32 v{U1}, 1, v{LANE}
        v_lshl_add_u32 v{BA}, v{U1}, 4, v{BA}
        v_bfe_u32 v{U2}, v{LANE}, 1, 1
        v_lshl_add_u32 v{BA}, v{U2}, 3, v{BA}
        v_bfe_u32 v{U2}, v{LANE}, 4, 1
        v_lshl_add_u32 v{BA}, v{U2}, 15, v{BA}
        v_add_u32 v{BA}, {WB}, v{BA}
        s_mov_b32 s{SD1}, {-STG if P else STG}
        s_mov_b32 s{SMK}, {15 if P else 255}
        s_mov_b32 s{STG_}, {4 if P else 68}
        s_lshl_b32 s{S_Y}, s{S_G}, 6
        s_add_u32 s{S_Y}, s{S_Y}, {RING if P else XAU}
        v_xor_b32 v{U2}, v{U0}, v{U1}
        v_lshlrev_b32 v{U2}, 4, v{U2}
        v_lshl_add_u32 v{XR}, v{U1}, 9, v{U2}
        v_bfe_u32 v{U1}, v{LANE}, 1, 4
        v_mul_u32_u24 v{U1}, {XP}, v{U1}
        v_add_u32 v{XR}, v{XR}, v{U1}
        v_and_b32 v{U1}, 31, v{LANE}
        v_mul_u32_u24 v{U1}, {RS}, v{U1}
        v_lshl_add_u32 v{U1}, v{U0}, 5, v{U1}
        v_add_u32 v{OA}, s{S_Y}, v{U1}
        v_lshl_add_u32 v{SA}, v{LANE}, 4, s{S_Z}
        v_lshrrev_b32 v{U1}, 8, v{SA}
        v_lshl_add_u32 v{CA}, v{U1}, 4, v{SA}
        v_add_u32 v{CA}, {RING}, v{CA}
        s_mul_i32 s{S_X}, s{S_S}, {L.TBL_SL}
        s_mul_i32 s{S_Y}, s{S_R}, {L.RN*256}
        s_add_u32 s{S_X}, s{S_X}, s{S_Y}""")
        srd(a, R_O, P_WS, L.WS_TBL, L.RN * 256 if P else 0, soff=S_X)
        common_srds(a)
        a(f"s_mov_b32 s{SP0}, 0x07060100\ns_mov_b32 s{SP1}, 0x07060302")
    def frags():
        for ks in range(16):
            for hf in range(2):
                r = BF + ks*4 + hf*2
                a(f"ds_read_b64_tr_b16 v[{r}:{r+1}], v{BA} offset:{ks*2048 + hf*512}")
    srd(a, R_W1, P_VW, 0, 256 * 512)
    srd(a, R_X, P_X, 0, L.N * 512)
    a(f"""s_mul_i32 s{SXB}, s{S_R}, {L.RN*512}
    s_add_u32 s{SXB}, s{SXB}, s{S_Z}
    s_mul_i32 s{SXL}, s{S_G}, {XP}
    s_barrier""")
    def x1(st, j):
        a(f"""s_add_u32 m0, s{SXL}, {XS[st] + j*4*XP}
        s_add_u32 s{S_Y}, s{SXB}, {st*16384 + j*4096}
        buffer_load_dwordx4 v{XA_}, s[{R_X}:{R_X+3}], s{S_Y} offen lds""")
        vm.append("x%d" % st); vm2.append((st, j))
    vm2 = []
    WAE = True
    XI = OPT.get("xi", "i")
    if XI == "f":
        for j in range(4): x1(0, j)
    for m, (sr, row0) in enumerate(((R_GW, 256), (R_W1, 0))):
        for j in range(8):
            if XI == "i" and j % 4 == 0: x1(0, m*2 + j//4)
            a(f"""s_add_u32 m0, s{S_Z}, {WB + m*32768 + j*4096}
            s_add_u32 s{S_Y}, s{S_X}, {j*16384 + row0*512}
            buffer_load_dwordx4 v{WA0 + m}, s[{sr}:{sr+3}], s{S_Y} offen lds""")
            vm.append("w")
    addrs(True)
    a(f"s_mov_b32 s{S_X}, 0")
    spin(a, C_I, CV, S_X, n=4, sl=1)
    if XI == "l":
        for j in range(4): x1(0, j)
    for j in range(4): x1(1, j)
    a(f"s_waitcnt vmcnt({len(vm) - 1 - max(k for k, t in enumerate(vm) if t == 'w')})")
    stamp(a, 1)
    sync(a, C_W, CV, S_X, n=4)
    frags()
    arrive(a, C_FP)
    a("s_waitcnt vmcnt(4)")
    for j in range(4): x1(2, j)
    sync(a, C_X0, CV, S_X, n=4)
    if "pprio" in OPT: a(f"s_setprio {OPT['pprio']}")
    a("s_branch g_stream")
    a("a_pro:")
    srd(a, R_W1, P_UW, 0, 256 * 512)
    srd(a, R_X, P_X, 0, L.N * 512)
    if "wpf" in OPT:
        a.c("touch a distinct part of this slice's weights: wave g -> matrix g, rows 8q..8q+7 (map 4) / 16 rows (map 2)")
        nrow = 8 if OPT.get("map", "4") == "4" else 16
        a(f"""s_lshr_b32 s{S_Y}, s2, {3 if nrow == 8 else 4}
        s_mul_i32 s{S_Y}, s{S_Y}, {nrow*512}
        s_lshl_b32 s{SXB}, s{S_S}, 7
        s_add_u32 s{S_Y}, s{S_Y}, s{SXB}
        v_lshlrev_b32 v{U1}, 9, v{LANE}
        s_cmp_eq_u32 s{S_G}, 1
        s_cselect_b64 s[{RD}:{RD+1}], s[{P_VW}:{P_VW+1}], s[{P_GW}:{P_GW+1}]
        s_cmp_eq_u32 s{S_G}, 3
        s_cselect_b64 s[{RD}:{RD+1}], s[{P_UW}:{P_UW+1}], s[{RD}:{RD+1}]
        s_cmp_eq_u32 s{S_G}, 0
        s_cselect_b32 s{SXB}, {256*512}, 0
        s_add_u32 s{S_Y}, s{S_Y}, s{SXB}
        s_mov_b32 s{RD+2}, {512*512}
        s_mov_b32 s{RD+3}, 0x20000
        s_mov_b64 exec, {(1 << nrow) - 1:#x}
        buffer_load_dword v{WL}, v{U1}, s[{RD}:{RD+3}], s{S_Y} offen
        s_mov_b64 exec, -1""")
    a(f"""s_mul_i32 s{SXB}, s{S_R}, {L.RN*512}
    s_add_u32 s{SXB}, s{SXB}, s{S_Z}
    s_mul_i32 s{SXL}, s{S_G}, {XP}
    s_barrier""")
    if not WAE: spin(a, C_I, CV, SXB, n=4, sl=1)
    elif int(OPT.get("adel", 0)): a(f"s_sleep {OPT['adel']}")
    for m, sr in enumerate((R_GW, R_W1)):
        for j in range(8):
            r = BF + (m*8 + j) * 4
            a(f"""s_add_u32 s{S_Y}, s{S_X}, {j*16384}
            buffer_load_dwordx4 v[{r}:{r+3}], v{WA0 + m}, s[{sr}:{sr+3}], s{S_Y} offen""")
    if WAE: arrive(a, C_I)
    addrs(False)
    a(f"s_mov_b32 s{S_X}, 0\ns_waitcnt vmcnt(0)\nv_add_u32 v{WL}, {WB}, v{SA}")
    stamp(a, 1)
    spin(a, C_FP, CV, S_X, n=4, sl=1)
    for n in range(16): a(f"ds_write_b128 v{WL}, v[{BF+4*n}:{BF+4*n+3}] offset:{n*4096}")
    sync(a, C_WA, CV, S_X, n=4)
    frags()
    sync(a, C_FA, CV, S_X, n=4)
    nvm = len(vm)
    for st in (3, 4):
        for j in range(4): x1(st, j)
    del vm[nvm:]
    a(f"s_mov_b32 s{S_X}, 0")
    spin(a, C_X0, CV, S_X, n=4)
    a(f"v_mov_b32 v{ONE}, 16")
    if "aprio" in OPT: a(f"s_setprio {OPT['aprio']}")
    a("g_stream:")
    stamp(a, 2)
    ds = []
    def dsop(tag, ins): a(ins); ds.append(tag)
    def dscnt(tag):
        i = max(k for k, t in enumerate(ds) if t == tag)
        return min(15, len(ds) - 1 - i)
    def dswait(tag): a(f"s_waitcnt lgkmcnt({dscnt(tag)})")
    def vmwait(tag):
        i = max(k for k, t in enumerate(vm) if t == tag)
        return len(vm) - 1 - i
    def rdA(n):
        st, ks = divmod(n, 16)
        if n == 48: a(f"v_add_u32 v{XR}, {XS[3]}, v{XR}")
        r = AR + (n % 4) * 4
        dsop(("A", n), f"ds_read_b128 v[{r}:{r+3}], v{XR} offset:{(st % 3)*XST + ks*32}")
    K = 0x8000 + (L.HVEXP << 23)
    def pack(st):
        x = ACC_ + (st % 2) * 16; h = x + 8
        o = [f"v_mul_f32 v{x+r}, 0xbfb8aa3b, v{x+r}" for r in range(8)]
        o += [f"v_add_u32 v{h+r}, {K:#x}, v{h+r}" for r in range(8)]
        o += [f"v_cvt_pk_bf16_f32 v{x+r}, v{x+r}, v{x+r+1}" for r in range(0, 8, 2)]
        o += [f"v_sub_u32_sdwa v{h+r}, v{h+r}, v{x+(r&6)} dst_sel:DWORD dst_unused:UNUSED_PAD src0_sel:DWORD src1_sel:WORD_{r&1}" for r in range(8)]
        o += [f"v_perm_b32 v{h+r}, v{h+r}, v{x+(r&6)}, s{SP1 if r&1 else SP0}" for r in range(8)]
        return o
    def wr(st):
        h = ACC_ + (st % 2) * 16 + 8
        for q in range(2): dsop(("W", st), f"ds_write_b128 v{OA}, v[{h+4*q}:{h+4*q+3}] offset:{16*q}")
        if st < 4: a(f"v_add_u32 v{OA}, " + (f"s{SD1}" if st % 2 else f"{STG}") + f", v{OA}")
    def copy_rd(st, r=CO):
        for q in range(2): dsop(("C", st), f"ds_read_b128 v[{r+4*q}:{r+4*q+3}], v{CA} offset:{(st%2)*STG + q*16*RS}")
    def copy_st(st, r=CO):
        dswait(("C", st))
        for q in range(2):
            a(f"s_mov_b32 s{S_X}, {st*8192 + q*4096}\nbuffer_store_dwordx4 v[{r+4*q}:{r+4*q+3}], v{SA}, s[{R_O}:{R_O+3}], s{S_X} offen{SC}")
            vm.append(("st", st))
    def mspin(off):
        _lab[0] += 1; k = _lab[0]
        a(f"""sp{k}:
        v_readfirstlane_b32 s{S_X}, v{CV}
        s_and_b32 s{S_X}, s{S_X}, s{SMK}
        s_cmp_eq_u32 s{S_X}, s{STG_}
        s_cbranch_scc1 sp{k}e
        s_sleep 1
        ds_read_b32 v{CV}, v{CB} offset:{off}
        s_waitcnt lgkmcnt(0)
        s_branch sp{k}
        sp{k}e:""")
    def darr(tag, off):
        a("s_mov_b64 exec, 1")
        dsop(tag, f"ds_add_u32 v{CB}, v{ONE} offset:{off}")
        a("s_mov_b64 exec, -1")
    for n in range(3): rdA(n)
    stamp(a, 3)
    pend = []
    ARAT, RDAT = int(OPT.get("arat", 9)), int(OPT.get("rdat", 12))
    XA3, XA4 = int(OPT.get("xa3", 6)), int(OPT.get("xa4", 16 + 2))
    for n in range(80):
        st, ks = divmod(n, 16)
        c_off = C_X + 4 * st
        if n in (XA3, XA4):
            k_ = 0 if n == XA3 else 1
            a(f"""s_cmp_lt_u32 s{S_W}, 12
            s_cbranch_scc1 g_nx{k_}
            v_mov_b32 v{CV}, 0x100
            s_waitcnt vmcnt({4 - 4*k_})
            s_mov_b64 exec, 1
            ds_add_u32 v{CB}, v{CV} offset:{C_X + 8 + 4*k_}
            s_mov_b64 exec, -1
            g_nx{k_}:""")
        if n == 32: a(f"s_or_b32 s{SMK}, s{SMK}, 0xf00\ns_or_b32 s{STG_}, s{STG_}, 0x400")
        if n == 64: a(f"s_and_b32 s{STG_}, s{STG_}, 0xff")
        if ks == ARAT:
            if st < 2:
                a(f"s_cmp_ge_u32 s{S_W}, 12\ns_cbranch_scc1 g_nw{st}\ns_waitcnt vmcnt({vmwait('x%d' % (st+1))})\ng_nw{st}:")
            darr(("S", st), c_off)
        if ks == RDAT: dsop(("R", st), f"ds_read_b32 v{CV}, v{CB} offset:{c_off}")
        if ks == 13:
            dswait(("R", st))
            mspin(c_off)
            if st == 1: stamp(a, 4)
            if st == 3: stamp(a, 5)
            if st >= 2: copy_rd(st - 2)
            if st == 4: darr("R2", C_R2)
        if ks == 15 and st >= 2: copy_st(st - 2)
        if n + 3 < 80: rdA(n + 3)
        dswait(("A", n))
        r = AR + (n % 4) * 4
        c = ACC_ + (st % 2) * 16
        a(f"v_mfma_f32_32x32x16_bf16 v[{c}:{c+15}], v[{BF+ks*4}:{BF+ks*4+3}], v[{r}:{r+3}], " + ("0" if ks == 0 else f"v[{c}:{c+15}]"))
        if ks >= 4:
            for _ in range(4):
                if pend: a(pend.pop(0))
        if ks == 14 and st >= 1:
            assert not pend
            wr(st - 1)
        if ks == 15: pend = pack(st)
    a(f"ds_read_b32 v{CV}, v{CB} offset:{C_R2}\ns_mov_b32 s{SMK}, 15\ns_mov_b32 s{STG_}, 4\ns_nop 8")
    for x in pend: a(x)
    a("s_waitcnt lgkmcnt(0)")
    mspin(C_R2)
    wr(4)
    stamp(a, 6)
    a(f"""v_mov_b32 v{ONE}, 1
    s_cmp_ge_u32 s{S_W}, 12
    s_cbranch_scc0 p_tail""")
    arrive(a, C_AE)
    a("s_branch g_c\np_tail:")
    sync(a, C_E, CV, S_X, n=4)
    copy_rd(3); copy_rd(4, AR)
    copy_st(3); copy_st(4, AR)
    arrive(a, C_PE)
    a("g_c:\ns_setprio 0")
    stamp(a, 7)
    a(f"v_mbcnt_lo_u32_b32 v{LANE}, -1, 0\nv_mbcnt_hi_u32_b32 v{LANE}, -1, v{LANE}")
    consts(a)
    a(f"s_cmp_ge_u32 s{S_W}, 12\ns_cbranch_scc1 g_fin\ns_waitcnt vmcnt(0)")
    stamp(a, 8)
    sync(a, C_D, T0, S_X, wait=False)
    a(f"""s_cmp_lg_u32 s{S_X}, 4
    s_cbranch_scc1 g_fin
    s_lshl_b32 s{S_Y}, s{S_S}, 6
    s_mov_b32 s{S_Q0}, 1
    s_atomic_add s{S_Q0}, s[{P_DBG}:{P_DBG+1}], s{S_Y} glc
    s_mov_b32 s{S_X}, 0""")
    spin(a, C_S3, T0, S_X)
    a(f"""ds_read_b64 v[{T0}:{T1}], v{CB} offset:{C_TAG}
    s_waitcnt lgkmcnt(0)
    v_readfirstlane_b32 s{TAG}, v{T0}
    v_readfirstlane_b32 s{TAG+1}, v{T1}
    s_and_b32 s{S_Q0}, s{S_Q0}, 63
    s_lshl_b32 s{S_X}, s{S_S}, 13
    s_add_u32 s{S_X}, s{S_X}, {WS_GO:#x}
    s_cmp_lg_u32 s{S_Q0}, 63
    s_cbranch_scc1 g_wait
    s_add_u32 s{S_Y}, s{S_X}, {NGO*256}
    g_bc:
    s_atomic_swap_x2 s[{TAG}:{TAG+1}], s[{P_WS}:{P_WS+1}], s{S_X}
    s_add_u32 s{S_X}, s{S_X}, 256
    s_cmp_lt_u32 s{S_X}, s{S_Y}
    s_cbranch_scc1 g_bc
    s_branch g_fin
    g_wait:
    s_and_b32 s{S_Y}, s{S_R}, {NGO-1}
    s_lshl_b32 s{S_Y}, s{S_Y}, 8
    s_add_u32 s{S_X}, s{S_X}, s{S_Y}
    s_mov_b32 s{S_Y}, {SPIN}
    g_gopoll:
    s_load_dwordx2 s[{S_Q0}:{S_Q0+1}], s[{P_WS}:{P_WS+1}], s{S_X} glc
    s_waitcnt lgkmcnt(0)
    s_cmp_eq_u64 s[{S_Q0}:{S_Q0+1}], s[{TAG}:{TAG+1}]
    s_cbranch_scc1 g_fin
    s_sub_u32 s{S_Y}, s{S_Y}, 1
    s_cbranch_scc0 g_gopoll
    g_fin:""")

def rd_ad(t): return [f"ds_read_b128 v[{AD+4*q}:{AD+4*q+3}], v{PROW} offset:{ROW + 64*t + 16*q}" for q in range(4)]
def gathers(g): return [f"buffer_load_dword v{g+j}, v{AD+slot_of_reg(j)}, s[{R_TBL}:{R_TBL+3}], 0 offen{SC}" for j in range(16)]
def rd_eidx(t): return [f"ds_read_u16 v{EIDX}, v{PEAD} offset:{EAD + 32*t}"]
def rd_a():
    return [f"v_lshl_add_u32 v{EADDR}, v{EIDX}, 5, v{KHC}",
            f"s_mov_b64 exec, s[{S_E0}:{S_E0+1}]", f"ds_read_b128 v[{A0}:{A0+3}], v{EADDR}",
            f"s_mov_b64 exec, s[{S_E1}:{S_E1+1}]", f"ds_read_b128 v[{A1}:{A1+3}], v{EADDR}", "s_mov_b64 exec, -1"]
def rd_xa(x):
    o = [f"s_mov_b32 m0, s{S_RO}"]
    for k in range(4):
        o += [f"s_bitcmp1_b32 s{S_FR}, {k}", f"ds_read_addtid_b32 v{x+k} offset:{XAU}", f"s_cselect_b32 s{S_X}, {RS}, 0"]
        o += [f"s_add_u32 m0, m0, s{S_X}" if k < 3 else f"s_add_u32 s{S_RO}, m0, s{S_X}"]
    o += [f"s_lshr_b64 s[{S_FR}:{S_FR+1}], s[{S_FR}:{S_FR+1}], 4"]
    return o
def bigs(d, x):
    D = f"v[{d}:{d+15}]"
    return [f"v_mfma_f32_32x32x16_bf16 {D}, v[{A0}:{A0+3}], v[{B0}:{B0+3}], 0",
            f"v_mfma_f32_32x32x16_bf16 {D}, v[{A1}:{A1+3}], v[{B1}:{B1+3}], {D}",
            f"v_mfma_f32_32x32x16_bf16 {D}, v[{A2}:{A2+3}], v[{x}:{x+3}], {D}"]
def smalls(d, g):
    return [f"v_mfma_f32_16x16x32_bf16 v[{d+4*q}:{d+4*q+3}], v[{SEL}:{SEL+3}], v[{g+4*q}:{g+4*q+3}], v[{d+4*q}:{d+4*q+3}]" for q in range(4)]
def pk(d, h):
    X = lambda i: f"v[{d+2*i}:{d+2*i+1}]"; H = lambda i: f"v[{h+2*i}:{h+2*i+1}]"; C = f"v[{CC}:{CC+1}]"
    return [f"v_pk_fma_f32 {X(i)}, {X(i)}, {C}, {C} clamp" for i in range(4)] + [
        f"v_pk_mul_f32 {H(0)}, {H(0)}, {X(1)}", f"v_pk_mul_f32 {H(2)}, {H(2)}, {X(3)}",
        f"v_pk_fma_f32 {H(0)}, {H(1)}, {X(0)}, {H(0)}", f"v_pk_fma_f32 {H(2)}, {H(3)}, {X(2)}, {H(2)}",
        f"v_pk_mul_f32 {X(0)}, {X(0)}, {X(1)}", f"v_pk_mul_f32 {X(2)}, {X(2)}, {X(3)}",
        f"v_pk_mul_f32 {X(1)}, {X(0)}, {X(2)}", f"v_pk_mul_f32 {X(3)}, {H(0)}, {X(2)}",
        f"v_pk_fma_f32 {X(3)}, {H(2)}, {X(0)}, {X(3)}"]

def mainloop(a):
    em = lambda ls: [a(x) for x in ls]
    a(f"""k_join:
    s_lshl_b32 s{S_X}, s{S_W}, 3
    v_mov_b32 v{T0}, s{S_X}
    v_lshlrev_b32 v{T2}, 4, v{LANE}
    s_mov_b32 s{S_E0}, 0x0f0f0f0f
    s_mov_b32 s{S_E0+1}, 0x0f0f0f0f
    s_mov_b32 s{S_E1}, 0xf0f0f0f0
    s_mov_b32 s{S_E1+1}, 0xf0f0f0f0
    s_mov_b32 s{S_FIRST}, {0 if "oneb" in OPT else 1}
    s_waitcnt {"vmcnt(0) " if "oneb" in OPT else ""}lgkmcnt(0)""")
    stamp(a, 9)
    a("s_barrier")
    a(f"""ds_read_b64 v[0:1], v{T0} offset:{BND}
    ds_read_b64 v[2:3], v{T0} offset:{BND+8}
    ds_read_b32 v4, v{ACC} offset:{BND+132}
    ds_read_b128 v[{B0}:{B0+3}], v{T2} offset:{BW}
    ds_read_b128 v[{B1}:{B1+3}], v{T2} offset:{BW+1024}
    s_waitcnt lgkmcnt(2)
    v_readfirstlane_b32 s{S_SL}, v4
    v_readfirstlane_b32 s{S_N0}, v0
    v_readfirstlane_b32 s{S_Q0}, v1
    v_readfirstlane_b32 s{S_N1}, v2
    v_readfirstlane_b32 s{S_NQ}, v3
    v_lshlrev_b32 v{PROW}, 2, v1
    v_lshl_add_u32 v{PEAD}, v1, 1, v{PEAD}
    s_sub_u32 s{S_NQ}, s{S_NQ}, s{S_Q0}
    s_lshr_b32 s{S_NQ}, s{S_NQ}, 2
    s_lshr_b32 s{S_Q0}, s{S_Q0}, 2
    s_mul_i32 s{S_FO}, s{S_N0}, {RS}
    s_cmp_gt_u32 s{S_SL}, {SLOTCAP}
    s_cselect_b32 s{S_NQ}, 0, s{S_NQ}""")
    a(f"""k2_block:
    s_cmp_eq_u32 s{S_NQ}, 0
    s_cbranch_scc1 k2_blockend
    s_setprio 3
    v_add_u32 v{T2}, s{S_Q0}, v{LANE}""")
    em(rd_ad(0))
    a(f"ds_read_u8 v{T3}, v{T2} offset:{FLG}")
    em(rd_eidx(0))
    a(f"""s_min_u32 s{S_Y}, s{S_NQ}, 64
    s_add_u32 s{S_NT}, s{S_Y}, 3
    s_lshr_b32 s{S_NT}, s{S_NT}, 2
    s_mov_b32 s{S_RO}, s{S_FO}
    v_cmp_gt_u32 vcc, s{S_Y}, v{LANE}
    s_sub_u32 s{S_Y}, s{S_Y}, 1
    s_waitcnt lgkmcnt(0)""")
    em(gathers(G[0])); em(rd_ad(1))
    a(f"""v_cmp_ne_u32 s[{S_FF}:{S_FF+1}], 0, v{T3}
    s_and_b64 s[{S_FF}:{S_FF+1}], s[{S_FF}:{S_FF+1}], vcc
    s_mov_b64 s[{S_FR}:{S_FR+1}], s[{S_FF}:{S_FF+1}]
    s_bitset0_b64 s[{S_FR}:{S_FR+1}], s{S_Y}
    s_cmp_eq_u32 s{S_FIRST}, 0
    s_cbranch_scc1 k2_nobar
    s_waitcnt vmcnt(16)
    s_barrier
    s_mov_b32 s{S_FIRST}, 0
    k2_nobar:""")
    stamp(a, 10)
    a("s_waitcnt lgkmcnt(0)")
    em(rd_a()); em(rd_eidx(1)); em(rd_xa(XA[0]))
    em(gathers(G[1])); em(rd_ad(2))
    a("s_waitcnt lgkmcnt(4)")
    em(bigs(Dd[0], XA[0]))
    em(rd_a()); em(rd_eidx(2)); em(rd_xa(XA[1]))
    a("s_waitcnt vmcnt(16)")
    em(smalls(Dd[0], G[0]))
    a("s_nop 7")
    stamp(a, 11)
    a("k2_loop:")
    for u in range(2):
        c, n = u, 1 - u
        e = [f"v_exp_f32 v{Dd[c]+j}, v{Dd[c]+j}" for j in range(16)]
        b = bigs(Dd[n], XA[n])
        a("s_waitcnt lgkmcnt(4)")
        em([b[0]] + e[0:4] + [b[1]] + e[4:8] + ["s_waitcnt lgkmcnt(0)", b[2]] + e[8:12])
        em(rd_a()); em(rd_eidx(3 + u)); em(e[12:16])
        em(inter(pk(Dd[c], G[c]), pk(Dd[c] + 8, G[c] + 8)))
        a(f"s_cmp_le_u32 s{S_NT}, 2\ns_cbranch_scc1 k2_noload{u}")
        em(gathers(G[c]))
        em(rd_ad(3 + u))
        a(f"s_waitcnt vmcnt(16)\nk2_loaded{u}:")
        rc = [f"v_rcp_f32 v{Dd[c]+8*(k//2)+2+(k%2)}, v{Dd[c]+8*(k//2)+2+(k%2)}" for k in range(4)]
        em(inter(smalls(Dd[n], G[n]), rc))
        for k in range(4):
            a(f"""v_fmac_f32 v{ACC}, v{Dd[c]+8*(k//2)+6+(k%2)}, v{Dd[c]+8*(k//2)+2+(k%2)}
            s_bitcmp1_b32 s{S_FF}, {k}
            s_cbranch_scc0 k2_nofl{u}_{k}
            s_mov_b32 m0, s{S_FO}
            v_fmac_f32 v{XA[c]+k}, v{ACC}, v{CC}
            v_mov_b32 v{ACC}, 0
            ds_write_addtid_b32 v{XA[c]+k} offset:{XAU}
            s_add_u32 s{S_FO}, s{S_FO}, {RS}
            k2_nofl{u}_{k}:""")
        em(rd_xa(XA[c]))
        a(f"s_lshr_b64 s[{S_FF}:{S_FF+1}], s[{S_FF}:{S_FF+1}], 4")
        if u == 1: a(f"v_add_u32 v{PROW}, 128, v{PROW}\nv_add_u32 v{PEAD}, 64, v{PEAD}")
        a(f"""s_sub_u32 s{S_NT}, s{S_NT}, 1
        s_cmp_gt_u32 s{S_NT}, {PRIO[0]}
        s_cbranch_scc1 {'k2_mid' if u == 0 else 'k2_loop'}
        s_setprio 2
        s_cmp_gt_u32 s{S_NT}, {PRIO[1]}
        s_cbranch_scc1 {'k2_mid' if u == 0 else 'k2_loop'}
        s_setprio 1
        s_cmp_gt_u32 s{S_NT}, {PRIO[2]}
        s_cbranch_scc1 {'k2_mid' if u == 0 else 'k2_loop'}
        s_setprio 0
        s_cmp_eq_u32 s{S_NT}, 0""")
        a("s_cbranch_scc1 k2_loopend\nk2_mid:" if u == 0 else "s_cbranch_scc0 k2_loop")
    a(f"""k2_loopend:
    s_cmp_le_u32 s{S_NQ}, 64
    s_cbranch_scc1 k2_epi
    s_sub_u32 s{S_NQ}, s{S_NQ}, 64
    s_add_u32 s{S_Q0}, s{S_Q0}, 64
    s_waitcnt lgkmcnt(0)
    s_nop 7
    s_branch k2_block""")
    for u in range(2): a(f"k2_noload{u}:\ns_waitcnt vmcnt(0)\ns_branch k2_loaded{u}")
    a(f"""k2_blockend:
    s_waitcnt vmcnt(0)""")
    if "oneb" not in OPT: a("s_barrier")

def epilogue(a):
    E = 0; CW = 64; C2 = 66
    a("k2_epi:")
    stamp(a, 12)
    a(f"""v_lshrrev_b32 v{T0}, 3, v{LANE}
    v_and_b32 v{T1}, 7, v{LANE}
    v_add_u32 v{T0}, s{S_N0}, v{T0}
    v_mul_u32_u24 v{T2}, {RS}, v{T0}
    v_lshl_add_u32 v{T2}, v{T1}, 5, v{T2}
    v_lshlrev_b32 v{T3}, 9, v{T0}
    v_lshl_add_u32 v{T3}, v{T1}, 4, v{T3}
    s_mul_i32 s{S_X}, s{S_R}, {L.RN*512}
    s_lshl_b32 s{S_Y}, s{S_S}, 7
    s_add_u32 s{S_X}, s{S_X}, s{S_Y}
    s_waitcnt lgkmcnt(0)
    v_mov_b32 v{CW}, 0xb5b8aa3b
    v_mov_b32 v{CW+1}, 0xb5b8aa3b
    v_mov_b32 v{C2}, 0x49800000
    v_mov_b32 v{C2+1}, 0x49800000
    k2_eloop:
    s_cmp_ge_u32 s{S_N0}, s{S_N1}
    s_cbranch_scc1 k2_done
    ds_read_b128 v[{E}:{E+3}], v{T2} offset:{XAU}
    ds_read_b128 v[{E+4}:{E+7}], v{T2} offset:{XAU+16}
    v_cmp_gt_u32 vcc, s{S_N1}, v{T0}
    v_add_u32 v{T0}, 8, v{T0}
    v_add_u32 v{T2}, {8*RS}, v{T2}
    s_waitcnt lgkmcnt(0)""")
    for i in range(4): a(f"v_pk_mul_f32 v[{E+8+2*i}:{E+9+2*i}], v[{E+2*i}:{E+2*i+1}], v[{CW}:{CW+1}]")
    for i in range(8): a(f"v_exp_f32 v{E+8+i}, v{E+8+i}")
    for i in range(4): a(f"v_pk_fma_f32 v[{E+8+2*i}:{E+9+2*i}], v[{E+8+2*i}:{E+9+2*i}], v[{C2}:{C2+1}], v[{C2}:{C2+1}]")
    for i in range(8): a(f"v_rcp_f32 v{E+8+i}, v{E+8+i}")
    for i in range(4): a(f"v_pk_mul_f32 v[{E+2*i}:{E+2*i+1}], v[{E+2*i}:{E+2*i+1}], v[{E+8+2*i}:{E+9+2*i}]")
    for i in range(4): a(f"v_cvt_pk_bf16_f32 v{E+16+i}, v{E+2*i}, v{E+2*i+1}")
    a(f"""s_mov_b64 exec, vcc
    buffer_store_dwordx4 v[{E+16}:{E+19}], v{T3}, s[{R_OUT}:{R_OUT+3}], s{S_X} offen{OPT.get('outsc', ' sc1')}
    s_mov_b64 exec, -1
    v_add_u32 v{T3}, 0x1000, v{T3}
    s_add_u32 s{S_N0}, s{S_N0}, 8
    s_branch k2_eloop
    k2_done:""")

def kernel(a):
    a(f".globl {NAME}\n.p2align 8\n.type {NAME},@function\n{NAME}:")
    a(f"""s_cmp_ge_u32 s2, 256
    s_cbranch_scc1 k_end
    s_load_dwordx16 s[4:19], s[0:1], 0
    s_load_dwordx4 s[20:23], s[0:1], 64""")
    if STAMPS: a(f"s_memrealtime s[{ST0}:{ST0+1}]")
    a(f"v_lshrrev_b32 v1, 6, v0")
    MAP = OPT.get("map", "4")
    if MAP == "4":
        a(f"""s_and_b32 s{S_S}, s2, 3
        s_lshr_b32 s{S_R}, s2, 3
        s_bfe_u32 s{S_X}, s2, 0x10002
        s_lshl_b32 s{S_X}, s{S_X}, 5
        s_add_u32 s{S_R}, s{S_R}, s{S_X}""")
    elif MAP == "2":
        a(f"""s_and_b32 s{S_S}, s2, 1
        s_lshl_b32 s{S_S}, s{S_S}, 1
        s_bfe_u32 s{S_X}, s2, 0x10003
        s_add_u32 s{S_S}, s{S_S}, s{S_X}
        s_lshr_b32 s{S_R}, s2, 4
        s_bfe_u32 s{S_X}, s2, 0x20001
        s_lshl_b32 s{S_X}, s{S_X}, 4
        s_add_u32 s{S_R}, s{S_R}, s{S_X}""")
    else:
        a(f"""s_bfe_u32 s{S_S}, s2, 0x20003
        s_lshr_b32 s{S_R}, s2, 5
        s_and_b32 s{S_X}, s2, 7
        s_lshl_b32 s{S_X}, s{S_X}, 3
        s_add_u32 s{S_R}, s{S_R}, s{S_X}""")
    a(f"""v_readfirstlane_b32 s{S_W}, v1
    s_mul_i32 s{S_X}, s{S_R}, {L.RN}
    s_sub_u32 s{S_NV}, {L.N}, s{S_X}
    s_min_u32 s{S_NV}, s{S_NV}, {L.RN}
    v_and_b32 v{LANE}, 63, v0
    v_mov_b32 v{TID}, v0
    v_mov_b32 v{CB}, {CNT}
    v_mov_b32 v{ONE}, 1""")
    if STAMPS:
        for j in range(1, 16): a(f"s_mov_b64 s[{ST0+2*j}:{ST0+2*j+1}], 0")
    a(f"""s_cmp_ge_u32 s{S_W}, 8
    s_waitcnt lgkmcnt(0)
    s_cbranch_scc1 g_role""")
    s_role(a); g_role(a); mainloop(a); epilogue(a)
    if STAMPS:
        a("s_waitcnt vmcnt(0)"); stamp(a, 13); stamp_flush(a)
    a("k_end:\ns_endpgm")

if __name__ == "__main__":
    a = Asm()
    kernel(a)
    hdr = open("gather_scatter__edge_featured_mpnn_egc__graph.s.ref").read().split("; Override launch")[0]
    out = hdr + f"""; @launch grid=(256,1,1) block=(1024,1,1) lds={LDSZ}
.amdgcn_target "amdgcn-amd-amdhsa--gfx950"
.text
""" + a.text() + f""".section .rodata,"a"
.p2align 6
.amdhsa_kernel {NAME}
  .amdhsa_next_free_vgpr 128
  .amdhsa_next_free_sgpr 102
  .amdhsa_accum_offset 128
  .amdhsa_group_segment_fixed_size 0
  .amdhsa_kernarg_size 80
  .amdhsa_user_sgpr_count 2
  .amdhsa_user_sgpr_kernarg_segment_ptr 1
  .amdhsa_system_sgpr_workgroup_id_x 1
  .amdhsa_float_denorm_mode_32 3
.end_amdhsa_kernel
"""
    open(sys.argv[1], "w").write(out)
```

```python
import sys
from dsl import *
import layout as L

OPT = {}
for x in sys.argv[2:]:
    if x.startswith("--"):
        k, _, val = x[2:].partition("=")
        OPT[k] = val
def oi(k, d): return int(OPT.get(k, d))
STAMPS = "stamps" in OPT
PRIO = [int(y) for y in OPT.get("prio", "4,2,1").split(",")]
NAME = "gather_scatter__edge_featured_mpnn_egc__graph_kernel"
SC = " sc1"

SLOTCAP = 3136
ROW = 0
EAD = ROW + (SLOTCAP + 64) * 4
HIST = EAD + (SLOTCAP + 64) * 2
QST = HIST + 1024
FLG = QST + 1024
BND = FLG + 1024
BW = BND + 256
XAU = BW + 2048
RS = 272; STG = 32 * RS
XP = 1056; XST = 16 * XP
XT = XAU + STG
X0 = 131072
XS = [X0] + [XT + i * XST for i in range(4)]
EA = XAU + 160 * RS
REORD = XT + 4 * XST
RINGS = [113152, 121856]
PERM = 157696
CNT = 163328; H1 = 163584
NE = 192
EA_E = CNT - 8 * NE * 32
LCAP = (EA_E - EA) // 32
MARK = 148480; MARK2 = MARK
LDSZ = 163840
assert XAU == 24576 and REORD <= RINGS[0] and RINGS[0] + STG <= RINGS[1] and RINGS[1] + STG <= X0 and X0 + XST <= MARK and MARK + 8192 <= PERM and PERM + 2560 <= CNT
assert EA % 32 == 0 and BW % 32 == 0 and EA_E >= REORD
(C_S1, C_S2, C_S3, C_S4, C_S5, C_S6, C_W, C_F, C_E, C_REC, C_OVF, C_D, C_I, C_PE, C_AE, C_R2, C_XI, C_GO, C_IDX, C_P2) = [4 * i for i in range(20)]
C_X = 80; C_TAG = 104; C_RDY = 112; C_MK = 116; C_BT = 128
WS_FL = 0x1740000
WS_FE = 0x1750000
NJ = 7; NK = 2 * NJ
SPIN = 0x40000

P_X, P_EA, P_SRC, P_DST, P_UW, P_VW, P_GW, P_OUT, P_DBG, P_WS = 4, 6, 8, 10, 12, 14, 16, 18, 20, 22
S_R, S_S, S_W, S_NV = 24, 25, 26, 27
R_TBL, R_OUT = 28, 32
RA, RB, RC, RD, RE = 36, 40, 44, 48, 52
S_X, S_Y, S_Z, S_T, S_BASE, S_SL, S_N0, S_N1, S_Q0, S_NQ, S_NT, S_FO, S_RO, S_FIRST = range(56, 70)
S_G = 3
S_M = [4 + 2 * j for j in range(7)]
TAG = 18
S_FF, S_FR, S_E0, S_E1 = 8, 10, 12, 14
ST0 = 70

CLK = [int(y) for y in OPT.get("clk", "11,12").split(",")]
def stamp(a, j):
    if not STAMPS: return
    if "only" in OPT and str(j) not in OPT["only"].split(","): return
    a(f"s_memrealtime s[{ST0+2*j}:{ST0+2*j+1}]")
    if j in CLK: a(f"s_memtime s[{ST0+28+2*CLK.index(j)}:{ST0+29+2*CLK.index(j)}]")
    a("s_waitcnt lgkmcnt(0)")
def stamp_flush(a):
    a(f"""s_lshl_b32 s56, s2, 4
    s_add_u32 s56, s56, s{S_W}
    s_lshl_b32 s56, s56, 7
    s_add_u32 s56, s56, {L.WS_STAMP:#x}
    s_add_u32 s58, s{P_WS}, s56
    s_addc_u32 s59, s{P_WS+1}, 0
    s_mov_b64 exec, 1
    v_mov_b32 v0, 0""")
    for j in range(16):
        a(f"v_mov_b32 v2, s{ST0+2*j}\nv_mov_b32 v3, s{ST0+2*j+1}\nglobal_store_dwordx2 v0, v[2:3], s[58:59] offset:{8*j}\ns_nop 1")

G = [0, 16]; Dd = [32, 48]; AD = 64; A0 = 80; A1 = 84; B0 = 88; B1 = 92; SEL = 96; A2 = 100
XA = [104, 108]; CC = 112; ACC = 114; EIDX = 115; EADDR = 116; PROW = 117; PEAD = 118; KHC = 119
LANE = 120; TID = 121
T0, T1, T2, T3 = 122, 123, 124, 125
CB, ONE = 126, 127
EX = 36

def slot_of_reg(j):
    g, i, ab = j // 8, (j % 8) // 2, j % 2
    return (2 * g + ab) * 4 + i

def consts(a):
    a.c("SEL (16x16x32 A operand): lane(row=l%16,kq=l/16): 1.0 at element 2*(row%4) iff kq==row/4")
    a(f"""v_lshrrev_b32 v{T0}, 4, v{LANE}
    v_bfe_u32 v{T1}, v{LANE}, 2, 2
    v_and_b32 v{T2}, 3, v{LANE}
    v_cmp_eq_u32 vcc, v{T0}, v{T1}
    v_mov_b32 v{T3}, 0x3f80
    v_mov_b32 v{CC}, 0x30800000
    v_cndmask_b32 v{T2}, 7, v{T2}, vcc""")
    for k in range(4):
        a(f"v_cmp_eq_u32 vcc, {k}, v{T2}\nv_mov_b32 v{A0+2*k}, 0\nv_mov_b32 v{A0+2*k+1}, 0\nv_cndmask_b32 v{SEL+k}, 0, v{T3}, vcc")
    a.c("A2 (32x32x16 A operand): row=8a+4h+b, reg j=4a+b, quad=2*(j/8)+(j%2); 1.0 at element 2*quad iff kh==h")
    a(f"""v_lshrrev_b32 v{T0}, 5, v{LANE}
    v_bfe_u32 v{T1}, v{LANE}, 2, 1
    v_cmp_eq_u32 vcc, v{T0}, v{T1}
    v_bfe_u32 v{T1}, v{LANE}, 4, 1
    v_and_b32 v{T2}, 1, v{LANE}
    v_lshl_add_u32 v{PEAD}, v{T1}, 1, v{T2}
    v_cndmask_b32 v{T2}, 7, v{PEAD}, vcc""")
    fill = [f"v_bfe_u32 v{T1}, v{LANE}, 3, 1", f"v_lshl_add_u32 v{PEAD}, v{PEAD}, 1, v{T1}",
            f"v_bfe_u32 v{T1}, v{LANE}, 1, 1", f"v_lshl_add_u32 v{PEAD}, v{PEAD}, 1, v{T1}",
            f"v_lshlrev_b32 v{PEAD}, 1, v{PEAD}", f"v_lshlrev_b32 v{KHC}, 4, v{T0}",
            f"v_mov_b32 v{ACC}, 0", f"v_mov_b32 v{CC+1}, 0x30800000"]
    for k in range(4):
        a(f"v_cmp_eq_u32 vcc, {k}, v{T2}\n{fill[2*k]}\n{fill[2*k+1]}\nv_cndmask_b32 v{A2+k}, 0, v{T3}, vcc")

_lab = [0]
def spin(a, off, tv, ts, n=8, sl=0, mask=None, first=True):
    _lab[0] += 1; k = _lab[0]
    if not first: a(f"s_branch sp{k}r")
    a(f"sp{k}:")
    if mask is not None: a(f"s_and_b32 s{ts}, s{ts}, {mask:#x}")
    a(f"s_cmp_ge_u32 s{ts}, {n}\ns_cbranch_scc1 sp{k}e")
    if sl: a(f"s_sleep {sl}")
    a(f"""sp{k}r:
    ds_read_b32 v{tv}, v{CB} offset:{off}
    s_waitcnt lgkmcnt(0)
    v_readfirstlane_b32 s{ts}, v{tv}
    s_branch sp{k}
    sp{k}e:""")
def wait(a, off, n, sl=1, mask=None): spin(a, off, T0, S_X, n, sl, mask, first=False)
def sync(a, off, wait=True, n=8, sl=0):
    a(f"""s_mov_b64 exec, 1
    ds_add_rtn_u32 v{T0}, v{CB}, v{ONE} offset:{off}
    s_mov_b64 exec, -1
    s_waitcnt lgkmcnt(0)
    v_readfirstlane_b32 s{S_X}, v{T0}
    s_add_u32 s{S_X}, s{S_X}, 1""")
    if wait: spin(a, off, T0, S_X, n, sl)
def arrive(a, off, inc=None):
    a(f"s_mov_b64 exec, 1\nds_add_u32 v{CB}, v{inc or ONE} offset:{off}\ns_mov_b64 exec, -1")

def common_srds(a):
    a(f"s_mul_i32 s{S_X}, s{S_S}, {L.TBL_SL}")
    srd(a, R_TBL, P_WS, L.WS_TBL, L.TBL_SL, stride=4, w3=0x800000, soff=S_X)
    srd(a, R_OUT, P_OUT, 0, L.N * 512)

def publish_done(a, lab, V, cnt, n, S):
    sync(a, cnt, wait=False)
    a(f"s_cmp_lg_u32 s{S_X}, {n}\ns_cbranch_scc1 {lab}")
    if S:
        a(f"""v_mov_b32 v{V}, s{TAG}
        v_mov_b32 v{V+1}, s{TAG+1}
        s_lshl_b32 s{S_X}, s2, 3
        s_add_u32 s{S_X}, s{S_X}, {WS_FE:#x}""")
    else:
        a(f"""s_lshl_b32 s{S_X}, s{S_S}, 6
        s_add_u32 s{S_X}, s{S_X}, s{S_R}
        s_lshl_b32 s{S_X}, s{S_X}, 3
        s_add_u32 s{S_X}, s{S_X}, {WS_FL:#x}""")
    a(f"""v_mov_b32 v{T0}, s{S_X}
    s_mov_b64 exec, 1
    global_store_dwordx2 v{T0}, v[{V}:{V+1}], s[{P_WS}:{P_WS+1}] sc1
    s_mov_b64 exec, -1
    {lab}:""")

def flag_poll(a, lab, AV, FV, TV, sl):
    a(f"""s_mov_b32 s{S_Y}, {SPIN}
    {lab}:
    s_waitcnt vmcnt(0)
    v_cmp_ne_u64 vcc, {TV}, v[{FV}:{FV+1}]
    s_and_b64 exec, exec, vcc
    s_cbranch_scc0 {lab}e
    s_sleep {sl}
    global_load_dwordx2 v[{FV}:{FV+1}], v{AV}, s[{P_WS}:{P_WS+1}] sc1
    s_sub_u32 s{S_Y}, s{S_Y}, 1
    s_cbranch_scc0 {lab}
    {lab}e:
    s_mov_b64 exec, -1""")

def s_role(a):
    DS, SR, RG, ID, RKK, CN, INC, GRN = 2, 4, 6, 8, 10, 12, 13, 14
    LM, GA, CA_, BWA = 16, 17, 18, 19
    EV = 20
    PV = 32
    CW, NON = 36, 38
    ZV = 40
    IOT, MQ, HD, SP = 48, 52, 56, 60
    IDV = 64
    DEL, PA, MA1, PR2, HB = 88, 89, 90, 91, 92
    M1 = 60
    a(f"""v_mov_b32 v{T2}, 0
    v_mov_b32 v{T3}, 0
    v_lshl_add_u32 v{T1}, v{LANE}, 3, v{CB}
    ds_write_b64 v{T1}, v[{T2}:{T3}]
    s_mul_i32 s{S_X}, s2, {L.CH*4}""")
    srd(a, RA, P_DST, 0, L.CH * 4, soff=S_X)
    a(f"""v_lshlrev_b32 v{T0}, 2, v0
    buffer_load_dword v{DS}, v{T0}, s[{RA}:{RA+3}], 0 offen
    buffer_load_dword v{DS+1}, v{T0}, s[{RA}:{RA+3}], 0 offen offset:2048""")
    srd(a, RB, P_SRC, 0, L.CH * 4, soff=S_X)
    a(f"""buffer_load_dword v{SR}, v{T0}, s[{RB}:{RB+3}], 0 offen
    buffer_load_dword v{SR+1}, v{T0}, s[{RB}:{RB+3}], 0 offen offset:2048""")
    EPF = OPT.get("epf", "b")
    def epf():
        a(f"s_mul_i32 s{S_X}, s2, {L.CH*32}")
        srd(a, RC, P_EA, 0, L.CH * 32, soff=S_X)
        if EPF != "n":
            a(f"""v_subrev_u32 v{T1}, {512-160}, v0
            v_lshlrev_b32 v{T1}, 7, v{T1}
            buffer_load_dword v{EV}, v{T1}, s[{RC}:{RC+3}], 0 offen""")
    if EPF == "b": epf()
    a("s_waitcnt lgkmcnt(0)\ns_barrier")
    if EPF != "b": epf()
    NP = 0 if EPF == "n" else 1
    a(f"s_mul_i32 s{S_X}, s2, {L.CHS*32}")
    srd(a, RD, P_WS, L.WS_EA, L.CH * 32, soff=S_X)
    a(f"s_mul_i32 s{S_X}, s2, {L.CHS*4}")
    srd(a, RE, P_WS, L.WS_ID, L.CHS * 4, soff=S_X)
    a(f"""v_cmp_gt_u32 vcc, {L.CH-512}, v0
    s_mov_b64 s[{M1}:{M1+1}], vcc
    v_lshlrev_b32 v{GA}, 4, v0
    v_add_u32 v{LM}, {MARK}, v{GA}
    v_lshlrev_b32 v{PR2}, 1, v0
    v_and_b32 v{PR2}, -4, v{PR2}
    v_add_u32 v{PR2}, {PERM}, v{PR2}
    v_and_b32 v{HB}, 16, v{GA}
    v_lshlrev_b32 v{ID}, 22, v0
    v_add_u32 v{ID+1}, 0x80000000, v{ID}
    v_mov_b32 v{ZV+4}, 0
    v_lshl_add_u32 v{T1}, v{LANE}, 2, v{CB}
    s_movk_i32 s{S_Y}, {-L.RN}
    s_mov_b32 s{S_Z}, {H1}
    s_waitcnt vmcnt({2+NP})""")
    stamp(a, 1)
    for k in range(2): a(f"v_mul_u32_u24 v{RG+k}, 13358, v{DS+k}")
    for k in range(2): a(f"v_lshrrev_b32 v{RG+k}, 21, v{RG+k}")
    for k in range(2): a(f"v_mad_i32_i24 v{DS+k}, v{RG+k}, s{S_Y}, v{DS+k}")
    for k in range(2): a(f"v_lshl_add_u32 v{RG+k}, v{RG+k}, 2, s{S_Z}")
    a(f"""ds_add_rtn_u32 v{RKK}, v{RG}, v{ONE}
    s_mov_b64 exec, s[{M1}:{M1+1}]
    ds_add_rtn_u32 v{RKK+1}, v{RG+1}, v{ONE}""")
    sync(a, C_S1)
    a(f"ds_read_b32 v{CN}, v{T1} offset:{H1-CNT}")
    srd(a, RA, P_GW, 0, 528 * 512)
    a(f"""v_or_b32 v{ID}, v{ID}, v{DS}
    v_or_b32 v{ID+1}, v{ID+1}, v{DS+1}
    s_waitcnt lgkmcnt(0)
    v_mov_b32 v{INC}, v{CN}""")
    scan(a, "v_add_u32", [INC])
    a(f"""v_sub_u32 v{INC}, v{INC}, v{CN}
    ds_bpermute_b32 v{T2}, v{RG}, v{INC}
    ds_bpermute_b32 v{T3}, v{RG+1}, v{INC}
    v_lshl_or_b32 v{GRN}, v{CN}, 10, v{INC}
    s_mov_b32 s{S_Y}, {PERM}
    s_waitcnt vmcnt({NP})
    v_lshl_or_b32 v{ID}, v{SR}, 8, v{ID}
    v_lshl_or_b32 v{ID+1}, v{SR+1}, 8, v{ID+1}
    s_waitcnt lgkmcnt(0)
    v_add_u32 v{RG}, v{T2}, v{RKK}
    v_add_u32 v{RG+1}, v{T3}, v{RKK+1}
    v_lshl_add_u32 v{DS}, v{RG}, 2, s{S_Y}
    v_lshl_add_u32 v{DS+1}, v{RG+1}, 2, s{S_Y}
    ds_write_b32 v{DS}, v{ID}
    s_mov_b64 exec, s[{M1}:{M1+1}]
    ds_write_b32 v{DS+1}, v{ID+1}""")
    sync(a, C_S2)
    a(f"ds_read_b128 v[{IDV}:{IDV+3}], v{LM} offset:{PERM-MARK}")
    for k in range(3): a(f"ds_read_b32 v{PV+k}, v{PR2} offset:{1024*k}")
    a(f"s_lshl_b32 s{S_X}, s2, 9")
    srd(a, RB, P_WS, L.WS_OFF, 512, soff=S_X)
    GR, LEN, PRE, INC2, MKB = 2, 4, 5, 12, 8
    consts(a)
    a(f"v_lshlrev_b32 v{T0}, 2, v{LANE}\nv_sub_u32 v{T0}, s{S_NV}, v{T0}")
    fill = [f"v_mul_u32_u24 v{IOT}, 0x80008, v{LANE}", f"v_add_u32 v{IOT}, 0x10000, v{IOT}", f"v_add_u32 v{IOT+1}, 0x20002, v{IOT}",
            f"v_add_u32 v{IOT+2}, 0x40004, v{IOT}", f"v_add_u32 v{IOT+3}, 0x60006, v{IOT}", f"v_mul_u32_u24 v{DEL}, {L.CHS}, v{LANE}",
            f"v_lshlrev_b32 v{PA}, 9, v{LANE}", f"v_mov_b32 v{GR}, 0"]
    for k in range(4): a(f"v_cmp_lt_i32 vcc, {k}, v{T0}\n{fill[2*k]}\n{fill[2*k+1]}\nv_cndmask_b32 v{MQ+k}, 0, 4, vcc")
    a(f"""s_lshr_b32 s{S_X}, s2, 3
    s_add_u32 s{S_X}, s{S_X}, {L.N}
    s_lshl_b32 s{S_X}, s{S_X}, 8""")
    for k in range(4): a(f"v_mov_b32 v{ZV+k}, s{S_X}\nv_mov_b32 v{ZV+4+k}, 0\nv_mov_b32 v{SP+k}, {(BW//32) * 0x10001:#x}")
    a(f"""ds_write_b128 v{LM}, v[{ZV+4}:{ZV+7}]
    s_lshl_b32 s{S_N0}, s{S_W}, 10
    s_add_u32 s{S_N0}, s{S_N0}, {MARK}
    v_lshl_add_u32 v{MA1}, v{LANE}, 1, s{S_N0}
    s_lshl_b32 s{S_Z}, s{S_W}, 14
    s_lshl_b32 s{S_Y}, s{S_R}, 3
    s_add_u32 s{S_Z}, s{S_Z}, s{S_Y}
    s_add_u32 s{S_Z}, s{S_Z}, {L.WS_OFF:#x}
    v_add_u32 v{PA}, s{S_Z}, v{PA}""")
    if "shold" in OPT: wait(a, C_I, 8)
    a(f"""s_waitcnt lgkmcnt(1)
    buffer_store_dwordx4 v[{IDV}:{IDV+3}], v{GA}, s[{RE}:{RE+3}], 0 offen{SC}
    global_load_dwordx2 v[{NON}:{NON+1}], v{ZV+4}, s[{P_DBG}:{P_DBG+1}] offset:32 sc1
    s_waitcnt lgkmcnt(0)""")
    EGX = "egx" in OPT
    for k in range(3):
        a(f"""v_lshrrev_b32 v{PV+k}, 22, v{PV+k}
        v_lshl_or_b32 v{PV+k}, v{PV+k}, 5, v{HB}""")
    def eag():
        for k in range(3): a(f"buffer_load_dwordx4 v[{EV+4*k}:{EV+4*k+3}], v{PV+k}, s[{RC}:{RC+3}], 0 offen")
    if not EGX: eag()
    stamp(a, 2)
    GR, LEN, PRE, INC2, MKB = 2, 4, 5, 12, 8
    a(f"""v_lshlrev_b32 v{T2}, 3, v{LANE}
    s_mov_b32 s{S_Y}, {SPIN}
    s_waitcnt vmcnt({0 if EGX else 3})
    s_nonce:
    v_readfirstlane_b32 s{S_NT+1}, v{NON+1}
    v_readfirstlane_b32 s{S_NT}, v{NON}
    s_sub_u32 s{S_Y}, s{S_Y}, 1
    s_cbranch_scc1 s_nonceok
    s_cmp_lg_u32 s{S_NT+1}, 0
    s_cbranch_scc1 s_nonceok
    global_load_dwordx2 v[{NON}:{NON+1}], v{ZV+4}, s[{P_DBG}:{P_DBG+1}] offset:32 sc1
    s_waitcnt vmcnt(0)
    s_branch s_nonce
    s_nonceok:
    s_and_b32 s{S_N1}, s{S_NT+1}, 0xfff
    v_lshl_or_b32 v{GRN}, s{S_N1}, 20, v{GRN}
    v_mov_b32 v{GRN+1}, s{S_NT}
    s_mov_b64 exec, 1
    ds_write_b64 v{CB}, v[{NON}:{NON+1}] offset:{C_TAG}""")
    sync(a, C_S3, wait=False)
    def east():
        a(f"s_movk_i32 s{S_Y}, 8192\ns_movk_i32 s{S_Z}, 16384")
        for k, so in enumerate(("0", f"s{S_Y}", f"s{S_Z}")):
            a(f"buffer_store_dwordx4 v[{EV+4*k}:{EV+4*k+3}], v{GA}, s[{RD}:{RD+3}], {so} offen{SC}")
    a(f"""s_cmp_lg_u32 s{S_X}, 8
    s_cbranch_scc1 s_nopub
    buffer_store_dwordx2 v[{GRN}:{GRN+1}], v{T2}, s[{RB}:{RB+3}], 0 offen{SC}""")
    if EGX:
        a("s_nopub:")
        wait(a, C_XI, 4)
        eag()
    else:
        a("s_waitcnt vmcnt(1)\ns_branch s_pub\ns_nopub:\ns_waitcnt vmcnt(0)\ns_pub:")
        east()
    stamp(a, 3)
    a(f"""v_lshrrev_b32 v{T0}, 5, v{LANE}
    v_and_b32 v{T2}, 31, v{LANE}
    v_lshlrev_b32 v{T2}, 1, v{T2}
    v_lshl_add_u32 v{CA_}, v{T0}, 12, v{T2}
    s_and_b32 s{S_X}, s{S_W}, 3
    s_lshr_b32 s{S_Y}, s{S_W}, 2
    s_lshl_b32 s{S_T}, s{S_X}, 10
    s_lshl_b32 s{S_Z}, s{S_Y}, 6
    s_add_u32 s{S_T}, s{S_T}, s{S_Z}
    s_lshl_b32 s{S_Z}, s{S_S}, 7
    s_add_u32 s{S_T}, s{S_T}, s{S_Z}
    s_add_u32 s{S_T}, s{S_T}, {512*512}
    buffer_load_ushort v{CW}, v{CA_}, s[{RA}:{RA+3}], s{S_T} offen
    buffer_load_ushort v{CW+1}, v{CA_}, s[{RA}:{RA+3}], s{S_T} offen offset:512
    s_lshl_b32 s{S_X}, s{S_X}, 2
    s_lshl_b32 s{S_Y}, s{S_Y}, 10
    s_add_u32 s{S_X}, s{S_X}, s{S_Y}
    v_lshl_add_u32 v{BWA}, v{LANE}, 4, s{S_X}""")
    common_srds(a)
    a(f"s_mov_b64 s[{TAG}:{TAG+1}], s[{S_NT}:{S_NT+1}]")
    a(f"s_mul_i32 s{S_X}, s{S_W}, {32*L.CHS*4}")
    srd(a, RE, P_WS, L.WS_ID, 32 * L.CHS, stride=4, soff=S_X)
    if not EGX:
        a("s_waitcnt vmcnt(0)")
        publish_done(a, "s_pd", GRN, C_S6, 8, True)
    else: a("s_waitcnt vmcnt(0)")
    if oi("pdel", 0): a(f"s_sleep {oi('pdel', 0)}")
    if "pgate" in OPT: wait(a, C_X + 4 * oi("pgate", 0), 0x400, mask=0xf00, sl=2)
    stamp(a, 4)
    if "sprio" in OPT: a(f"s_setprio {OPT['sprio']}")
    a(f"""s_mov_b32 exec_hi, 0
    global_load_dwordx2 v[{GR}:{GR+1}], v{PA}, s[{P_WS}:{P_WS+1}] sc1""")
    if EGX:
        a("s_mov_b64 exec, -1")
        east()
        a("s_mov_b32 exec_hi, 0")
    a(f"""s_mov_b32 s{S_Y}, {SPIN}
    s_waitcnt vmcnt({3 if EGX else 0})
    s_poll:
    v_lshrrev_b32 v{T0}, 20, v{GR}
    v_cmp_ne_u32 vcc, s{TAG}, v{GR+1}
    v_cmp_ne_u32 s[{S_M[0]}:{S_M[0]+1}], s{S_N1}, v{T0}
    s_or_b64 vcc, vcc, s[{S_M[0]}:{S_M[0]+1}]
    s_cbranch_scc0 s_pollok
    s_mov_b64 exec, vcc
    s_sleep {oi("psl", 2)}
    global_load_dwordx2 v[{GR}:{GR+1}], v{PA}, s[{P_WS}:{P_WS+1}] sc1
    s_sub_u32 s{S_Y}, s{S_Y}, 1
    s_waitcnt vmcnt(0)
    s_cbranch_scc0 s_poll
    v_mov_b32 v{GR}, 0
    s_pollok:
    s_mov_b64 exec, -1""")
    stamp(a, 5)
    IDX, IDW, HA, RK, QV = 64, 28, 64, 72, 20
    a(f"""v_lshlrev_b32 v{CW}, 16, v{CW}
    v_lshlrev_b32 v{CW+1}, 16, v{CW+1}
    v_mul_f32 v{CW}, 0xbfb8aa3b, v{CW}
    v_mul_f32 v{CW+1}, 0xbfb8aa3b, v{CW+1}
    v_bfe_u32 v{LEN}, v{GR}, 10, 10
    v_and_b32 v{GR}, 0x3ff, v{GR}
    v_mov_b32 v{INC2}, v{LEN}
    v_add_u32 v{DEL}, v{DEL}, v{GR}
    v_cvt_pk_bf16_f32 v{CW}, v{CW}, v{CW+1}""")
    for m in ("row_shr:1", "row_shr:2", "row_shr:4", "row_shr:8"):
        a(f"v_add_u32_dpp v{INC2}, v{INC2}, v{INC2} {m} row_mask:0xf bank_mask:0xf bound_ctrl:0\ns_nop 1")
    a(f"""v_add_u32_dpp v{INC2}, v{INC2}, v{INC2} row_bcast:15 row_mask:0xa bank_mask:0xf
    v_cmp_lt_u32 vcc, 0, v{LEN}
    v_sub_u32 v{PRE}, v{INC2}, v{LEN}
    v_readlane_b32 s{S_T}, v{INC2}, 31
    v_sub_u32 v{DEL}, v{DEL}, v{PRE}
    v_lshl_add_u32 v{T0}, v{PRE}, 1, s{S_N0}
    v_subrev_u32 v{INC2}, {NE - 31}, v{INC2}
    s_cmp_gt_u32 s{S_T}, {64*NJ}
    s_cselect_b64 exec, 0, vcc
    ds_write_b16 v{T0}, v{DEL}
    s_mov_b64 exec, -1
    ds_read_b128 v[{MKB}:{MKB+3}], v{LM}
    v_max_i32 v{INC2}, 0, v{INC2}
    v_and_b32 v{INC2}, 0xffffffe0, v{INC2}
    s_mov_b32 exec_lo, 0x80000000
    s_mov_b32 exec_hi, 0
    ds_add_rtn_u32 v{T0}, v{CB}, v{INC2} offset:{C_REC}
    s_mov_b64 exec, -1
    s_waitcnt lgkmcnt(1)""")
    for k in range(4): a(f"v_pk_max_u16 v{MKB+k}, v{MKB+k}, v{MKB+k} op_sel:[0,0] op_sel_hi:[1,0]")
    for k in range(1, 4): a(f"v_pk_max_u16 v{MKB+k}, v{MKB+k}, v{MKB+k-1} op_sel:[0,1] op_sel_hi:[1,1]")
    a(f"v_lshrrev_b32 v{INC2}, 16, v{MKB+3}")
    scan(a, "v_max_u32", [INC2])
    a(f"""v_mov_b32 v{PRE}, 0
    s_waitcnt lgkmcnt(0)
    v_mov_b32_dpp v{PRE}, v{INC2} wave_shr:1 row_mask:0xf bank_mask:0xf
    v_readlane_b32 s{S_BASE}, v{T0}, 31""")
    for k in range(4): a(f"v_pk_max_u16 v{MKB+k}, v{MKB+k}, v{PRE} op_sel:[0,0] op_sel_hi:[1,0]")
    for k in range(4): a(f"v_pk_add_u16 v{HD+k}, v{MKB+k}, v{IOT+k}")
    a(f"ds_write_b128 v{LM}, v[{HD}:{HD+3}]")
    for j in range(NJ): a(f"ds_read_u16 v{IDX+j}, v{MA1} offset:{128*j}")
    a(f"ds_read_b32 v{T1}, v{CB} offset:{C_F}\nds_write_b128 v{LM}, v[{MKB}:{MKB+3}]")
    a.c("capacity guard")
    a(f"""s_add_u32 s{S_X}, s{S_BASE}, s{S_T}
    s_cmp_gt_u32 s{S_X}, {LCAP + NE - 32}
    s_cselect_b32 s{S_T}, {64*NJ+1}, s{S_T}
    s_cmp_gt_u32 s{S_T}, {64*NJ}
    s_cbranch_scc0 s_fits
    s_mov_b32 s{S_T}, 0
    ds_write_b32 v{CB}, v{ONE} offset:{C_OVF}
    s_fits:""")
    for j in range(NJ):
        a(f"s_sub_i32 s{S_X}, s{S_T}, {64*j}\nv_cmp_gt_i32 s[{S_M[j]}:{S_M[j]+1}], s{S_X}, v{LANE}")
    a("s_waitcnt lgkmcnt(0)")
    for j in range(NJ):
        a(f"s_mov_b64 exec, s[{S_M[j]}:{S_M[j]+1}]")
        if j >= 5: a("s_cbranch_execz s_idsdone")
        a(f"buffer_load_dword v{IDW+j}, v{IDX+j}, s[{RE}:{RE+3}], 0 idxen{SC}")
    a(f"s_idsdone:\ns_mov_b64 exec, -1\nv_readfirstlane_b32 s{S_X}, v{T1}")
    stamp(a, 6)
    a(f"""v_mov_b32 v{T2}, s{S_BASE}
    v_mov_b32 v{T3}, s{S_T}
    v_lshl_add_u32 v{GR}, s{S_W}, 3, v{CB}
    s_mov_b64 exec, 1
    ds_write_b64 v{GR}, v[{T2}:{T3}] offset:{C_BT}
    ds_add_u32 v{CB}, v{ONE} offset:{C_IDX}
    s_mov_b64 exec, -1""")
    spin(a, C_F, T0, S_X, sl=1)
    a.c("LDS init of the list area")
    a(f"""ds_write_b32 v{BWA}, v{CW} offset:{BW}
    ds_write_b128 v{GA}, v[{ZV}:{ZV+3}] offset:{ROW}
    v_cmp_gt_u32 vcc, {(HIST-EAD)//16}, v0
    s_mov_b64 exec, vcc
    ds_write_b128 v{GA}, v[{SP}:{SP+3}] offset:{EAD}
    v_cmp_gt_u32 vcc, {(EAD-ROW)//16-512}, v0
    s_mov_b64 exec, vcc
    ds_write_b128 v{GA}, v[{ZV}:{ZV+3}] offset:{ROW+8192}
    v_cmp_gt_u32 vcc, {(BW-HIST)//16}, v0
    s_mov_b64 exec, vcc
    ds_write_b128 v{GA}, v[{ZV+4}:{ZV+7}] offset:{HIST}""")
    sync(a, C_S4)
    a(f"""v_lshlrev_b32 v{T1}, 4, v{LANE}
    s_mul_i32 s{S_G}, s{S_W}, {NE}
    s_add_u32 s{S_G}, s{S_G}, {EA_E//32}
    s_waitcnt vmcnt(0)""")
    if EGX: publish_done(a, "s_pd", GRN, C_S6, 8, True)
    stamp(a, 7)
    for j in range(NJ):
        a(f"v_lshlrev_b32_sdwa v{HA+j}, 2, v{IDW+j} dst_sel:DWORD dst_unused:UNUSED_PAD src0_sel:DWORD src1_sel:BYTE_0")
    for j in range(NJ):
        a(f"s_mov_b64 exec, s[{S_M[j]}:{S_M[j]+1}]")
        if j >= 5: a("s_cbranch_execz s_histdone")
        a(f"ds_add_rtn_u32 v{RK+j}, v{HA+j}, v{ONE} offset:{HIST}")
    a("s_histdone:")
    sync(a, C_S5)
    a(f"ds_read_b128 v[{HD}:{HD+3}], v{T1} offset:{HIST}")
    for j in range(NJ): a(f"v_and_b32 v{IDW+j}, 0x3fff00, v{IDW+j}")
    a(f"""s_add_u32 s{S_X}, s{S_BASE}, {EA//32 - NE}
    v_add_u32 v{LEN}, s{S_X}, v{LANE}
    v_add_u32 v{PRE}, s{S_G}, v{LANE}
    v_lshlrev_b32 v{T2}, 2, v0
    v_and_b32 v{T2}, 0x3fc, v{T2}
    s_waitcnt lgkmcnt(0)""")
    for k in range(4): a(f"v_add_u32 v{HD+k}, 3, v{HD+k}")
    for k in range(4): a(f"v_and_b32 v{HD+k}, -4, v{HD+k}")
    for k in range(4): a(f"v_max_u32 v{HD+k}, v{HD+k}, v{MQ+k}")
    a(f"""v_add_u32 v{HD+1}, v{HD}, v{HD+1}
    v_add_u32 v{HD+2}, v{HD+1}, v{HD+2}
    v_add_u32 v{HD+3}, v{HD+2}, v{HD+3}
    v_mov_b32 v{INC2}, v{HD+3}""")
    scan(a, "v_add_u32", [INC2])
    a(f"""v_sub_u32 v{SP}, v{INC2}, v{HD+3}
    v_readlane_b32 s{S_SL}, v{INC2}, 63
    v_add_u32 v{SP+1}, v{SP}, v{HD}
    v_add_u32 v{SP+2}, v{SP}, v{HD+1}
    v_add_u32 v{SP+3}, v{SP}, v{HD+2}
    ds_write_b128 v{T1}, v[{SP}:{SP+3}] offset:{QST}""")
    for j in range(NJ): a(f"ds_read_b32 v{QV+j}, v{HA+j} offset:{QST}")
    a(f"ds_read_b32 v{T3}, v{T2} offset:{QST+4}")
    stamp(a, 8)
    a(f"""s_lshl_b32 s{S_Z}, s{S_W}, 1
    s_add_u32 s{S_Z}, s{S_Z}, 1
    s_mul_i32 s{S_X}, s{S_SL}, s{S_Z}
    s_add_u32 s{S_X}, s{S_X}, 15""")
    BV = 8
    for t in range(2):
        a(f"s_lshr_b32 s{S_Y}, s{S_X}, 4\ns_add_u32 s{S_X}, s{S_X}, s{S_SL}")
        for k in range(4):
            a(f"v_cmp_gt_u32 vcc, s{S_Y}, v{SP+k}")
            if k == 0: a(f"s_bcnt1_i32_b64 s{S_N0}, vcc")
            else: a(f"s_bcnt1_i32_b64 s{S_FO}, vcc\ns_add_u32 s{S_N0}, s{S_N0}, s{S_FO}")
        a(f"""v_mov_b32 v{BV+2*t}, s{S_N0}
        v_lshlrev_b32 v{BV+2*t+1}, 2, v{BV+2*t}
        ds_read_b32 v{BV+2*t+1}, v{BV+2*t+1} offset:{QST}""")
    a(f"""s_lshl_b32 s{S_X}, s{S_Z}, 3
    v_mov_b32 v{T1}, s{S_X}
    v_cmp_gt_u32 vcc, s{S_NV}, v0
    s_cmp_gt_u32 s{S_SL}, {SLOTCAP}
    s_cbranch_scc1 s_scatdone
    s_waitcnt lgkmcnt(2)
    v_lshrrev_b32 v{T3}, 2, v{T3}
    s_mov_b64 exec, vcc
    ds_write_b8 v{T3}, v{ONE} offset:{FLG-1}""")
    for j in range(NJ):
        a(f"s_mov_b64 exec, s[{S_M[j]}:{S_M[j]+1}]")
        if j >= 5: a("s_cbranch_execz s_scatdone")
        a(f"""v_add_lshl_u32 v{HA+j}, v{QV+j}, v{RK+j}, 2
        v_add_lshl_u32 v{QV+j}, v{QV+j}, v{RK+j}, 1
        v_add_u32 v{RK+j}, {64*j}, v{PRE if 64*j < NE else LEN}
        ds_write_b32 v{HA+j}, v{IDW+j} offset:{ROW}
        ds_write_b16 v{QV+j}, v{RK+j} offset:{EAD}""")
    a(f"""s_scatdone:
    s_mov_b64 exec, 1
    s_waitcnt lgkmcnt(0)
    ds_write_b64 v{T1}, v[{BV}:{BV+1}] offset:{BND}
    ds_write_b64 v{T1}, v[{BV+2}:{BV+3}] offset:{BND+8}
    ds_add_u32 v{CB}, v{ONE} offset:{C_GO}
    s_mov_b64 exec, -1""")
    stamp(a, 9)
    a.c("wave 0 polls the 64 table flags of its slice")
    a(f"""s_cmp_lg_u32 s{S_W}, 0
    s_cbranch_scc1 k_join
    s_lshl_b32 s{S_Y}, s{S_S}, 9
    s_add_u32 s{S_Y}, s{S_Y}, {WS_FL:#x}
    v_lshl_add_u32 v2, v{LANE}, 3, s{S_Y}
    v_mov_b32 v3, 0x100""")
    wait(a, C_D, 4)
    if oi("fdel", 8): a(f"s_sleep {oi('fdel', 8)}")
    a(f"global_load_dwordx2 v[4:5], v2, s[{P_WS}:{P_WS+1}] sc1")
    flag_poll(a, "s_fp", 2, 4, f"s[{TAG}:{TAG+1}]", oi("fsl", 4))
    arrive(a, C_GO, 3)
    a("s_branch k_join")

def g_role(a):
    R_X, R_GW, R_VW, R_UW, R_O = RA, RB, RC, RD, RE
    BF, ACC_, AR, CO = 0, 64, 96, 112
    XR, OA, CA, SA, CV, XA_ = T1, TID, [T2, T3], LANE, T0, T3
    WA0, WA1, BA, U0, U1, U2 = 96, 97, 98, 99, 100, 101
    SP0, SP1, SXL, SXB, SG8 = S_T, S_BASE, S_N0, S_N1, S_SL
    a("g_role:")
    a(f"s_and_b32 s{S_G}, s{S_W}, 3\ns_and_b32 s{SG8}, s{S_W}, 7")
    srd(a, R_GW, P_GW, 0, 528 * 512)
    srd(a, R_VW, P_VW, 0, 256 * 512)
    a(f"""v_lshrrev_b32 v{U0}, 3, v{LANE}
    v_and_b32 v{U1}, 2, v{U0}
    v_and_b32 v{U2}, 7, v{LANE}
    v_xor_b32 v{U1}, v{U1}, v{U2}
    v_lshlrev_b32 v{U1}, 4, v{U1}
    v_lshl_add_u32 v{WA0}, v{U0}, 9, v{U1}
    v_xor_b32 v{WA1}, 64, v{WA0}""")
    srd(a, R_UW, P_UW, 0, 256 * 512)
    srd(a, R_X, P_X, 0, L.N * 512)
    if "wpf" in OPT:
        nrow = 8 if OPT.get("map", "4") == "4" else 16
        a(f"""s_cmp_ge_u32 s{S_W}, 12
        s_cbranch_scc1 g_nowpf
        s_lshr_b32 s{S_Y}, s2, {3 if nrow == 8 else 4}
        s_mul_i32 s{S_Y}, s{S_Y}, {nrow*512}
        s_lshl_b32 s{S_X}, s{S_S}, 7
        s_add_u32 s{S_Y}, s{S_Y}, s{S_X}
        v_lshlrev_b32 v{U1}, 9, v{LANE}
        s_cmp_eq_u32 s{S_G}, 1
        s_cselect_b64 s[{RE}:{RE+1}], s[{P_VW}:{P_VW+1}], s[{P_GW}:{P_GW+1}]
        s_cmp_eq_u32 s{S_G}, 3
        s_cselect_b64 s[{RE}:{RE+1}], s[{P_UW}:{P_UW+1}], s[{RE}:{RE+1}]
        s_cmp_eq_u32 s{S_G}, 0
        s_cselect_b32 s{S_X}, {256*512}, 0
        s_add_u32 s{S_Y}, s{S_Y}, s{S_X}
        s_mov_b32 s{RE+2}, {512*512}
        s_mov_b32 s{RE+3}, 0x20000
        s_mov_b64 exec, {(1 << nrow) - 1:#x}
        buffer_load_dword v5, v{U1}, s[{RE}:{RE+3}], s{S_Y} offen
        s_mov_b64 exec, -1
        g_nowpf:""")
    a.c("launch nonce: workgroup 0 publishes the clock")
    a(f"""s_sub_u32 s{S_X}, s{S_W}, 15
    s_or_b32 s{S_X}, s2, s{S_X}
    s_cbranch_scc1 g_nononce
    s_memrealtime s[{S_Z}:{S_Z+1}]
    v_mov_b32 v4, 0
    s_waitcnt lgkmcnt(0)
    s_bitset1_b32 s{S_Z+1}, 31
    v_mov_b32 v2, s{S_Z}
    v_mov_b32 v3, s{S_Z+1}
    s_mov_b64 exec, 1
    global_store_dwordx2 v4, v[2:3], s[{P_DBG}:{P_DBG+1}] offset:32 sc1
    s_mov_b64 exec, -1
    g_nononce:
    v_lshrrev_b32 v{U0}, 5, v{LANE}
    v_xor_b32 v{U1}, v{U0}, v{LANE}
    v_lshlrev_b32 v{XA_}, 4, v{U1}
    s_lshl_b32 s{S_X}, s{SG8}, 12
    s_lshl_b32 s{S_Y}, s{S_S}, 7
    s_add_u32 s{S_X}, s{S_X}, s{S_Y}
    s_lshl_b32 s{S_Z}, s{SG8}, 10
    s_mul_i32 s{SXB}, s{S_R}, {L.RN*512}
    s_add_u32 s{S_Q0}, s{SXB}, s{S_Z}
    s_mul_i32 s{SXL}, s{SG8}, {XP}
    s_barrier""")
    def x0():
        for j in range(2):
            a(f"""s_add_u32 m0, s{SXL}, {X0 + j*8*XP}
            s_add_u32 s{S_Y}, s{S_Q0}, {j*8192}
            buffer_load_dwordx4 v{XA_}, s[{R_X}:{R_X+3}], s{S_Y} offen lds""")
    if "x0f" in OPT: x0()
    for m, (sr, row0) in enumerate(((R_GW, 256), (R_VW, 0), (R_GW, 0), (R_UW, 0))):
        for j in range(4):
            a(f"""s_add_u32 m0, s{S_Z}, {m*32768 + j*8192}
            s_add_u32 s{S_Y}, s{S_X}, {j*32768 + row0*512}
            buffer_load_dwordx4 v{WA0 + m % 2}, s[{sr}:{sr+3}], s{S_Y} offen lds""")
            if oi("ww", 0): a(f"s_waitcnt vmcnt({oi('ww', 0)-1})")
    if "x0a" in OPT:
        a(f"s_cmp_lt_u32 s{S_W}, 12\ns_cbranch_scc1 g_nox0")
        x0()
        a(f"s_sub_u32 s{SXL}, s{SXL}, {4*XP}\ns_sub_u32 s{S_Q0}, s{S_Q0}, 4096")
        x0()
        a("g_nox0:")
    elif "x0f" not in OPT: x0()
    arrive(a, C_I)
    if "touch" in OPT:
        a(f"""s_cmp_lg_u32 s{S_W}, 14
        s_cbranch_scc1 g_notouch
        s_load_dword s{S_NT}, s[{P_OUT}:{P_OUT+1}], s{SXB}
        s_mul_i32 s{S_X}, s{S_S}, {L.TBL_SL}""")
        for k in range(2): a(f"s_load_dword s{S_NT}, s[{P_WS}:{P_WS+1}], s{S_X}\ns_add_u32 s{S_X}, s{S_X}, {L.TBL_SL//2 - 64}")
        a(f"s_load_dword s{S_NT}, s[{P_WS}:{P_WS+1}], s{S_X}")
        for off in (L.WS_EA + 0x1ff000, L.WS_EA + 0x3ff000, L.WS_EA + 0x5ff000, L.WS_ID + 0xff000):
            a(f"s_mov_b32 s{S_X}, {off:#x}\ns_load_dword s{S_NT}, s[{P_WS}:{P_WS+1}], s{S_X}")
        a("g_notouch:")
    if "code" in OPT:
        n = oi("code", 14)
        a(f"""s_getpc_b64 s[{S_Q0}:{S_Q0+1}]
        g_pc:
        s_sub_u32 s{S_Q0}, s{S_Q0}, g_pc-{NAME}
        s_subb_u32 s{S_Q0+1}, s{S_Q0+1}, 0
        s_mul_i32 s{S_X}, s{SG8}, {n*128}""")
        for k in range(n): a(f"s_load_dword s{S_NT}, s[{S_Q0}:{S_Q0+1}], s{S_X}\ns_add_u32 s{S_X}, s{S_X}, 128")
    a.c("weight-fragment address: lane = (kh, m, r, c)")
    a(f"""v_bfe_u32 v{U1}, v{LANE}, 2, 2
    v_lshl_add_u32 v{U1}, v{U0}, 3, v{U1}
    v_lshlrev_b32 v{BA}, 7, v{U1}
    v_bfe_u32 v{U1}, v{LANE}, 3, 2
    v_xor_b32 v{U1}, s{S_G}, v{U1}
    v_lshl_add_u32 v{BA}, v{U1}, 5, v{BA}
    v_and_b32 v{U1}, 1, v{LANE}
    v_lshl_add_u32 v{BA}, v{U1}, 4, v{BA}
    v_bfe_u32 v{U2}, v{LANE}, 1, 1
    v_lshl_add_u32 v{BA}, v{U2}, 3, v{BA}
    v_bfe_u32 v{U2}, v{LANE}, 4, 1
    v_lshl_add_u32 v{BA}, v{U2}, 15, v{BA}
    s_cmp_ge_u32 s{S_W}, 12
    s_cselect_b32 s{S_Y}, 0x10000, 0
    v_add_u32 v{BA}, s{S_Y}, v{BA}
    s_mov_b32 s{S_Y}, {RINGS[0]}
    s_cselect_b32 s{S_Y}, {XAU}, s{S_Y}
    s_lshl_b32 s{S_X}, s{S_G}, 6
    s_add_u32 s{S_Y}, s{S_Y}, s{S_X}
    v_xor_b32 v{U2}, v{U0}, v{U1}
    v_lshlrev_b32 v{U2}, 4, v{U2}
    v_lshl_add_u32 v{XR}, v{U1}, 9, v{U2}
    v_bfe_u32 v{U1}, v{LANE}, 1, 4
    v_mul_u32_u24 v{U1}, {XP}, v{U1}
    v_add_u32 v{XR}, v{XR}, v{U1}
    v_add_u32 v{XR}, {X0}, v{XR}
    v_and_b32 v{U1}, 31, v{LANE}
    v_mul_u32_u24 v{U1}, {RS}, v{U1}
    v_lshl_add_u32 v{U1}, v{U0}, 5, v{U1}
    v_add_u32 v{OA}, s{S_Y}, v{U1}
    s_lshl_b32 s{S_Z}, s{S_G}, 10
    s_add_u32 s{SXB}, s{SXB}, s{S_Z}
    s_mul_i32 s{SXL}, s{S_G}, {XP}
    v_lshl_add_u32 v{SA}, v{LANE}, 4, s{S_Z}
    v_lshrrev_b32 v{U1}, 8, v{SA}
    v_lshl_add_u32 v{U1}, v{U1}, 4, v{SA}
    v_add_u32 v{CA[0]}, {RINGS[0]}, v{U1}
    s_mul_i32 s{S_X}, s{S_S}, {L.TBL_SL}
    s_mul_i32 s{S_Y}, s{S_R}, {L.RN*256}
    s_add_u32 s{S_X}, s{S_X}, s{S_Y}""")
    srd(a, R_O, P_WS, L.WS_TBL, L.RN * 256, soff=S_X)
    common_srds(a)
    a(f"s_mov_b32 s{SP0}, 0x07060100\ns_mov_b32 s{SP1}, 0x07060302\n" + ("s_waitcnt vmcnt(4)\ns_cmp_ge_u32 s%d, 12\ns_cbranch_scc1 g_ww\ns_waitcnt vmcnt(0)\ng_ww:" % S_W if "x0a" in OPT else f"s_waitcnt vmcnt({0 if 'x0f' in OPT else 2})"))
    stamp(a, 1)
    if "xpf" in OPT:
        half = OPT.get("map", "4") == "2"
        a(f"s_cmp_ge_u32 s{S_W}, 12\ns_cbranch_scc1 g_noxpf")
        wait(a, C_I, 8)
        a(f"""v_mbcnt_lo_u32_b32 v{U1}, -1, 0
        v_mbcnt_hi_u32_b32 v{U1}, -1, v{U1}
        v_lshlrev_b32 v{U1}, 7, v{U1}
        s_mul_i32 s{S_X}, s{S_R}, {L.RN*512}
        s_lshl_b32 s{S_Y}, s{S_G}, 14
        s_add_u32 s{S_X}, s{S_X}, s{S_Y}
        s_add_u32 s{S_X}, s{S_X}, 16384""")
        if half:
            a(f"""s_and_b32 s{S_Y}, s{S_S}, 1
            s_lshl_b32 s{S_Y}, s{S_Y}, 13
            s_add_u32 s{S_X}, s{S_X}, s{S_Y}
            buffer_load_dword v{CO}, v{U1}, s[{R_X}:{R_X+3}], s{S_X} offen""")
        else:
            a(f"""buffer_load_dword v{CO}, v{U1}, s[{R_X}:{R_X+3}], s{S_X} offen
            s_add_u32 s{S_X}, s{S_X}, 8192
            buffer_load_dword v{CO}, v{U1}, s[{R_X}:{R_X+3}], s{S_X} offen""")
        a("g_noxpf:")
    sync(a, C_W)
    for ks in range(16):
        for hf in range(2):
            r = BF + ks*4 + hf*2
            a(f"ds_read_b64_tr_b16 v[{r}:{r+1}], v{BA} offset:{ks*2048 + hf*512}")
    if "xpf" in OPT: a(f"s_cmp_lt_u32 s{S_W}, 12\ns_cbranch_scc1 g_nw\ns_waitcnt vmcnt(0)\ng_nw:")
    else: a("s_waitcnt vmcnt(0)")
    sync(a, C_F)
    stamp(a, 2)
    K = 0x8000 + (L.HVEXP << 23)
    ARAT, RDAT = oi("arat", 8), oi("rdat", 11)

    XW = oi("xw", 3)
    SIG = [int(y) for y in OPT.get("sig", "6,18,24,28").split(",")]
    HOLD = oi("hold", 30)
    def xst(st):
        for j in range(4):
            a(f"""s_add_u32 m0, s{SXL}, {XS[st] + j*4*XP}
            s_add_u32 s{S_Y}, s{SXB}, {st*16384 + j*4096}
            buffer_load_dwordx4 v{XA_}, s[{R_X}:{R_X+3}], s{S_Y} offen lds""")
    def stream(P):
        ds = []
        def dsop(tag, ins): a(ins); ds.append(tag)
        def dswait(tag):
            i = max(k for k, t in enumerate(ds) if t == tag)
            a(f"s_waitcnt lgkmcnt({min(15, len(ds) - 1 - i)})")
        def rdA(n):
            st, ks = divmod(n, 16)
            if n == 16: a(f"v_add_u32 v{XR}, {(XT - X0) & 0xffffffff:#x}, v{XR}")
            r = AR + (n % 4) * 4
            dsop(("A", n), f"ds_read_b128 v[{r}:{r+3}], v{XR} offset:{max(st-1, 0)*XST + ks*32}")
        def pack(st):
            x = ACC_ + (st % 2) * 16; h = x + 8
            o = [f"v_mul_f32 v{x+r}, 0xbfb8aa3b, v{x+r}" for r in range(8)]
            o += [f"v_add_u32 v{h+r}, {K:#x}, v{h+r}" for r in range(8)]
            o += [f"v_cvt_pk_bf16_f32 v{x+r}, v{x+r}, v{x+r+1}" for r in range(0, 8, 2)]
            o += [f"v_sub_u32_sdwa v{h+r}, v{h+r}, v{x+(r&6)} dst_sel:DWORD dst_unused:UNUSED_PAD src0_sel:DWORD src1_sel:WORD_{r&1}" for r in range(8)]
            o += [f"v_perm_b32 v{h+r}, v{h+r}, v{x+(r&6)}, s{SP1 if r&1 else SP0}" for r in range(8)]
            return o
        def wr(st):
            h = ACC_ + (st % 2) * 16 + 8
            for q in range(2): dsop(("W", st), f"ds_write_b128 v{OA}, v[{h+4*q}:{h+4*q+3}] offset:{16*q}")
            d = (RINGS[(st+1) % 2] - RINGS[st % 2]) if P else STG
            if st < 4: a(f"v_add_u32 v{OA}, {d & 0xffffffff:#x}, v{OA}")
        def copy_rd(st, r=CO):
            for q in range(2): dsop(("C", st), f"ds_read_b128 v[{r+4*q}:{r+4*q+3}], v{CA[st%2]} offset:{q*16*RS}")
        def copy_st(st, r=CO):
            dswait(("C", st))
            for q in range(2):
                a(f"s_mov_b32 s{S_X}, {st*8192 + q*4096}\nbuffer_store_dwordx4 v[{r+4*q}:{r+4*q+3}], v{SA}, s[{R_O}:{R_O+3}], s{S_X} offen{SC}")
        def darr(tag, off):
            a("s_mov_b64 exec, 1")
            dsop(tag, f"ds_add_u32 v{CB}, v{ONE} offset:{off}")
            a("s_mov_b64 exec, -1")
        for n in range(3): rdA(n)
        pend = []
        for n in range(80):
            st, ks = divmod(n, 16)
            c_off = C_X + 4 * st
            if not P:
                for k_, at in enumerate(SIG):
                    if at == n:
                        xs = k_ + 1
                        a(f"s_waitcnt vmcnt({4 * (min(4, xs + XW - 1) - xs)})\ns_mov_b64 exec, 1")
                        dsop(("X", xs), f"ds_add_u32 v{CB}, v{CO} offset:{C_X + 4*k_}")
                        a("s_mov_b64 exec, -1")
                        if xs + XW <= 4: xst(xs + XW)
                if n == HOLD: spin(a, (C_X + 4 * oi("as", 5)) if oi("as", 5) < 5 else C_R2, CO + 1, S_X, n=4, sl=1, mask=0xf, first=False)
            if ks == ARAT: darr(("S", st), c_off)
            if ks == RDAT: dsop(("R", st), f"ds_read_b32 v{CV}, v{CB} offset:{c_off}")
            if ks == 13:
                dswait(("R", st))
                a(f"v_readfirstlane_b32 s{S_X}, v{CV}")
                if P: spin(a, c_off, CV, S_X, n=(0x404 if st < 4 else 4), sl=1, mask=0xf0f)
                elif st < 2: spin(a, c_off, CV, S_X, n=0x400, sl=1, mask=0xf00)
                else: spin(a, c_off, CV, S_X, n=(0x444 if st < 4 else 0x44), sl=1, mask=0xfff)
                if st == 1: stamp(a, 4)
                if st == 3: stamp(a, 5)
                if P and st == 2 and "xpf" in OPT: a("s_waitcnt vmcnt(0)")
                if P and st >= 2: copy_rd(st - 2)
                if P and st == 4: darr("R2", C_R2)
            if P and ks == 15 and st >= 2: copy_st(st - 2)
            if n + 3 < 80: rdA(n + 3)
            dswait(("A", n))
            r = AR + (n % 4) * 4
            c = ACC_ + (st % 2) * 16
            a(f"v_mfma_f32_32x32x16_bf16 v[{c}:{c+15}], v[{BF+ks*4}:{BF+ks*4+3}], v[{r}:{r+3}], " + ("0" if ks == 0 else f"v[{c}:{c+15}]"))
            if ks >= 4:
                for _ in range(4):
                    if pend: a(pend.pop(0))
            if ks == 14 and st >= 1:
                assert not pend
                wr(st - 1)
            if ks == 15: pend = pack(st)
        if P: a(f"ds_read_b32 v{CV}, v{CB} offset:{C_R2}\ns_nop 10")
        else: a("s_nop 11")
        for x in pend: a(x)
        if P:
            a(f"s_waitcnt lgkmcnt(0)\nv_readfirstlane_b32 s{S_X}, v{CV}")
            spin(a, C_R2, CV, S_X, n=4)
        wr(4)
        stamp(a, 6)
        if P:
            sync(a, C_E, n=4)
            copy_rd(3); copy_rd(4, AR)
            copy_st(3); copy_st(4, AR)
            arrive(a, C_PE)

    a(f"s_cmp_ge_u32 s{S_W}, 12\ns_cbranch_scc1 a_role")
    a(f"v_add_u32 v{CA[1]}, {(RINGS[1]-RINGS[0]) & 0xffffffff:#x}, v{CA[0]}")
    if "pprio" in OPT: a(f"s_setprio {OPT['pprio']}")
    stamp(a, 3)
    stream(True)
    a(f"s_setprio {oi('ptail', 3)}")
    stamp(a, 7)
    a(f"""v_mbcnt_lo_u32_b32 v{LANE}, -1, 0
    v_mbcnt_hi_u32_b32 v{LANE}, -1, v{LANE}
    s_lshl_b32 s{S_Y}, s{S_G}, 9
    s_add_u32 s{S_Y}, s{S_Y}, {WS_FE:#x}
    v_lshl_add_u32 v2, v{LANE}, 3, s{S_Y}
    global_load_dwordx2 v[4:5], v2, s[{P_WS}:{P_WS+1}] sc1
    ds_read_b32 v13, v{CB} offset:{C_IDX}
    s_mul_i32 s{S_X}, s{S_G}, {64*L.CHS*32}""")
    srd(a, RD, P_WS, L.WS_EA, 64 * L.CHS * 32, soff=S_X)
    a(f"""v_and_b32 v3, 62, v{LANE}
    s_lshl_b32 s{S_X}, s{S_G}, 11
    s_add_u32 s{S_X}, s{S_X}, {MARK2}
    v_add_u32 v3, s{S_X}, v3
    v_lshl_add_u32 v6, s{S_G}, 4, v{CB}
    v_lshlrev_b32 v7, 4, v{LANE}
    v_add_u32 v12, {32*L.CHS*32}, v7
    s_waitcnt lgkmcnt(0)
    v_readfirstlane_b32 s{S_NT}, v13
    s_cmp_ge_u32 s{S_NT}, 8
    s_cbranch_scc1 p_idx""")
    a.c("indices not ready yet: publish the table first")
    wait(a, C_S3, 1)
    a(f"ds_read_b64 v[0:1], v{CB} offset:{C_TAG}\ns_waitcnt vmcnt(0)")
    publish_done(a, "p_pd0", 0, C_D, 4, False)
    wait(a, C_IDX, 8)
    PX = 16
    a(f"p_idx:\nds_read_b64 v[0:1], v{CB} offset:{C_TAG}\nds_read_b128 v[8:11], v6 offset:{C_BT}")
    for h in range(2):
        for k in range(NK): a(f"ds_read_u16 v{PX+NK*h+k}, v3 offset:{1024*h + 64*k}")
    arrive(a, C_P2)
    a("s_waitcnt lgkmcnt(0)")
    SB, ST = [S_BASE, S_N0], [S_T, S_N1]
    for h in range(2): a(f"v_readfirstlane_b32 s{SB[h]}, v{8+2*h}\nv_readfirstlane_b32 s{ST[h]}, v{9+2*h}")
    k0 = NE // 32
    for h in range(2):
        for k in range(k0): a(f"v_lshl_add_u32 v{PX+NK*h+k}, v{PX+NK*h+k}, 5, v{12 if h else 7}")
    a(f"s_cmp_lt_u32 s{S_NT}, 8\ns_cbranch_scc1 p_pd1\ns_waitcnt vmcnt(1)")
    publish_done(a, "p_pd1", 0, C_D, 4, False)
    stamp(a, 8)
    wait(a, C_P2, 4, sl=0)
    wait(a, C_X + 4, 0x40, mask=0xf0, sl=0)
    flag_poll(a, "p_fp", 2, 4, "v[0:1]", oi("psl", 2))
    stamp(a, 9)
    EW = oi("ew", 8)
    a(f"s_mul_i32 s{S_Z}, s{S_G}, {2*NE*32}\ns_movk_i32 s{S_Y}, 4096")
    for h in range(2):
        for k in range(k0):
            if k % 4 == 0: a(f"s_add_u32 m0, s{S_Z}, {EA_E + h*NE*32 + 1024*k}")
            a(f"s_waitcnt vmcnt({EW-1})\nbuffer_load_dwordx4 v{PX+NK*h+k}, s[{RD}:{RD+3}], {'0' if k < 4 else 's%d' % S_Y} offen offset:{1024*(k%4)}{SC} lds")
        if h == 0:
            for hh in range(2):
                for k in range(k0, NK): a(f"v_lshl_add_u32 v{PX+NK*hh+k}, v{PX+NK*hh+k}, 5, v{12 if hh else 7}")
    a("s_setprio 0")
    consts(a)
    wait(a, C_AE, 4)
    a("s_setprio 3")
    for h in range(2):
        a(f"s_lshl_b32 s{S_Z}, s{SB[h]}, 5")
        for k in range(k0, NK):
            if (k - k0) % 4 == 0: a(f"s_add_u32 m0, s{S_Z}, {EA + 1024*(k-k0)}\ns_movk_i32 s{S_X}, {1024*k}")
            a(f"""s_cmp_gt_u32 s{ST[h]}, {32*k}
            s_cbranch_scc0 p_ld{h}
            s_waitcnt vmcnt({EW-1})
            buffer_load_dwordx4 v{PX+NK*h+k}, s[{RD}:{RD+3}], s{S_X} offen offset:{1024*((k-k0)%4)}{SC} lds""")
        a(f"p_ld{h}:")
    a(f"v_mov_b32 v3, 0x1000")
    arrive(a, C_GO, 3)
    a("s_waitcnt vmcnt(0)")
    arrive(a, C_RDY)
    a("s_branch k_join")
    a("a_role:")
    a(f"v_mov_b32 v{CO}, 0x100")
    for st in range(1, 1 + XW): xst(st)
    arrive(a, C_XI)
    a(f"v_mov_b32 v{ONE}, 16")
    if "aprio" in OPT: a(f"s_setprio {OPT['aprio']}")
    stamp(a, 3)
    stream(False)
    a(f"v_mov_b32 v{ONE}, 1")
    arrive(a, C_AE)
    a("s_setprio 0")
    stamp(a, 7)
    a(f"v_mbcnt_lo_u32_b32 v{LANE}, -1, 0\nv_mbcnt_hi_u32_b32 v{LANE}, -1, v{LANE}")
    consts(a)

def rd_ad(t): return [f"ds_read_b128 v[{AD+4*q}:{AD+4*q+3}], v{PROW} offset:{ROW + 64*t + 16*q}" for q in range(4)]
def gathers(g): return [f"buffer_load_dword v{g+j}, v{AD+slot_of_reg(j)}, s[{R_TBL}:{R_TBL+3}], 0 offen{SC}" for j in range(16)]
def rd_eidx(t): return [f"ds_read_u16 v{EIDX}, v{PEAD} offset:{EAD + 32*t}"]
def rd_a():
    return [f"v_lshl_add_u32 v{EADDR}, v{EIDX}, 5, v{KHC}",
            f"s_mov_b64 exec, s[{S_E0}:{S_E0+1}]", f"ds_read_b128 v[{A0}:{A0+3}], v{EADDR}",
            f"s_mov_b64 exec, s[{S_E1}:{S_E1+1}]", f"ds_read_b128 v[{A1}:{A1+3}], v{EADDR}", "s_mov_b64 exec, -1"]
def rd_xa(x):
    o = [f"s_mov_b32 m0, s{S_RO}"]
    for k in range(4):
        o += [f"s_bitcmp1_b32 s{S_FR}, {k}", f"ds_read_addtid_b32 v{x+k} offset:{XAU}", f"s_cselect_b32 s{S_X}, {RS}, 0"]
        o += [f"s_add_u32 m0, m0, s{S_X}" if k < 3 else f"s_add_u32 s{S_RO}, m0, s{S_X}"]
    o += [f"s_lshr_b64 s[{S_FR}:{S_FR+1}], s[{S_FR}:{S_FR+1}], 4"]
    return o
def bigs(d, x):
    D = f"v[{d}:{d+15}]"
    return [f"v_mfma_f32_32x32x16_bf16 {D}, v[{A0}:{A0+3}], v[{B0}:{B0+3}], 0",
            f"v_mfma_f32_32x32x16_bf16 {D}, v[{A1}:{A1+3}], v[{B1}:{B1+3}], {D}",
            f"v_mfma_f32_32x32x16_bf16 {D}, v[{A2}:{A2+3}], v[{x}:{x+3}], {D}"]
def smalls(d, g):
    return [f"v_mfma_f32_16x16x32_bf16 v[{d+4*q}:{d+4*q+3}], v[{SEL}:{SEL+3}], v[{g+4*q}:{g+4*q+3}], v[{d+4*q}:{d+4*q+3}]" for q in range(4)]
def pk(d, h):
    X = lambda i: f"v[{d+2*i}:{d+2*i+1}]"; H = lambda i: f"v[{h+2*i}:{h+2*i+1}]"; C = f"v[{CC}:{CC+1}]"
    return [f"v_pk_fma_f32 {X(i)}, {X(i)}, {C}, {C} clamp" for i in range(4)] + [
        f"v_pk_mul_f32 {H(0)}, {H(0)}, {X(1)}", f"v_pk_mul_f32 {H(2)}, {H(2)}, {X(3)}",
        f"v_pk_fma_f32 {H(0)}, {H(1)}, {X(0)}, {H(0)}", f"v_pk_fma_f32 {H(2)}, {H(3)}, {X(2)}, {H(2)}",
        f"v_pk_mul_f32 {X(0)}, {X(0)}, {X(1)}", f"v_pk_mul_f32 {X(2)}, {X(2)}, {X(3)}",
        f"v_pk_mul_f32 {X(1)}, {X(0)}, {X(2)}", f"v_pk_mul_f32 {X(3)}, {H(0)}, {X(2)}",
        f"v_pk_fma_f32 {X(3)}, {H(2)}, {X(0)}, {X(3)}"]

def mainloop(a):
    em = lambda ls: [a(x) for x in ls]
    a(f"""k_join:
    s_mov_b32 s{S_E0}, 0x0f0f0f0f
    s_mov_b32 s{S_E0+1}, 0x0f0f0f0f
    s_mov_b32 s{S_E1}, 0xf0f0f0f0
    s_mov_b32 s{S_E1+1}, 0xf0f0f0f0
    s_mov_b32 s{S_FIRST}, 1""")
    if "gearly" in OPT: wait(a, C_GO, 0x108, mask=0xfff)
    else: wait(a, C_GO, 0x4108)
    a(f"""s_lshl_b32 s{S_X}, s{S_W}, 3
    v_mov_b32 v{T0}, s{S_X}
    v_lshlrev_b32 v{T2}, 4, v{LANE}""")
    a(f"""ds_read_b64 v[0:1], v{T0} offset:{BND}
    ds_read_b64 v[2:3], v{T0} offset:{BND+8}
    ds_read_b32 v4, v{ACC} offset:{BND+132}
    ds_read_b128 v[{B0}:{B0+3}], v{T2} offset:{BW}
    ds_read_b128 v[{B1}:{B1+3}], v{T2} offset:{BW+1024}
    s_waitcnt lgkmcnt(2)
    v_readfirstlane_b32 s{S_SL}, v4
    v_readfirstlane_b32 s{S_N0}, v0
    v_readfirstlane_b32 s{S_Q0}, v1
    v_readfirstlane_b32 s{S_N1}, v2
    v_readfirstlane_b32 s{S_NQ}, v3
    v_lshlrev_b32 v{PROW}, 2, v1
    v_lshl_add_u32 v{PEAD}, v1, 1, v{PEAD}
    s_sub_u32 s{S_NQ}, s{S_NQ}, s{S_Q0}
    s_lshr_b32 s{S_NQ}, s{S_NQ}, 2
    s_lshr_b32 s{S_Q0}, s{S_Q0}, 2
    s_mul_i32 s{S_FO}, s{S_N0}, {RS}
    s_cmp_gt_u32 s{S_SL}, {SLOTCAP}
    s_cselect_b32 s{S_NQ}, 0, s{S_NQ}""")
    a(f"""k2_block:
    v_add_u32 v{T2}, s{S_Q0}, v{LANE}""")
    em(rd_ad(0))
    a(f"s_cmp_eq_u32 s{S_NQ}, 0\ns_cbranch_scc1 k2_epi")
    a(f"ds_read_u8 v{T3}, v{T2} offset:{FLG}")
    em(rd_eidx(0))
    a(f"""s_min_u32 s{S_Y}, s{S_NQ}, 64
    s_add_u32 s{S_NT}, s{S_Y}, 3
    s_lshr_b32 s{S_NT}, s{S_NT}, 2
    s_mov_b32 s{S_RO}, s{S_FO}
    v_cmp_gt_u32 vcc, s{S_Y}, v{LANE}
    s_sub_u32 s{S_Y}, s{S_Y}, 1
    s_waitcnt lgkmcnt(0)""")
    em(gathers(G[0])); em(rd_ad(1))
    a(f"""v_cmp_ne_u32 s[{S_FF}:{S_FF+1}], 0, v{T3}
    s_and_b64 s[{S_FF}:{S_FF+1}], s[{S_FF}:{S_FF+1}], vcc
    s_mov_b64 s[{S_FR}:{S_FR+1}], s[{S_FF}:{S_FF+1}]
    s_bitset0_b64 s[{S_FR}:{S_FR+1}], s{S_Y}
    s_cmp_eq_u32 s{S_FIRST}, 0
    s_cbranch_scc1 k2_nobar
""")
    wait(a, C_RDY, 4)
    a(f"""s_mov_b32 s{S_FIRST}, 0
    k2_nobar:
    s_setprio 3""")
    stamp(a, 10)
    a("s_waitcnt lgkmcnt(0)")
    em(rd_a()); em(rd_eidx(1)); em(rd_xa(XA[0]))
    em(gathers(G[1])); em(rd_ad(2))
    a("s_waitcnt lgkmcnt(4)")
    em(bigs(Dd[0], XA[0]))
    em(rd_a()); em(rd_eidx(2)); em(rd_xa(XA[1]))
    a("s_waitcnt vmcnt(16)")
    em(smalls(Dd[0], G[0]))
    a("s_nop 7")
    stamp(a, 11)
    a("k2_loop:")
    for u in range(2):
        c, n = u, 1 - u
        e = [f"v_exp_f32 v{Dd[c]+j}, v{Dd[c]+j}" for j in range(16)]
        b = bigs(Dd[n], XA[n])
        a("s_waitcnt lgkmcnt(4)")
        em([b[0]] + e[0:4] + [b[1]] + e[4:8] + ["s_waitcnt lgkmcnt(0)", b[2]] + e[8:12])
        em(rd_a()); em(rd_eidx(3 + u)); em(e[12:16])
        em(inter(pk(Dd[c], G[c]), pk(Dd[c] + 8, G[c] + 8)))
        a(f"s_cmp_le_u32 s{S_NT}, 2\ns_cbranch_scc1 k2_noload{u}")
        em(gathers(G[c]))
        em(rd_ad(3 + u))
        a(f"s_waitcnt vmcnt(16)\nk2_loaded{u}:")
        rc = [f"v_rcp_f32 v{Dd[c]+8*(k//2)+2+(k%2)}, v{Dd[c]+8*(k//2)+2+(k%2)}" for k in range(4)]
        em(inter(smalls(Dd[n], G[n]), rc))
        for k in range(4):
            a(f"""v_fmac_f32 v{ACC}, v{Dd[c]+8*(k//2)+6+(k%2)}, v{Dd[c]+8*(k//2)+2+(k%2)}
            s_bitcmp1_b32 s{S_FF}, {k}
            s_cbranch_scc0 k2_nofl{u}_{k}
            s_mov_b32 m0, s{S_FO}
            v_fmac_f32 v{XA[c]+k}, v{ACC}, v{CC}
            v_mov_b32 v{ACC}, 0
            ds_write_addtid_b32 v{XA[c]+k} offset:{XAU}
            s_add_u32 s{S_FO}, s{S_FO}, {RS}
            k2_nofl{u}_{k}:""")
        em(rd_xa(XA[c]))
        a(f"s_lshr_b64 s[{S_FF}:{S_FF+1}], s[{S_FF}:{S_FF+1}], 4")
        if u == 1: a(f"v_add_u32 v{PROW}, 128, v{PROW}\nv_add_u32 v{PEAD}, 64, v{PEAD}")
        a(f"""s_sub_u32 s{S_NT}, s{S_NT}, 1
        s_cmp_gt_u32 s{S_NT}, {PRIO[0]}
        s_cbranch_scc1 {'k2_mid' if u == 0 else 'k2_loop'}
        s_setprio 2
        s_cmp_gt_u32 s{S_NT}, {PRIO[1]}
        s_cbranch_scc1 {'k2_mid' if u == 0 else 'k2_loop'}
        s_setprio 1
        s_cmp_gt_u32 s{S_NT}, {PRIO[2]}
        s_cbranch_scc1 {'k2_mid' if u == 0 else 'k2_loop'}
        s_setprio 0
        s_cmp_eq_u32 s{S_NT}, 0""")
        a("s_cbranch_scc1 k2_loopend\nk2_mid:" if u == 0 else "s_cbranch_scc0 k2_loop")
    a(f"""k2_loopend:
    s_cmp_le_u32 s{S_NQ}, 64
    s_cbranch_scc1 k2_epi
    s_sub_u32 s{S_NQ}, s{S_NQ}, 64
    s_add_u32 s{S_Q0}, s{S_Q0}, 64
    s_waitcnt lgkmcnt(0)
    s_nop 7
    s_branch k2_block""")
    for u in range(2): a(f"k2_noload{u}:\ns_waitcnt vmcnt(0)\ns_branch k2_loaded{u}")

def epilogue(a):
    E = 0; CW = 64; C2 = 66
    a("k2_epi:")
    stamp(a, 12)
    a(f"""v_lshrrev_b32 v{T0}, 3, v{LANE}
    v_and_b32 v{T1}, 7, v{LANE}
    v_add_u32 v{T0}, s{S_N0}, v{T0}
    v_mul_u32_u24 v{T2}, {RS}, v{T0}
    v_lshl_add_u32 v{T2}, v{T1}, 5, v{T2}
    v_lshlrev_b32 v{T3}, 9, v{T0}
    v_lshl_add_u32 v{T3}, v{T1}, 4, v{T3}
    s_mul_i32 s{S_X}, s{S_R}, {L.RN*512}
    s_lshl_b32 s{S_Y}, s{S_S}, 7
    s_add_u32 s{S_X}, s{S_X}, s{S_Y}
    s_waitcnt lgkmcnt(0)
    v_mov_b32 v{CW}, 0xb5b8aa3b
    v_mov_b32 v{CW+1}, 0xb5b8aa3b
    v_mov_b32 v{C2}, 0x49800000
    v_mov_b32 v{C2+1}, 0x49800000
    k2_eloop:
    s_cmp_ge_u32 s{S_N0}, s{S_N1}
    s_cbranch_scc1 k2_done
    ds_read_b128 v[{E}:{E+3}], v{T2} offset:{XAU}
    ds_read_b128 v[{E+4}:{E+7}], v{T2} offset:{XAU+16}
    v_cmp_gt_u32 vcc, s{S_N1}, v{T0}
    v_add_u32 v{T0}, 8, v{T0}
    v_add_u32 v{T2}, {8*RS}, v{T2}
    s_waitcnt lgkmcnt(0)""")
    for i in range(4): a(f"v_pk_mul_f32 v[{E+8+2*i}:{E+9+2*i}], v[{E+2*i}:{E+2*i+1}], v[{CW}:{CW+1}]")
    for i in range(8): a(f"v_exp_f32 v{E+8+i}, v{E+8+i}")
    for i in range(4): a(f"v_pk_fma_f32 v[{E+8+2*i}:{E+9+2*i}], v[{E+8+2*i}:{E+9+2*i}], v[{C2}:{C2+1}], v[{C2}:{C2+1}]")
    for i in range(8): a(f"v_rcp_f32 v{E+8+i}, v{E+8+i}")
    for i in range(4): a(f"v_pk_mul_f32 v[{E+2*i}:{E+2*i+1}], v[{E+2*i}:{E+2*i+1}], v[{E+8+2*i}:{E+9+2*i}]")
    for i in range(4): a(f"v_cvt_pk_bf16_f32 v{E+16+i}, v{E+2*i}, v{E+2*i+1}")
    a(f"""s_mov_b64 exec, vcc
    buffer_store_dwordx4 v[{E+16}:{E+19}], v{T3}, s[{R_OUT}:{R_OUT+3}], s{S_X} offen{OPT.get('outsc', ' sc1')}
    s_mov_b64 exec, -1
    v_add_u32 v{T3}, 0x1000, v{T3}
    s_add_u32 s{S_N0}, s{S_N0}, 8
    s_branch k2_eloop
    k2_done:""")

def kernel(a):
    a(f".globl {NAME}\n.p2align 8\n.type {NAME},@function\n{NAME}:")
    a(f"""s_cmp_ge_u32 s2, 256
    s_cbranch_scc1 k_end
    s_load_dwordx16 s[4:19], s[0:1], 0
    s_load_dwordx4 s[20:23], s[0:1], 64""")
    if STAMPS: a(f"s_memrealtime s[{ST0}:{ST0+1}]")
    a(f"v_lshrrev_b32 v1, 6, v0")
    MAP = OPT.get("map", "4")
    if MAP == "4":
        a(f"""s_and_b32 s{S_S}, s2, 3
        s_lshr_b32 s{S_R}, s2, 3
        s_bfe_u32 s{S_X}, s2, 0x10002
        s_lshl_b32 s{S_X}, s{S_X}, 5
        s_add_u32 s{S_R}, s{S_R}, s{S_X}""")
    elif MAP == "2":
        a(f"""s_and_b32 s{S_S}, s2, 1
        s_lshl_b32 s{S_S}, s{S_S}, 1
        s_bfe_u32 s{S_X}, s2, 0x10003
        s_add_u32 s{S_S}, s{S_S}, s{S_X}
        s_lshr_b32 s{S_R}, s2, 4
        s_bfe_u32 s{S_X}, s2, 0x20001
        s_lshl_b32 s{S_X}, s{S_X}, 4
        s_add_u32 s{S_R}, s{S_R}, s{S_X}""")
    else:
        a(f"""s_bfe_u32 s{S_S}, s2, 0x20003
        s_lshr_b32 s{S_R}, s2, 5
        s_and_b32 s{S_X}, s2, 7
        s_lshl_b32 s{S_X}, s{S_X}, 3
        s_add_u32 s{S_R}, s{S_R}, s{S_X}""")
    a(f"""v_readfirstlane_b32 s{S_W}, v1
    s_mul_i32 s{S_X}, s{S_R}, {L.RN}
    s_sub_u32 s{S_NV}, {L.N}, s{S_X}
    s_min_u32 s{S_NV}, s{S_NV}, {L.RN}
    v_and_b32 v{LANE}, 63, v0
    v_mov_b32 v{CB}, {CNT}
    v_mov_b32 v{ONE}, 1""")
    if STAMPS:
        for j in range(1, 16): a(f"s_mov_b64 s[{ST0+2*j}:{ST0+2*j+1}], 0")
    a(f"""s_cmp_ge_u32 s{S_W}, 8
    s_waitcnt lgkmcnt(0)
    s_cbranch_scc1 g_role""")
    s_role(a); g_role(a); mainloop(a); epilogue(a)
    if STAMPS:
        a("s_waitcnt vmcnt(0)"); stamp(a, 13); stamp_flush(a)
    a("k_end:\ns_endpgm")

if __name__ == "__main__":
    a = Asm()
    kernel(a)
    hdr = open("gather_scatter__edge_featured_mpnn_egc__graph.s.ref").read().split("; Override launch")[0]
    out = hdr + f"""; @launch grid=(256,1,1) block=(1024,1,1) lds={LDSZ}
.amdgcn_target "amdgcn-amd-amdhsa--gfx950"
.text
""" + a.text() + f""".section .rodata,"a"
.p2align 6
.amdhsa_kernel {NAME}
  .amdhsa_next_free_vgpr 128
  .amdhsa_next_free_sgpr 102
  .amdhsa_accum_offset 128
  .amdhsa_group_segment_fixed_size 0
  .amdhsa_kernarg_size 80
  .amdhsa_user_sgpr_count 2
  .amdhsa_user_sgpr_kernarg_segment_ptr 1
  .amdhsa_system_sgpr_workgroup_id_x 1
  .amdhsa_float_denorm_mode_32 3
.end_amdhsa_kernel
"""
    open(sys.argv[1], "w").write(out)
```

```python
import sys
from dsl import *
import layout as L

OPT = {}
for x in sys.argv[2:]:
    if x.startswith("--"):
        k, _, val = x[2:].partition("=")
        OPT[k] = val
def oi(k, d): return int(OPT.get(k, d))
STAMPS = "stamps" in OPT
PRIO = [int(y) for y in OPT.get("prio", "4,2,1").split(",")]
NAME = "gather_scatter__edge_featured_mpnn_egc__graph_kernel"
SC = " sc1"

SLOTCAP = 3136
ROW = 0
EAD = ROW + (SLOTCAP + 64) * 4
HIST = EAD + (SLOTCAP + 64) * 2
QST = HIST + 1024
FLG = QST + 1024
BND = FLG + 1024
BW = BND + 256
XAU = BW + 2048
RS = 272; STG = 32 * RS
XP = 1056; XST = 16 * XP
XT = XAU + STG
X0 = 131072
XS = [X0] + [XT + i * XST for i in range(4)]
EA = XAU + 160 * RS
REORD = XT + 4 * XST
RINGS = [113152, 121856]
PERM = 157696
CNT = 163328; H1 = 163584
NE = 192
EA_E = CNT - 8 * NE * 32
LCAP = (EA_E - EA) // 32
MARK = 148480; MARK2 = MARK
LDSZ = 163840
assert XAU == 24576 and REORD <= RINGS[0] and RINGS[0] + STG <= RINGS[1] and RINGS[1] + STG <= X0 and X0 + XST <= MARK and MARK + 8192 <= PERM and PERM + 2560 <= CNT
assert EA % 32 == 0 and BW % 32 == 0 and EA_E >= REORD
(C_S1, C_S2, C_S3, C_S4, C_S5, C_S6, C_W, C_F, C_E, C_REC, C_OVF, C_D, C_I, C_PE, C_AE, C_R2, C_XI, C_GO, C_IDX, C_P2) = [4 * i for i in range(20)]
C_X = 80; C_TAG = 104; C_RDY = 112; C_MK = 116; C_BT = 128
WS_FL = 0x1740000
WS_FE = 0x1750000
FSH = oi('fsh', 3)
NJ = 7; NK = 2 * NJ
SPIN = 0x40000

P_X, P_EA, P_SRC, P_DST, P_UW, P_VW, P_GW, P_OUT, P_DBG, P_WS = 4, 6, 8, 10, 12, 14, 16, 18, 20, 22
S_R, S_S, S_W, S_NV = 24, 25, 26, 27
R_TBL, R_OUT = 28, 32
RA, RB, RC, RD, RE = 36, 40, 44, 48, 52
S_X, S_Y, S_Z, S_T, S_BASE, S_SL, S_N0, S_N1, S_Q0, S_NQ, S_NT, S_FO, S_RO, S_FIRST = range(56, 70)
S_G = 3
S_M = [4 + 2 * j for j in range(7)]
TAG = 18
S_FF, S_FR, S_E0, S_E1 = 8, 10, 12, 14
ST0 = 70

CLK = [int(y) for y in OPT.get("clk", "11,12").split(",")]
def stamp(a, j):
    if not STAMPS: return
    if "only" in OPT and str(j) not in OPT["only"].split(","): return
    a(f"s_memrealtime s[{ST0+2*j}:{ST0+2*j+1}]")
    if j in CLK: a(f"s_memtime s[{ST0+28+2*CLK.index(j)}:{ST0+29+2*CLK.index(j)}]")
    a("s_waitcnt lgkmcnt(0)")
def stamp_flush(a):
    a(f"""s_lshl_b32 s56, s2, 4
    s_add_u32 s56, s56, s{S_W}
    s_lshl_b32 s56, s56, 7
    s_add_u32 s56, s56, {L.WS_STAMP:#x}
    s_add_u32 s58, s{P_WS}, s56
    s_addc_u32 s59, s{P_WS+1}, 0
    s_mov_b64 exec, 1
    v_mov_b32 v0, 0""")
    for j in range(16):
        a(f"v_mov_b32 v2, s{ST0+2*j}\nv_mov_b32 v3, s{ST0+2*j+1}\nglobal_store_dwordx2 v0, v[2:3], s[58:59] offset:{8*j}\ns_nop 1")

G = [0, 16]; Dd = [32, 48]; AD = 64; A0 = 80; A1 = 84; B0 = 88; B1 = 92; SEL = 96; A2 = 100
XA = [104, 108]; CC = 112; ACC = 114; EIDX = 115; EADDR = 116; PROW = 117; PEAD = 118; KHC = 119
LANE = 120; TID = 121
T0, T1, T2, T3 = 122, 123, 124, 125
CB, ONE = 126, 127
EX = 36

def slot_of_reg(j):
    g, i, ab = j // 8, (j % 8) // 2, j % 2
    return (2 * g + ab) * 4 + i

def consts(a):
    a.c("SEL (16x16x32 A operand): lane(row=l%16,kq=l/16): 1.0 at element 2*(row%4) iff kq==row/4")
    a(f"""v_lshrrev_b32 v{T0}, 4, v{LANE}
    v_bfe_u32 v{T1}, v{LANE}, 2, 2
    v_and_b32 v{T2}, 3, v{LANE}
    v_cmp_eq_u32 vcc, v{T0}, v{T1}
    v_mov_b32 v{T3}, 0x3f80
    v_mov_b32 v{CC}, 0x30800000
    v_cndmask_b32 v{T2}, 7, v{T2}, vcc""")
    for k in range(4):
        a(f"v_cmp_eq_u32 vcc, {k}, v{T2}\nv_mov_b32 v{A0+2*k}, 0\nv_mov_b32 v{A0+2*k+1}, 0\nv_cndmask_b32 v{SEL+k}, 0, v{T3}, vcc")
    a.c("A2 (32x32x16 A operand): row=8a+4h+b, reg j=4a+b, quad=2*(j/8)+(j%2); 1.0 at element 2*quad iff kh==h")
    a(f"""v_lshrrev_b32 v{T0}, 5, v{LANE}
    v_bfe_u32 v{T1}, v{LANE}, 2, 1
    v_cmp_eq_u32 vcc, v{T0}, v{T1}
    v_bfe_u32 v{T1}, v{LANE}, 4, 1
    v_and_b32 v{T2}, 1, v{LANE}
    v_lshl_add_u32 v{PEAD}, v{T1}, 1, v{T2}
    v_cndmask_b32 v{T2}, 7, v{PEAD}, vcc""")
    fill = [f"v_bfe_u32 v{T1}, v{LANE}, 3, 1", f"v_lshl_add_u32 v{PEAD}, v{PEAD}, 1, v{T1}",
            f"v_bfe_u32 v{T1}, v{LANE}, 1, 1", f"v_lshl_add_u32 v{PEAD}, v{PEAD}, 1, v{T1}",
            f"v_lshlrev_b32 v{PEAD}, 1, v{PEAD}", f"v_lshlrev_b32 v{KHC}, 4, v{T0}",
            f"v_mov_b32 v{ACC}, 0", f"v_mov_b32 v{CC+1}, 0x30800000"]
    for k in range(4):
        a(f"v_cmp_eq_u32 vcc, {k}, v{T2}\n{fill[2*k]}\n{fill[2*k+1]}\nv_cndmask_b32 v{A2+k}, 0, v{T3}, vcc")

_lab = [0]
def spin(a, off, tv, ts, n=8, sl=0, mask=None, first=True):
    _lab[0] += 1; k = _lab[0]
    if not first: a(f"s_branch sp{k}r")
    a(f"sp{k}:")
    if mask is not None: a(f"s_and_b32 s{ts}, s{ts}, {mask:#x}")
    a(f"s_cmp_ge_u32 s{ts}, {n}\ns_cbranch_scc1 sp{k}e")
    if sl: a(f"s_sleep {sl}")
    a(f"""sp{k}r:
    ds_read_b32 v{tv}, v{CB} offset:{off}
    s_waitcnt lgkmcnt(0)
    v_readfirstlane_b32 s{ts}, v{tv}
    s_branch sp{k}
    sp{k}e:""")
def wait(a, off, n, sl=1, mask=None): spin(a, off, T0, S_X, n, sl, mask, first=False)
def sync(a, off, wait=True, n=8, sl=0):
    a(f"""s_mov_b64 exec, 1
    ds_add_rtn_u32 v{T0}, v{CB}, v{ONE} offset:{off}
    s_mov_b64 exec, -1
    s_waitcnt lgkmcnt(0)
    v_readfirstlane_b32 s{S_X}, v{T0}
    s_add_u32 s{S_X}, s{S_X}, 1""")
    if wait: spin(a, off, T0, S_X, n, sl)
def arrive(a, off, inc=None):
    a(f"s_mov_b64 exec, 1\nds_add_u32 v{CB}, v{inc or ONE} offset:{off}\ns_mov_b64 exec, -1")

def common_srds(a):
    a(f"s_mul_i32 s{S_X}, s{S_S}, {L.TBL_SL}")
    srd(a, R_TBL, P_WS, L.WS_TBL, L.TBL_SL, stride=4, w3=0x800000, soff=S_X)
    srd(a, R_OUT, P_OUT, 0, L.N * 512)

def publish_done(a, lab, V, cnt, n, S):
    sync(a, cnt, wait=False)
    a(f"s_cmp_lg_u32 s{S_X}, {n}\ns_cbranch_scc1 {lab}")
    if S:
        a(f"""s_lshl_b32 s{S_X}, s2, {FSH}
        s_add_u32 s{S_X}, s{S_X}, {WS_FE:#x}""")
    else:
        a(f"""v_readfirstlane_b32 s{TAG}, v{V}
        v_readfirstlane_b32 s{TAG+1}, v{V+1}
        s_lshl_b32 s{S_X}, s{S_S}, 6
        s_add_u32 s{S_X}, s{S_X}, s{S_R}
        s_lshl_b32 s{S_X}, s{S_X}, {FSH}
        s_add_u32 s{S_X}, s{S_X}, {WS_FL:#x}""")
    a(f"""s_atomic_swap_x2 s[{TAG}:{TAG+1}], s[{P_WS}:{P_WS+1}], s{S_X}
    s_mov_b32 s{S_X}, 0
    {lab}:""")

def flag_poll(a, lab, AV, FV, TV, sl):
    a(f"""s_mov_b32 s{S_Y}, {SPIN}
    {lab}:
    s_waitcnt vmcnt(0)
    v_cmp_ne_u64 vcc, {TV}, v[{FV}:{FV+1}]
    s_and_b64 exec, exec, vcc
    s_cbranch_scc0 {lab}e
    s_sleep {sl}
    global_load_dwordx2 v[{FV}:{FV+1}], v{AV}, s[{P_WS}:{P_WS+1}] sc1
    s_sub_u32 s{S_Y}, s{S_Y}, 1
    s_cbranch_scc0 {lab}
    {lab}e:
    s_mov_b64 exec, -1""")

def s_role(a):
    DS, SR, RG, ID, RKK, CN, INC, GRN = 2, 4, 6, 8, 10, 12, 13, 14
    LM, GA, CA_, BWA = 16, 17, 18, 19
    EV = 20
    PV = 32
    CW, NON = 36, 38
    ZV = 40
    IOT, MQ, HD, SP = 48, 52, 56, 60
    IDV = 64
    DEL, PA, MA1, PR2, HB = 88, 89, 90, 91, 92
    M1 = 60
    a(f"""v_mov_b32 v{T2}, 0
    v_mov_b32 v{T3}, 0
    v_lshl_add_u32 v{T1}, v{LANE}, 3, v{CB}
    ds_write_b64 v{T1}, v[{T2}:{T3}]
    s_mul_i32 s{S_X}, s2, {L.CH*4}""")
    srd(a, RA, P_DST, 0, L.CH * 4, soff=S_X)
    a(f"""v_lshlrev_b32 v{T0}, 2, v0
    buffer_load_dword v{DS}, v{T0}, s[{RA}:{RA+3}], 0 offen
    buffer_load_dword v{DS+1}, v{T0}, s[{RA}:{RA+3}], 0 offen offset:2048""")
    srd(a, RB, P_SRC, 0, L.CH * 4, soff=S_X)
    a(f"""buffer_load_dword v{SR}, v{T0}, s[{RB}:{RB+3}], 0 offen
    buffer_load_dword v{SR+1}, v{T0}, s[{RB}:{RB+3}], 0 offen offset:2048""")
    EPF = OPT.get("epf", "b")
    def epf():
        a(f"s_mul_i32 s{S_X}, s2, {L.CH*32}")
        srd(a, RC, P_EA, 0, L.CH * 32, soff=S_X)
        if EPF != "n":
            a(f"""v_subrev_u32 v{T1}, {512-160}, v0
            v_lshlrev_b32 v{T1}, 7, v{T1}
            buffer_load_dword v{EV}, v{T1}, s[{RC}:{RC+3}], 0 offen""")
    if EPF == "b": epf()
    a("s_waitcnt lgkmcnt(0)\ns_barrier")
    if EPF != "b": epf()
    NP = 0 if EPF == "n" else 1
    a(f"s_mul_i32 s{S_X}, s2, {L.CHS*32}")
    srd(a, RD, P_WS, L.WS_EA, L.CH * 32, soff=S_X)
    a(f"s_mul_i32 s{S_X}, s2, {L.CHS*4}")
    srd(a, RE, P_WS, L.WS_ID, L.CHS * 4, soff=S_X)
    a(f"""v_cmp_gt_u32 vcc, {L.CH-512}, v0
    s_mov_b64 s[{M1}:{M1+1}], vcc
    v_lshlrev_b32 v{GA}, 4, v0
    v_add_u32 v{LM}, {MARK}, v{GA}
    v_lshlrev_b32 v{PR2}, 1, v0
    v_and_b32 v{PR2}, -4, v{PR2}
    v_add_u32 v{PR2}, {PERM}, v{PR2}
    v_and_b32 v{HB}, 16, v{GA}
    v_lshlrev_b32 v{ID}, 22, v0
    v_add_u32 v{ID+1}, 0x80000000, v{ID}
    v_mov_b32 v{ZV+4}, 0
    v_lshl_add_u32 v{T1}, v{LANE}, 2, v{CB}
    s_movk_i32 s{S_Y}, {-L.RN}
    s_mov_b32 s{S_Z}, {H1}
    s_waitcnt vmcnt({2+NP})""")
    stamp(a, 1)
    for k in range(2): a(f"v_mul_u32_u24 v{RG+k}, 13358, v{DS+k}")
    for k in range(2): a(f"v_lshrrev_b32 v{RG+k}, 21, v{RG+k}")
    for k in range(2): a(f"v_mad_i32_i24 v{DS+k}, v{RG+k}, s{S_Y}, v{DS+k}")
    for k in range(2): a(f"v_lshl_add_u32 v{RG+k}, v{RG+k}, 2, s{S_Z}")
    a(f"""ds_add_rtn_u32 v{RKK}, v{RG}, v{ONE}
    s_mov_b64 exec, s[{M1}:{M1+1}]
    ds_add_rtn_u32 v{RKK+1}, v{RG+1}, v{ONE}""")
    sync(a, C_S1)
    a(f"ds_read_b32 v{CN}, v{T1} offset:{H1-CNT}")
    srd(a, RA, P_GW, 0, 528 * 512)
    a(f"""v_or_b32 v{ID}, v{ID}, v{DS}
    v_or_b32 v{ID+1}, v{ID+1}, v{DS+1}
    s_waitcnt lgkmcnt(0)
    v_mov_b32 v{INC}, v{CN}""")
    scan(a, "v_add_u32", [INC])
    a(f"""v_sub_u32 v{INC}, v{INC}, v{CN}
    ds_bpermute_b32 v{T2}, v{RG}, v{INC}
    ds_bpermute_b32 v{T3}, v{RG+1}, v{INC}
    v_lshl_or_b32 v{GRN}, v{CN}, 10, v{INC}
    s_mov_b32 s{S_Y}, {PERM}
    s_waitcnt vmcnt({NP})
    v_lshl_or_b32 v{ID}, v{SR}, 8, v{ID}
    v_lshl_or_b32 v{ID+1}, v{SR+1}, 8, v{ID+1}
    s_waitcnt lgkmcnt(0)
    v_add_u32 v{RG}, v{T2}, v{RKK}
    v_add_u32 v{RG+1}, v{T3}, v{RKK+1}
    v_lshl_add_u32 v{DS}, v{RG}, 2, s{S_Y}
    v_lshl_add_u32 v{DS+1}, v{RG+1}, 2, s{S_Y}
    ds_write_b32 v{DS}, v{ID}
    s_mov_b64 exec, s[{M1}:{M1+1}]
    ds_write_b32 v{DS+1}, v{ID+1}""")
    sync(a, C_S2)
    a(f"ds_read_b128 v[{IDV}:{IDV+3}], v{LM} offset:{PERM-MARK}")
    for k in range(3): a(f"ds_read_b32 v{PV+k}, v{PR2} offset:{1024*k}")
    a(f"s_lshl_b32 s{S_X}, s2, 9")
    srd(a, RB, P_WS, L.WS_OFF, 512, soff=S_X)
    GR, LEN, PRE, INC2, MKB = 2, 4, 5, 12, 8
    consts(a)
    a(f"v_lshlrev_b32 v{T0}, 2, v{LANE}\nv_sub_u32 v{T0}, s{S_NV}, v{T0}")
    fill = [f"v_mul_u32_u24 v{IOT}, 0x80008, v{LANE}", f"v_add_u32 v{IOT}, 0x10000, v{IOT}", f"v_add_u32 v{IOT+1}, 0x20002, v{IOT}",
            f"v_add_u32 v{IOT+2}, 0x40004, v{IOT}", f"v_add_u32 v{IOT+3}, 0x60006, v{IOT}", f"v_mul_u32_u24 v{DEL}, {L.CHS}, v{LANE}",
            f"v_lshlrev_b32 v{PA}, 9, v{LANE}", f"v_mov_b32 v{GR}, 0"]
    for k in range(4): a(f"v_cmp_lt_i32 vcc, {k}, v{T0}\n{fill[2*k]}\n{fill[2*k+1]}\nv_cndmask_b32 v{MQ+k}, 0, 4, vcc")
    a(f"""s_lshr_b32 s{S_X}, s2, 3
    s_add_u32 s{S_X}, s{S_X}, {L.N}
    s_lshl_b32 s{S_X}, s{S_X}, 8""")
    for k in range(4): a(f"v_mov_b32 v{ZV+k}, s{S_X}\nv_mov_b32 v{ZV+4+k}, 0\nv_mov_b32 v{SP+k}, {(BW//32) * 0x10001:#x}")
    a(f"""ds_write_b128 v{LM}, v[{ZV+4}:{ZV+7}]
    s_lshl_b32 s{S_N0}, s{S_W}, 10
    s_add_u32 s{S_N0}, s{S_N0}, {MARK}
    v_lshl_add_u32 v{MA1}, v{LANE}, 1, s{S_N0}
    s_lshl_b32 s{S_Z}, s{S_W}, 14
    s_lshl_b32 s{S_Y}, s{S_R}, 3
    s_add_u32 s{S_Z}, s{S_Z}, s{S_Y}
    s_add_u32 s{S_Z}, s{S_Z}, {L.WS_OFF:#x}
    v_add_u32 v{PA}, s{S_Z}, v{PA}""")
    if "shold" in OPT: wait(a, C_I, 8)
    a(f"""s_waitcnt lgkmcnt(1)
    buffer_store_dwordx4 v[{IDV}:{IDV+3}], v{GA}, s[{RE}:{RE+3}], 0 offen{SC}
    global_load_dwordx2 v[{NON}:{NON+1}], v{ZV+4}, s[{P_DBG}:{P_DBG+1}] offset:32 sc1
    s_waitcnt lgkmcnt(0)""")
    EGX = "egx" in OPT
    for k in range(3):
        a(f"""v_lshrrev_b32 v{PV+k}, 22, v{PV+k}
        v_lshl_or_b32 v{PV+k}, v{PV+k}, 5, v{HB}""")
    def eag():
        for k in range(3): a(f"buffer_load_dwordx4 v[{EV+4*k}:{EV+4*k+3}], v{PV+k}, s[{RC}:{RC+3}], 0 offen")
    if not EGX: eag()
    stamp(a, 2)
    GR, LEN, PRE, INC2, MKB = 2, 4, 5, 12, 8
    a(f"""v_lshlrev_b32 v{T2}, 3, v{LANE}
    s_mov_b32 s{S_Y}, {SPIN}
    s_waitcnt vmcnt({0 if EGX else 3})
    s_nonce:
    v_readfirstlane_b32 s{S_NT+1}, v{NON+1}
    v_readfirstlane_b32 s{S_NT}, v{NON}
    s_sub_u32 s{S_Y}, s{S_Y}, 1
    s_cbranch_scc1 s_nonceok
    s_cmp_lg_u32 s{S_NT+1}, 0
    s_cbranch_scc1 s_nonceok
    global_load_dwordx2 v[{NON}:{NON+1}], v{ZV+4}, s[{P_DBG}:{P_DBG+1}] offset:32 sc1
    s_waitcnt vmcnt(0)
    s_branch s_nonce
    s_nonceok:
    s_and_b32 s{S_N1}, s{S_NT+1}, 0xfff
    v_lshl_or_b32 v{GRN}, s{S_N1}, 20, v{GRN}
    v_mov_b32 v{GRN+1}, s{S_NT}
    s_mov_b64 exec, 1
    ds_write_b64 v{CB}, v[{NON}:{NON+1}] offset:{C_TAG}""")
    sync(a, C_S3, wait=False)
    def east():
        a(f"s_movk_i32 s{S_Y}, 8192\ns_movk_i32 s{S_Z}, 16384")
        for k, so in enumerate(("0", f"s{S_Y}", f"s{S_Z}")):
            a(f"buffer_store_dwordx4 v[{EV+4*k}:{EV+4*k+3}], v{GA}, s[{RD}:{RD+3}], {so} offen{SC}")
    a(f"""s_cmp_lg_u32 s{S_X}, 8
    s_cbranch_scc1 s_nopub
    buffer_store_dwordx2 v[{GRN}:{GRN+1}], v{T2}, s[{RB}:{RB+3}], 0 offen{SC}""")
    if EGX:
        a("s_nopub:")
        wait(a, C_XI, 4)
        eag()
    else:
        a("s_waitcnt vmcnt(1)\ns_branch s_pub\ns_nopub:\ns_waitcnt vmcnt(0)\ns_pub:")
        if "esx" in OPT: wait(a, C_XI, 4)
        east()
    stamp(a, 3)
    a(f"""v_lshrrev_b32 v{T0}, 5, v{LANE}
    v_and_b32 v{T2}, 31, v{LANE}
    v_lshlrev_b32 v{T2}, 1, v{T2}
    v_lshl_add_u32 v{CA_}, v{T0}, 12, v{T2}
    s_and_b32 s{S_X}, s{S_W}, 3
    s_lshr_b32 s{S_Y}, s{S_W}, 2
    s_lshl_b32 s{S_T}, s{S_X}, 10
    s_lshl_b32 s{S_Z}, s{S_Y}, 6
    s_add_u32 s{S_T}, s{S_T}, s{S_Z}
    s_lshl_b32 s{S_Z}, s{S_S}, 7
    s_add_u32 s{S_T}, s{S_T}, s{S_Z}
    s_add_u32 s{S_T}, s{S_T}, {512*512}
    buffer_load_ushort v{CW}, v{CA_}, s[{RA}:{RA+3}], s{S_T} offen
    buffer_load_ushort v{CW+1}, v{CA_}, s[{RA}:{RA+3}], s{S_T} offen offset:512
    s_lshl_b32 s{S_X}, s{S_X}, 2
    s_lshl_b32 s{S_Y}, s{S_Y}, 10
    s_add_u32 s{S_X}, s{S_X}, s{S_Y}
    v_lshl_add_u32 v{BWA}, v{LANE}, 4, s{S_X}""")
    common_srds(a)
    a(f"s_mov_b64 s[{TAG}:{TAG+1}], s[{S_NT}:{S_NT+1}]")
    a(f"s_mul_i32 s{S_X}, s{S_W}, {32*L.CHS*4}")
    srd(a, RE, P_WS, L.WS_ID, 32 * L.CHS, stride=4, soff=S_X)
    if not EGX:
        a("s_waitcnt vmcnt(0)")
        publish_done(a, "s_pd", GRN, C_S6, 8, True)
    else: a("s_waitcnt vmcnt(0)")
    if oi("pdel", 0): a(f"s_sleep {oi('pdel', 0)}")
    if "pgate" in OPT: wait(a, C_X + 4 * oi("pgate", 0), 0x400, mask=0xf00, sl=2)
    stamp(a, 4)
    if "sprio" in OPT: a(f"s_setprio {OPT['sprio']}")
    a(f"""s_mov_b32 exec_hi, 0
    global_load_dwordx2 v[{GR}:{GR+1}], v{PA}, s[{P_WS}:{P_WS+1}] sc1""")
    if EGX:
        a("s_mov_b64 exec, -1")
        east()
        a("s_mov_b32 exec_hi, 0")
    a(f"""s_mov_b32 s{S_Y}, {SPIN}
    s_waitcnt vmcnt({3 if EGX else 0})
    s_poll:
    v_lshrrev_b32 v{T0}, 20, v{GR}
    v_cmp_ne_u32 vcc, s{TAG}, v{GR+1}
    v_cmp_ne_u32 s[{S_M[0]}:{S_M[0]+1}], s{S_N1}, v{T0}
    s_or_b64 vcc, vcc, s[{S_M[0]}:{S_M[0]+1}]
    s_cbranch_scc0 s_pollok
    s_mov_b64 exec, vcc
    s_sleep {oi("psl", 2)}
    global_load_dwordx2 v[{GR}:{GR+1}], v{PA}, s[{P_WS}:{P_WS+1}] sc1
    s_sub_u32 s{S_Y}, s{S_Y}, 1
    s_waitcnt vmcnt(0)
    s_cbranch_scc0 s_poll
    v_mov_b32 v{GR}, 0
    s_pollok:
    s_mov_b64 exec, -1""")
    stamp(a, 5)
    IDX, IDW, HA, RK, QV = 64, 28, 64, 72, 20
    a(f"""v_lshlrev_b32 v{CW}, 16, v{CW}
    v_lshlrev_b32 v{CW+1}, 16, v{CW+1}
    v_mul_f32 v{CW}, 0xbfb8aa3b, v{CW}
    v_mul_f32 v{CW+1}, 0xbfb8aa3b, v{CW+1}
    v_bfe_u32 v{LEN}, v{GR}, 10, 10
    v_and_b32 v{GR}, 0x3ff, v{GR}
    v_mov_b32 v{INC2}, v{LEN}
    v_add_u32 v{DEL}, v{DEL}, v{GR}
    v_cvt_pk_bf16_f32 v{CW}, v{CW}, v{CW+1}""")
    for m in ("row_shr:1", "row_shr:2", "row_shr:4", "row_shr:8"):
        a(f"v_add_u32_dpp v{INC2}, v{INC2}, v{INC2} {m} row_mask:0xf bank_mask:0xf bound_ctrl:0\ns_nop 1")
    a(f"""v_add_u32_dpp v{INC2}, v{INC2}, v{INC2} row_bcast:15 row_mask:0xa bank_mask:0xf
    v_cmp_lt_u32 vcc, 0, v{LEN}
    v_sub_u32 v{PRE}, v{INC2}, v{LEN}
    v_readlane_b32 s{S_T}, v{INC2}, 31
    v_sub_u32 v{DEL}, v{DEL}, v{PRE}
    v_lshl_add_u32 v{T0}, v{PRE}, 1, s{S_N0}
    v_subrev_u32 v{INC2}, {NE - 31}, v{INC2}
    s_cmp_gt_u32 s{S_T}, {64*NJ}
    s_cselect_b64 exec, 0, vcc
    ds_write_b16 v{T0}, v{DEL}
    s_mov_b64 exec, -1
    ds_read_b128 v[{MKB}:{MKB+3}], v{LM}
    v_max_i32 v{INC2}, 0, v{INC2}
    v_and_b32 v{INC2}, 0xffffffe0, v{INC2}
    s_mov_b32 exec_lo, 0x80000000
    s_mov_b32 exec_hi, 0
    ds_add_rtn_u32 v{T0}, v{CB}, v{INC2} offset:{C_REC}
    s_mov_b64 exec, -1
    s_waitcnt lgkmcnt(1)""")
    for k in range(4): a(f"v_pk_max_u16 v{MKB+k}, v{MKB+k}, v{MKB+k} op_sel:[0,0] op_sel_hi:[1,0]")
    for k in range(1, 4): a(f"v_pk_max_u16 v{MKB+k}, v{MKB+k}, v{MKB+k-1} op_sel:[0,1] op_sel_hi:[1,1]")
    a(f"v_lshrrev_b32 v{INC2}, 16, v{MKB+3}")
    scan(a, "v_max_u32", [INC2])
    a(f"""v_mov_b32 v{PRE}, 0
    s_waitcnt lgkmcnt(0)
    v_mov_b32_dpp v{PRE}, v{INC2} wave_shr:1 row_mask:0xf bank_mask:0xf
    v_readlane_b32 s{S_BASE}, v{T0}, 31""")
    for k in range(4): a(f"v_pk_max_u16 v{MKB+k}, v{MKB+k}, v{PRE} op_sel:[0,0] op_sel_hi:[1,0]")
    for k in range(4): a(f"v_pk_add_u16 v{HD+k}, v{MKB+k}, v{IOT+k}")
    a(f"ds_write_b128 v{LM}, v[{HD}:{HD+3}]")
    for j in range(NJ): a(f"ds_read_u16 v{IDX+j}, v{MA1} offset:{128*j}")
    a(f"ds_read_b32 v{T1}, v{CB} offset:{C_F}\nds_write_b128 v{LM}, v[{MKB}:{MKB+3}]")
    a.c("capacity guard")
    a(f"""s_add_u32 s{S_X}, s{S_BASE}, s{S_T}
    s_cmp_gt_u32 s{S_X}, {LCAP + NE - 32}
    s_cselect_b32 s{S_T}, {64*NJ+1}, s{S_T}
    s_cmp_gt_u32 s{S_T}, {64*NJ}
    s_cbranch_scc0 s_fits
    s_mov_b32 s{S_T}, 0
    ds_write_b32 v{CB}, v{ONE} offset:{C_OVF}
    s_fits:""")
    for j in range(NJ):
        a(f"s_sub_i32 s{S_X}, s{S_T}, {64*j}\nv_cmp_gt_i32 s[{S_M[j]}:{S_M[j]+1}], s{S_X}, v{LANE}")
    a("s_waitcnt lgkmcnt(0)")
    for j in range(NJ):
        a(f"s_mov_b64 exec, s[{S_M[j]}:{S_M[j]+1}]")
        if j >= 5: a("s_cbranch_execz s_idsdone")
        a(f"buffer_load_dword v{IDW+j}, v{IDX+j}, s[{RE}:{RE+3}], 0 idxen{SC}")
    a(f"s_idsdone:\ns_mov_b64 exec, -1\nv_readfirstlane_b32 s{S_X}, v{T1}")
    stamp(a, 6)
    a(f"""v_mov_b32 v{T2}, s{S_BASE}
    v_mov_b32 v{T3}, s{S_T}
    v_lshl_add_u32 v{GR}, s{S_W}, 3, v{CB}
    s_mov_b64 exec, 1
    ds_write_b64 v{GR}, v[{T2}:{T3}] offset:{C_BT}
    ds_add_u32 v{CB}, v{ONE} offset:{C_IDX}
    s_mov_b64 exec, -1""")
    spin(a, C_F, T0, S_X, sl=1)
    a.c("LDS init of the list area")
    a(f"""ds_write_b32 v{BWA}, v{CW} offset:{BW}
    ds_write_b128 v{GA}, v[{ZV}:{ZV+3}] offset:{ROW}
    v_cmp_gt_u32 vcc, {(HIST-EAD)//16}, v0
    s_mov_b64 exec, vcc
    ds_write_b128 v{GA}, v[{SP}:{SP+3}] offset:{EAD}
    v_cmp_gt_u32 vcc, {(EAD-ROW)//16-512}, v0
    s_mov_b64 exec, vcc
    ds_write_b128 v{GA}, v[{ZV}:{ZV+3}] offset:{ROW+8192}
    v_cmp_gt_u32 vcc, {(BW-HIST)//16}, v0
    s_mov_b64 exec, vcc
    ds_write_b128 v{GA}, v[{ZV+4}:{ZV+7}] offset:{HIST}""")
    sync(a, C_S4)
    a(f"""v_lshlrev_b32 v{T1}, 4, v{LANE}
    s_mul_i32 s{S_G}, s{S_W}, {NE}
    s_add_u32 s{S_G}, s{S_G}, {EA_E//32}
    s_waitcnt vmcnt(0)""")
    if EGX: publish_done(a, "s_pd", GRN, C_S6, 8, True)
    stamp(a, 7)
    for j in range(NJ):
        a(f"v_lshlrev_b32_sdwa v{HA+j}, 2, v{IDW+j} dst_sel:DWORD dst_unused:UNUSED_PAD src0_sel:DWORD src1_sel:BYTE_0")
    for j in range(NJ):
        a(f"s_mov_b64 exec, s[{S_M[j]}:{S_M[j]+1}]")
        if j >= 5: a("s_cbranch_execz s_histdone")
        a(f"ds_add_rtn_u32 v{RK+j}, v{HA+j}, v{ONE} offset:{HIST}")
    a("s_histdone:")
    sync(a, C_S5)
    a(f"ds_read_b128 v[{HD}:{HD+3}], v{T1} offset:{HIST}")
    for j in range(NJ): a(f"v_and_b32 v{IDW+j}, 0x3fff00, v{IDW+j}")
    a(f"""s_add_u32 s{S_X}, s{S_BASE}, {EA//32 - NE}
    v_add_u32 v{LEN}, s{S_X}, v{LANE}
    v_add_u32 v{PRE}, s{S_G}, v{LANE}
    v_lshlrev_b32 v{T2}, 2, v0
    v_and_b32 v{T2}, 0x3fc, v{T2}
    s_waitcnt lgkmcnt(0)""")
    for k in range(4): a(f"v_add_u32 v{HD+k}, 3, v{HD+k}")
    for k in range(4): a(f"v_and_b32 v{HD+k}, -4, v{HD+k}")
    for k in range(4): a(f"v_max_u32 v{HD+k}, v{HD+k}, v{MQ+k}")
    a(f"""v_add_u32 v{HD+1}, v{HD}, v{HD+1}
    v_add_u32 v{HD+2}, v{HD+1}, v{HD+2}
    v_add_u32 v{HD+3}, v{HD+2}, v{HD+3}
    v_mov_b32 v{INC2}, v{HD+3}""")
    scan(a, "v_add_u32", [INC2])
    a(f"""v_sub_u32 v{SP}, v{INC2}, v{HD+3}
    v_readlane_b32 s{S_SL}, v{INC2}, 63
    v_add_u32 v{SP+1}, v{SP}, v{HD}
    v_add_u32 v{SP+2}, v{SP}, v{HD+1}
    v_add_u32 v{SP+3}, v{SP}, v{HD+2}
    ds_write_b128 v{T1}, v[{SP}:{SP+3}] offset:{QST}""")
    for j in range(NJ): a(f"ds_read_b32 v{QV+j}, v{HA+j} offset:{QST}")
    a(f"ds_read_b32 v{T3}, v{T2} offset:{QST+4}")
    stamp(a, 8)
    a(f"""s_lshl_b32 s{S_Z}, s{S_W}, 1
    s_add_u32 s{S_Z}, s{S_Z}, 1
    s_mul_i32 s{S_X}, s{S_SL}, s{S_Z}
    s_add_u32 s{S_X}, s{S_X}, 15""")
    BV = 8
    for t in range(2):
        a(f"s_lshr_b32 s{S_Y}, s{S_X}, 4\ns_add_u32 s{S_X}, s{S_X}, s{S_SL}")
        for k in range(4):
            a(f"v_cmp_gt_u32 vcc, s{S_Y}, v{SP+k}")
            if k == 0: a(f"s_bcnt1_i32_b64 s{S_N0}, vcc")
            else: a(f"s_bcnt1_i32_b64 s{S_FO}, vcc\ns_add_u32 s{S_N0}, s{S_N0}, s{S_FO}")
        a(f"""v_mov_b32 v{BV+2*t}, s{S_N0}
        v_lshlrev_b32 v{BV+2*t+1}, 2, v{BV+2*t}
        ds_read_b32 v{BV+2*t+1}, v{BV+2*t+1} offset:{QST}""")
    a(f"""s_lshl_b32 s{S_X}, s{S_Z}, 3
    v_mov_b32 v{T1}, s{S_X}
    v_cmp_gt_u32 vcc, s{S_NV}, v0
    s_cmp_gt_u32 s{S_SL}, {SLOTCAP}
    s_cbranch_scc1 s_scatdone
    s_waitcnt lgkmcnt(2)
    v_lshrrev_b32 v{T3}, 2, v{T3}
    s_mov_b64 exec, vcc
    ds_write_b8 v{T3}, v{ONE} offset:{FLG-1}""")
    for j in range(NJ):
        a(f"s_mov_b64 exec, s[{S_M[j]}:{S_M[j]+1}]")
        if j >= 5: a("s_cbranch_execz s_scatdone")
        a(f"""v_add_lshl_u32 v{HA+j}, v{QV+j}, v{RK+j}, 2
        v_add_lshl_u32 v{QV+j}, v{QV+j}, v{RK+j}, 1
        v_add_u32 v{RK+j}, {64*j}, v{PRE if 64*j < NE else LEN}
        ds_write_b32 v{HA+j}, v{IDW+j} offset:{ROW}
        ds_write_b16 v{QV+j}, v{RK+j} offset:{EAD}""")
    a(f"""s_scatdone:
    s_mov_b64 exec, 1
    s_waitcnt lgkmcnt(0)
    ds_write_b64 v{T1}, v[{BV}:{BV+1}] offset:{BND}
    ds_write_b64 v{T1}, v[{BV+2}:{BV+3}] offset:{BND+8}
    ds_add_u32 v{CB}, v{ONE} offset:{C_GO}
    s_mov_b64 exec, -1""")
    stamp(a, 9)
    a.c("wave 0 polls the 64 table flags of its slice")
    a(f"""s_cmp_lg_u32 s{S_W}, 0
    s_cbranch_scc1 k_join
    s_lshl_b32 s{S_Y}, s{S_S}, {6+FSH}
    s_add_u32 s{S_Y}, s{S_Y}, {WS_FL:#x}
    v_lshl_add_u32 v2, v{LANE}, {FSH}, s{S_Y}
    v_mov_b32 v3, 0x100""")
    wait(a, C_D, 4)
    if oi("fdel", 8): a(f"s_sleep {oi('fdel', 8)}")
    a(f"global_load_dwordx2 v[4:5], v2, s[{P_WS}:{P_WS+1}] sc1")
    flag_poll(a, "s_fp", 2, 4, f"s[{TAG}:{TAG+1}]", oi("fsl", 4))
    arrive(a, C_GO, 3)
    a("s_branch k_join")

def g_role(a):
    R_X, R_GW, R_VW, R_UW, R_O = RA, RB, RC, RD, RE
    BF, ACC_, AR, CO = 0, 64, 96, 112
    XR, OA, CA, SA, CV, XA_ = T1, TID, [T2, T3], LANE, T0, T3
    WA0, WA1, BA, U0, U1, U2 = 96, 97, 98, 99, 100, 101
    SP0, SP1, SXL, SXB, SG8 = S_T, S_BASE, S_N0, S_N1, S_SL
    a("g_role:")
    a(f"s_and_b32 s{S_G}, s{S_W}, 3\ns_and_b32 s{SG8}, s{S_W}, 7")
    srd(a, R_GW, P_GW, 0, 528 * 512)
    srd(a, R_VW, P_VW, 0, 256 * 512)
    a(f"""v_lshrrev_b32 v{U0}, 3, v{LANE}
    v_and_b32 v{U1}, 2, v{U0}
    v_and_b32 v{U2}, 7, v{LANE}
    v_xor_b32 v{U1}, v{U1}, v{U2}
    v_lshlrev_b32 v{U1}, 4, v{U1}
    v_lshl_add_u32 v{WA0}, v{U0}, 9, v{U1}
    v_xor_b32 v{WA1}, 64, v{WA0}""")
    srd(a, R_UW, P_UW, 0, 256 * 512)
    srd(a, R_X, P_X, 0, L.N * 512)
    if "wpf" in OPT:
        nrow = 8 if OPT.get("map", "4") == "4" else 16
        a(f"""s_cmp_ge_u32 s{S_W}, 12
        s_cbranch_scc1 g_nowpf
        s_lshr_b32 s{S_Y}, s2, {3 if nrow == 8 else 4}
        s_mul_i32 s{S_Y}, s{S_Y}, {nrow*512}
        s_lshl_b32 s{S_X}, s{S_S}, 7
        s_add_u32 s{S_Y}, s{S_Y}, s{S_X}
        v_lshlrev_b32 v{U1}, 9, v{LANE}
        s_cmp_eq_u32 s{S_G}, 1
        s_cselect_b64 s[{RE}:{RE+1}], s[{P_VW}:{P_VW+1}], s[{P_GW}:{P_GW+1}]
        s_cmp_eq_u32 s{S_G}, 3
        s_cselect_b64 s[{RE}:{RE+1}], s[{P_UW}:{P_UW+1}], s[{RE}:{RE+1}]
        s_cmp_eq_u32 s{S_G}, 0
        s_cselect_b32 s{S_X}, {256*512}, 0
        s_add_u32 s{S_Y}, s{S_Y}, s{S_X}
        s_mov_b32 s{RE+2}, {512*512}
        s_mov_b32 s{RE+3}, 0x20000
        s_mov_b64 exec, {(1 << nrow) - 1:#x}
        buffer_load_dword v5, v{U1}, s[{RE}:{RE+3}], s{S_Y} offen
        s_mov_b64 exec, -1
        g_nowpf:""")
    if "xq" in OPT:
        n = oi("xq", 4)
        per = 640 // n // 4
        a(f"""s_cmp_lt_u32 s{S_W}, 12
        s_cbranch_scc1 g_noxq
        v_mul_u32_u24 v{U1}, {128*n}, v{LANE}
        s_mul_i32 s{S_X}, s{S_R}, {L.RN*512}
        s_mul_i32 s{S_Y}, s{S_G}, {20480}
        s_add_u32 s{S_X}, s{S_X}, s{S_Y}
        s_and_b32 s{S_Y}, s{S_S}, {n-1}
        s_lshl_b32 s{S_Y}, s{S_Y}, 7
        s_add_u32 s{S_X}, s{S_X}, s{S_Y}""")
        for k in range(0, per, 64):
            m = min(64, per - k)
            if m < 64: a(f"s_mov_b32 exec_lo, {min(0xffffffff, (1 << min(m, 32)) - 1):#x}\ns_mov_b32 exec_hi, {((1 << max(m-32, 0)) - 1):#x}")
            a(f"buffer_load_dword v5, v{U1}, s[{R_X}:{R_X+3}], s{S_X} offen\ns_add_u32 s{S_X}, s{S_X}, {64*128*n}")
        a("s_mov_b64 exec, -1\ng_noxq:")
    a.c("launch nonce: workgroup 0 publishes the clock")
    a(f"""s_sub_u32 s{S_X}, s{S_W}, 15
    s_or_b32 s{S_X}, s2, s{S_X}
    s_cbranch_scc1 g_nononce
    s_memrealtime s[{S_Z}:{S_Z+1}]
    v_mov_b32 v4, 0
    s_waitcnt lgkmcnt(0)
    s_bitset1_b32 s{S_Z+1}, 31
    v_mov_b32 v2, s{S_Z}
    v_mov_b32 v3, s{S_Z+1}
    s_mov_b64 exec, 1
    global_store_dwordx2 v4, v[2:3], s[{P_DBG}:{P_DBG+1}] offset:32 sc1
    s_mov_b64 exec, -1
    g_nononce:
    v_lshrrev_b32 v{U0}, 5, v{LANE}
    v_xor_b32 v{U1}, v{U0}, v{LANE}
    v_lshlrev_b32 v{XA_}, 4, v{U1}
    s_lshl_b32 s{S_X}, s{SG8}, 12
    s_lshl_b32 s{S_Y}, s{S_S}, 7
    s_add_u32 s{S_X}, s{S_X}, s{S_Y}
    s_lshl_b32 s{S_Z}, s{SG8}, 10
    s_mul_i32 s{SXB}, s{S_R}, {L.RN*512}
    s_add_u32 s{S_Q0}, s{SXB}, s{S_Z}
    s_mul_i32 s{SXL}, s{SG8}, {XP}
    s_barrier""")
    def x0():
        for j in range(2):
            a(f"""s_add_u32 m0, s{SXL}, {X0 + j*8*XP}
            s_add_u32 s{S_Y}, s{S_Q0}, {j*8192}
            buffer_load_dwordx4 v{XA_}, s[{R_X}:{R_X+3}], s{S_Y} offen lds""")
    if "x0f" in OPT: x0()
    for m, (sr, row0) in enumerate(((R_GW, 256), (R_VW, 0), (R_GW, 0), (R_UW, 0))):
        for j in range(4):
            a(f"""s_add_u32 m0, s{S_Z}, {m*32768 + j*8192}
            s_add_u32 s{S_Y}, s{S_X}, {j*32768 + row0*512}
            buffer_load_dwordx4 v{WA0 + m % 2}, s[{sr}:{sr+3}], s{S_Y} offen lds""")
            if oi("ww", 0): a(f"s_waitcnt vmcnt({oi('ww', 0)-1})")
    if "x0a" in OPT:
        a(f"s_cmp_lt_u32 s{S_W}, 12\ns_cbranch_scc1 g_nox0")
        x0()
        a(f"s_sub_u32 s{SXL}, s{SXL}, {4*XP}\ns_sub_u32 s{S_Q0}, s{S_Q0}, 4096")
        x0()
        a("g_nox0:")
    elif "x0f" not in OPT: x0()
    arrive(a, C_I)
    if "touch" in OPT:
        a(f"""s_cmp_lg_u32 s{S_W}, 14
        s_cbranch_scc1 g_notouch
        s_load_dword s{S_NT}, s[{P_OUT}:{P_OUT+1}], s{SXB}
        s_mul_i32 s{S_X}, s{S_S}, {L.TBL_SL}""")
        for k in range(2): a(f"s_load_dword s{S_NT}, s[{P_WS}:{P_WS+1}], s{S_X}\ns_add_u32 s{S_X}, s{S_X}, {L.TBL_SL//2 - 64}")
        a(f"s_load_dword s{S_NT}, s[{P_WS}:{P_WS+1}], s{S_X}")
        for off in (L.WS_EA + 0x1ff000, L.WS_EA + 0x3ff000, L.WS_EA + 0x5ff000, L.WS_ID + 0xff000):
            a(f"s_mov_b32 s{S_X}, {off:#x}\ns_load_dword s{S_NT}, s[{P_WS}:{P_WS+1}], s{S_X}")
        a("g_notouch:")
    if "code" in OPT:
        n = oi("code", 14)
        a(f"""s_getpc_b64 s[{S_Q0}:{S_Q0+1}]
        g_pc:
        s_sub_u32 s{S_Q0}, s{S_Q0}, g_pc-{NAME}
        s_subb_u32 s{S_Q0+1}, s{S_Q0+1}, 0
        s_mul_i32 s{S_X}, s{SG8}, {n*128}""")
        for k in range(n): a(f"s_load_dword s{S_NT}, s[{S_Q0}:{S_Q0+1}], s{S_X}\ns_add_u32 s{S_X}, s{S_X}, 128")
    a.c("weight-fragment address: lane = (kh, m, r, c)")
    a(f"""v_bfe_u32 v{U1}, v{LANE}, 2, 2
    v_lshl_add_u32 v{U1}, v{U0}, 3, v{U1}
    v_lshlrev_b32 v{BA}, 7, v{U1}
    v_bfe_u32 v{U1}, v{LANE}, 3, 2
    v_xor_b32 v{U1}, s{S_G}, v{U1}
    v_lshl_add_u32 v{BA}, v{U1}, 5, v{BA}
    v_and_b32 v{U1}, 1, v{LANE}
    v_lshl_add_u32 v{BA}, v{U1}, 4, v{BA}
    v_bfe_u32 v{U2}, v{LANE}, 1, 1
    v_lshl_add_u32 v{BA}, v{U2}, 3, v{BA}
    v_bfe_u32 v{U2}, v{LANE}, 4, 1
    v_lshl_add_u32 v{BA}, v{U2}, 15, v{BA}
    s_cmp_ge_u32 s{S_W}, 12
    s_cselect_b32 s{S_Y}, 0x10000, 0
    v_add_u32 v{BA}, s{S_Y}, v{BA}
    s_mov_b32 s{S_Y}, {RINGS[0]}
    s_cselect_b32 s{S_Y}, {XAU}, s{S_Y}
    s_lshl_b32 s{S_X}, s{S_G}, 6
    s_add_u32 s{S_Y}, s{S_Y}, s{S_X}
    v_xor_b32 v{U2}, v{U0}, v{U1}
    v_lshlrev_b32 v{U2}, 4, v{U2}
    v_lshl_add_u32 v{XR}, v{U1}, 9, v{U2}
    v_bfe_u32 v{U1}, v{LANE}, 1, 4
    v_mul_u32_u24 v{U1}, {XP}, v{U1}
    v_add_u32 v{XR}, v{XR}, v{U1}
    v_add_u32 v{XR}, {X0}, v{XR}
    v_and_b32 v{U1}, 31, v{LANE}
    v_mul_u32_u24 v{U1}, {RS}, v{U1}
    v_lshl_add_u32 v{U1}, v{U0}, 5, v{U1}
    v_add_u32 v{OA}, s{S_Y}, v{U1}
    s_lshl_b32 s{S_Z}, s{S_G}, 10
    s_add_u32 s{SXB}, s{SXB}, s{S_Z}
    s_mul_i32 s{SXL}, s{S_G}, {XP}
    v_lshl_add_u32 v{SA}, v{LANE}, 4, s{S_Z}
    v_lshrrev_b32 v{U1}, 8, v{SA}
    v_lshl_add_u32 v{U1}, v{U1}, 4, v{SA}
    v_add_u32 v{CA[0]}, {RINGS[0]}, v{U1}
    s_mul_i32 s{S_X}, s{S_S}, {L.TBL_SL}
    s_mul_i32 s{S_Y}, s{S_R}, {L.RN*256}
    s_add_u32 s{S_X}, s{S_X}, s{S_Y}""")
    srd(a, R_O, P_WS, L.WS_TBL, L.RN * 256, soff=S_X)
    common_srds(a)
    a(f"s_mov_b32 s{SP0}, 0x07060100\ns_mov_b32 s{SP1}, 0x07060302\n" + ("s_waitcnt vmcnt(4)\ns_cmp_ge_u32 s%d, 12\ns_cbranch_scc1 g_ww\ns_waitcnt vmcnt(0)\ng_ww:" % S_W if "x0a" in OPT else f"s_waitcnt vmcnt({0 if 'x0f' in OPT else 2})"))
    stamp(a, 1)
    if "xpf" in OPT:
        half = OPT.get("map", "4") == "2"
        a(f"s_cmp_ge_u32 s{S_W}, 12\ns_cbranch_scc1 g_noxpf")
        wait(a, C_I, 8)
        a(f"""v_mbcnt_lo_u32_b32 v{U1}, -1, 0
        v_mbcnt_hi_u32_b32 v{U1}, -1, v{U1}
        v_lshlrev_b32 v{U1}, 7, v{U1}
        s_mul_i32 s{S_X}, s{S_R}, {L.RN*512}
        s_lshl_b32 s{S_Y}, s{S_G}, 14
        s_add_u32 s{S_X}, s{S_X}, s{S_Y}
        s_add_u32 s{S_X}, s{S_X}, 16384""")
        if half:
            a(f"""s_and_b32 s{S_Y}, s{S_S}, 1
            s_lshl_b32 s{S_Y}, s{S_Y}, 13
            s_add_u32 s{S_X}, s{S_X}, s{S_Y}
            buffer_load_dword v{CO}, v{U1}, s[{R_X}:{R_X+3}], s{S_X} offen""")
        else:
            a(f"""buffer_load_dword v{CO}, v{U1}, s[{R_X}:{R_X+3}], s{S_X} offen
            s_add_u32 s{S_X}, s{S_X}, 8192
            buffer_load_dword v{CO}, v{U1}, s[{R_X}:{R_X+3}], s{S_X} offen""")
        a("g_noxpf:")
    sync(a, C_W)
    for ks in range(16):
        for hf in range(2):
            r = BF + ks*4 + hf*2
            a(f"ds_read_b64_tr_b16 v[{r}:{r+1}], v{BA} offset:{ks*2048 + hf*512}")
    if "xpf" in OPT: a(f"s_cmp_lt_u32 s{S_W}, 12\ns_cbranch_scc1 g_nw\ns_waitcnt vmcnt(0)\ng_nw:")
    else: a("s_waitcnt vmcnt(0)")
    sync(a, C_F)
    stamp(a, 2)
    K = 0x8000 + (L.HVEXP << 23)
    ARAT, RDAT = oi("arat", 4), oi("rdat", 8)

    XW = oi("xw", 4)
    SIG = [int(y) for y in OPT.get("sig", "3,6,9,12").split(",")]
    HOLD = oi("hold", 30)
    def xst(st):
        for j in range(4):
            a(f"""s_add_u32 m0, s{SXL}, {XS[st] + j*4*XP}
            s_add_u32 s{S_Y}, s{SXB}, {st*16384 + j*4096}
            buffer_load_dwordx4 v{XA_}, s[{R_X}:{R_X+3}], s{S_Y} offen lds""")
    NR_, LA_ = 6, 5
    def stream(P):
        ds = []
        def dsop(tag, ins): a(ins); ds.append(tag)
        def dswait(tag):
            i = max(k for k, t in enumerate(ds) if t == tag)
            a(f"s_waitcnt lgkmcnt({min(15, len(ds) - 1 - i)})")
        def rdA(n):
            st, ks = divmod(n, 16)
            if n == 16: a(f"v_add_u32 v{XR}, {(XT - X0) & 0xffffffff:#x}, v{XR}")
            r = AR + (n % NR_) * 4
            dsop(("A", n), f"ds_read_b128 v[{r}:{r+3}], v{XR} offset:{max(st-1, 0)*XST + ks*32}")
        def pack(st):
            x = ACC_ + (st % 2) * 16; h = x + 8
            o = [f"v_mul_f32 v{x+r}, 0xbfb8aa3b, v{x+r}" for r in range(8)]
            o += [f"v_add_u32 v{h+r}, {K:#x}, v{h+r}" for r in range(8)]
            o += [f"v_cvt_pk_bf16_f32 v{x+r}, v{x+r}, v{x+r+1}" for r in range(0, 8, 2)]
            o += [f"v_sub_u32_sdwa v{h+r}, v{h+r}, v{x+(r&6)} dst_sel:DWORD dst_unused:UNUSED_PAD src0_sel:DWORD src1_sel:WORD_{r&1}" for r in range(8)]
            o += [f"v_perm_b32 v{h+r}, v{h+r}, v{x+(r&6)}, s{SP1 if r&1 else SP0}" for r in range(8)]
            return o
        def wr(st):
            h = ACC_ + (st % 2) * 16 + 8
            for q in range(2): dsop(("W", st), f"ds_write_b128 v{OA}, v[{h+4*q}:{h+4*q+3}] offset:{16*q}")
            d = (RINGS[(st+1) % 2] - RINGS[st % 2]) if P else STG
            if st < 4: a(f"v_add_u32 v{OA}, {d & 0xffffffff:#x}, v{OA}")
        def copy_rd(st, r=CO):
            for q in range(2): dsop(("C", st), f"ds_read_b128 v[{r+4*q}:{r+4*q+3}], v{CA[st%2]} offset:{q*16*RS}")
        def copy_st(st, r=CO):
            dswait(("C", st))
            for q in range(2):
                a(f"s_mov_b32 s{S_X}, {st*8192 + q*4096}\nbuffer_store_dwordx4 v[{r+4*q}:{r+4*q+3}], v{SA}, s[{R_O}:{R_O+3}], s{S_X} offen{SC}")
        def darr(tag, off):
            a("s_mov_b64 exec, 1")
            dsop(tag, f"ds_add_u32 v{CB}, v{ONE} offset:{off}")
            a("s_mov_b64 exec, -1")
        for n in range(LA_): rdA(n)
        pend = []
        for n in range(80):
            st, ks = divmod(n, 16)
            c_off = C_X + 4 * st
            if not P:
                for k_, at in enumerate(SIG):
                    if at == n:
                        xs = k_ + 1
                        a(f"s_waitcnt vmcnt({4 * (min(4, xs + XW - 1) - xs)})\ns_mov_b64 exec, 1")
                        dsop(("X", xs), f"ds_add_u32 v{CB}, v{T2} offset:{C_X + 4*k_}")
                        a("s_mov_b64 exec, -1")
                        if xs + XW <= 4: xst(xs + XW)
                if n == HOLD: spin(a, (C_X + 4 * oi("as", 5)) if oi("as", 5) < 5 else C_R2, LANE, S_X, n=4, sl=1, mask=0xf, first=False)
            if ks == ARAT: darr(("S", st), c_off)
            if ks == RDAT: dsop(("R", st), f"ds_read_b32 v{CV}, v{CB} offset:{c_off}")
            if ks == 16 - LA_:
                dswait(("R", st))
                a(f"v_readfirstlane_b32 s{S_X}, v{CV}")
                if P: spin(a, c_off, CV, S_X, n=(0x404 if st < 4 else 4), sl=1, mask=0xf0f)
                elif st < 2: spin(a, c_off, CV, S_X, n=0x400, sl=1, mask=0xf00)
                else: spin(a, c_off, CV, S_X, n=(0x444 if st < 4 else 0x44), sl=1, mask=0xfff)
                if st == 1: stamp(a, 4)
                if st == 3: stamp(a, 5)
            cr = ACC_ + ((st + 1) % 2) * 16
            if ks == 14 and P:
                if st == 2 and "xpf" in OPT: a("s_waitcnt vmcnt(0)")
                if st >= 2: copy_rd(st - 2, cr)
                if st == 4: darr("R2", C_R2)
            if n + LA_ < 80: rdA(n + LA_)
            if n % 2 == 0: dswait(("A", n + 1))
            r = AR + (n % NR_) * 4
            c = ACC_ + (st % 2) * 16
            a(f"v_mfma_f32_32x32x16_bf16 v[{c}:{c+15}], v[{BF+ks*4}:{BF+ks*4+3}], v[{r}:{r+3}], " + ("0" if ks == 0 else f"v[{c}:{c+15}]"))
            if ks == 2 and pend: a("s_nop 5")
            if ks >= 2:
                for _ in range(3):
                    if pend: a(pend.pop(0))
            if ks == 14 and st >= 1:
                assert not pend
                wr(st - 1)
            if P and ks == 15 and st >= 2: copy_st(st - 2, cr)
            if ks == 15: pend = pack(st)
        if P: a(f"ds_read_b32 v{CV}, v{CB} offset:{C_R2}\ns_nop 10")
        else: a("s_nop 11")
        for x in pend: a(x)
        if P:
            a(f"s_waitcnt lgkmcnt(0)\nv_readfirstlane_b32 s{S_X}, v{CV}")
            spin(a, C_R2, CV, S_X, n=4)
        wr(4)
        stamp(a, 6)
        if P:
            sync(a, C_E, n=4)
            copy_rd(3, AR + 8); copy_rd(4, AR)
            copy_st(3, AR + 8); copy_st(4, AR)
            arrive(a, C_PE)

    a(f"s_cmp_ge_u32 s{S_W}, 12\ns_cbranch_scc1 a_role")
    a(f"v_add_u32 v{CA[1]}, {(RINGS[1]-RINGS[0]) & 0xffffffff:#x}, v{CA[0]}")
    if "pprio" in OPT: a(f"s_setprio {OPT['pprio']}")
    stamp(a, 3)
    stream(True)
    a(f"s_setprio {oi('ptail', 3)}")
    stamp(a, 7)
    a(f"""v_mbcnt_lo_u32_b32 v{LANE}, -1, 0
    v_mbcnt_hi_u32_b32 v{LANE}, -1, v{LANE}
    s_lshl_b32 s{S_Y}, s{S_G}, {6+FSH}
    s_add_u32 s{S_Y}, s{S_Y}, {WS_FE:#x}
    v_lshl_add_u32 v2, v{LANE}, {FSH}, s{S_Y}
    global_load_dwordx2 v[4:5], v2, s[{P_WS}:{P_WS+1}] sc1
    ds_read_b32 v13, v{CB} offset:{C_IDX}
    s_mul_i32 s{S_X}, s{S_G}, {64*L.CHS*32}""")
    srd(a, RD, P_WS, L.WS_EA, 64 * L.CHS * 32, soff=S_X)
    a(f"""v_and_b32 v3, 62, v{LANE}
    s_lshl_b32 s{S_X}, s{S_G}, 11
    s_add_u32 s{S_X}, s{S_X}, {MARK2}
    v_add_u32 v3, s{S_X}, v3
    v_lshl_add_u32 v6, s{S_G}, 4, v{CB}
    v_lshlrev_b32 v7, 4, v{LANE}
    v_add_u32 v12, {32*L.CHS*32}, v7
    s_waitcnt lgkmcnt(0)
    v_readfirstlane_b32 s{S_NT}, v13
    s_cmp_ge_u32 s{S_NT}, 8
    s_cbranch_scc1 p_idx""")
    a.c("indices not ready yet: publish the table first")
    wait(a, C_S3, 1)
    a(f"ds_read_b64 v[0:1], v{CB} offset:{C_TAG}\ns_waitcnt vmcnt(0)")
    publish_done(a, "p_pd0", 0, C_D, 4, False)
    wait(a, C_IDX, 8)
    PX = 16
    a(f"p_idx:\nds_read_b64 v[0:1], v{CB} offset:{C_TAG}\nds_read_b128 v[8:11], v6 offset:{C_BT}")
    for h in range(2):
        for k in range(NK): a(f"ds_read_u16 v{PX+NK*h+k}, v3 offset:{1024*h + 64*k}")
    arrive(a, C_P2)
    a("s_waitcnt lgkmcnt(0)")
    SB, ST = [S_BASE, S_N0], [S_T, S_N1]
    for h in range(2): a(f"v_readfirstlane_b32 s{SB[h]}, v{8+2*h}\nv_readfirstlane_b32 s{ST[h]}, v{9+2*h}")
    k0 = NE // 32
    for h in range(2):
        for k in range(k0): a(f"v_lshl_add_u32 v{PX+NK*h+k}, v{PX+NK*h+k}, 5, v{12 if h else 7}")
    a(f"s_cmp_lt_u32 s{S_NT}, 8\ns_cbranch_scc1 p_pd1\ns_waitcnt vmcnt(1)")
    publish_done(a, "p_pd1", 0, C_D, 4, False)
    stamp(a, 8)
    wait(a, C_P2, 4, sl=0)
    wait(a, C_X + 4, 0x40, mask=0xf0, sl=0)
    flag_poll(a, "p_fp", 2, 4, "v[0:1]", oi("psl", 2))
    stamp(a, 9)
    EW = oi("ew", 8)
    a(f"s_mul_i32 s{S_Z}, s{S_G}, {2*NE*32}\ns_movk_i32 s{S_Y}, 4096")
    for h in range(2):
        for k in range(k0):
            if k % 4 == 0: a(f"s_add_u32 m0, s{S_Z}, {EA_E + h*NE*32 + 1024*k}")
            a(f"s_waitcnt vmcnt({EW-1})\nbuffer_load_dwordx4 v{PX+NK*h+k}, s[{RD}:{RD+3}], {'0' if k < 4 else 's%d' % S_Y} offen offset:{1024*(k%4)}{SC} lds")
        if h == 0:
            for hh in range(2):
                for k in range(k0, NK): a(f"v_lshl_add_u32 v{PX+NK*hh+k}, v{PX+NK*hh+k}, 5, v{12 if hh else 7}")
    a("s_setprio 0")
    consts(a)
    wait(a, C_AE, 4)
    a("s_setprio 3")
    for h in range(2):
        a(f"s_lshl_b32 s{S_Z}, s{SB[h]}, 5")
        for k in range(k0, NK):
            if (k - k0) % 4 == 0: a(f"s_add_u32 m0, s{S_Z}, {EA + 1024*(k-k0)}\ns_movk_i32 s{S_X}, {1024*k}")
            a(f"""s_cmp_gt_u32 s{ST[h]}, {32*k}
            s_cbranch_scc0 p_ld{h}
            s_waitcnt vmcnt({EW-1})
            buffer_load_dwordx4 v{PX+NK*h+k}, s[{RD}:{RD+3}], s{S_X} offen offset:{1024*((k-k0)%4)}{SC} lds""")
        a(f"p_ld{h}:")
    a(f"v_mov_b32 v3, 0x1000")
    arrive(a, C_GO, 3)
    a("s_waitcnt vmcnt(0)")
    arrive(a, C_RDY)
    a("s_branch k_join")
    a("a_role:")
    a(f"v_mov_b32 v{T2}, 0x100")
    for st in range(1, 1 + XW): xst(st)
    arrive(a, C_XI)
    a(f"v_mov_b32 v{ONE}, 16")
    if "aprio" in OPT: a(f"s_setprio {OPT['aprio']}")
    stamp(a, 3)
    stream(False)
    a(f"v_mov_b32 v{ONE}, 1")
    arrive(a, C_AE)
    a("s_setprio 0")
    stamp(a, 7)
    a(f"v_mbcnt_lo_u32_b32 v{LANE}, -1, 0\nv_mbcnt_hi_u32_b32 v{LANE}, -1, v{LANE}")
    consts(a)

def rd_ad(t): return [f"ds_read_b128 v[{AD+4*q}:{AD+4*q+3}], v{PROW} offset:{ROW + 64*t + 16*q}" for q in range(4)]
def gathers(g): return [f"buffer_load_dword v{g+j}, v{AD+slot_of_reg(j)}, s[{R_TBL}:{R_TBL+3}], 0 offen{SC}" for j in range(16)]
def rd_eidx(t): return [f"ds_read_u16 v{EIDX}, v{PEAD} offset:{EAD + 32*t}"]
def rd_a():
    return [f"v_lshl_add_u32 v{EADDR}, v{EIDX}, 5, v{KHC}",
            f"s_mov_b64 exec, s[{S_E0}:{S_E0+1}]", f"ds_read_b128 v[{A0}:{A0+3}], v{EADDR}",
            f"s_mov_b64 exec, s[{S_E1}:{S_E1+1}]", f"ds_read_b128 v[{A1}:{A1+3}], v{EADDR}", "s_mov_b64 exec, -1"]
def rd_xa(x):
    o = [f"s_mov_b32 m0, s{S_RO}"]
    for k in range(4):
        o += [f"s_bitcmp1_b32 s{S_FR}, {k}", f"ds_read_addtid_b32 v{x+k} offset:{XAU}", f"s_cselect_b32 s{S_X}, {RS}, 0"]
        o += [f"s_add_u32 m0, m0, s{S_X}" if k < 3 else f"s_add_u32 s{S_RO}, m0, s{S_X}"]
    o += [f"s_lshr_b64 s[{S_FR}:{S_FR+1}], s[{S_FR}:{S_FR+1}], 4"]
    return o
def bigs(d, x):
    D = f"v[{d}:{d+15}]"
    return [f"v_mfma_f32_32x32x16_bf16 {D}, v[{A0}:{A0+3}], v[{B0}:{B0+3}], 0",
            f"v_mfma_f32_32x32x16_bf16 {D}, v[{A1}:{A1+3}], v[{B1}:{B1+3}], {D}",
            f"v_mfma_f32_32x32x16_bf16 {D}, v[{A2}:{A2+3}], v[{x}:{x+3}], {D}"]
def smalls(d, g):
    return [f"v_mfma_f32_16x16x32_bf16 v[{d+4*q}:{d+4*q+3}], v[{SEL}:{SEL+3}], v[{g+4*q}:{g+4*q+3}], v[{d+4*q}:{d+4*q+3}]" for q in range(4)]
def pk(d, h):
    X = lambda i: f"v[{d+2*i}:{d+2*i+1}]"; H = lambda i: f"v[{h+2*i}:{h+2*i+1}]"; C = f"v[{CC}:{CC+1}]"
    return [f"v_pk_fma_f32 {X(i)}, {X(i)}, {C}, {C} clamp" for i in range(4)] + [
        f"v_pk_mul_f32 {H(0)}, {H(0)}, {X(1)}", f"v_pk_mul_f32 {H(2)}, {H(2)}, {X(3)}",
        f"v_pk_fma_f32 {H(0)}, {H(1)}, {X(0)}, {H(0)}", f"v_pk_fma_f32 {H(2)}, {H(3)}, {X(2)}, {H(2)}",
        f"v_pk_mul_f32 {X(0)}, {X(0)}, {X(1)}", f"v_pk_mul_f32 {X(2)}, {X(2)}, {X(3)}",
        f"v_pk_mul_f32 {X(1)}, {X(0)}, {X(2)}", f"v_pk_mul_f32 {X(3)}, {H(0)}, {X(2)}",
        f"v_pk_fma_f32 {X(3)}, {H(2)}, {X(0)}, {X(3)}"]

NP_ = [120, 124]; DP_ = [122, 126]
def P2(r): return f"v[{r}:{r+1}]"
def seq(d, h, g):
    X = lambda i: P2(d + 2*i); H = lambda i: P2(h + 2*i); N = P2(NP_[g]); D = P2(DP_[g])
    o = [f"v_pk_add_f32 {D}, {X(0)}, 1.0 op_sel_hi:[1,0]", f"v_pk_fma_f32 {N}, {H(0)}, {X(1)}, {H(0)}",
         f"v_pk_fma_f32 {N}, {H(1)}, {D}, {N}", f"v_pk_fma_f32 {D}, {D}, {X(1)}, {D}"]
    for i in (2, 3):
        o += [f"v_pk_fma_f32 {N}, {N}, {X(i)}, {N}", f"v_pk_fma_f32 {N}, {H(i)}, {D}, {N}", f"v_pk_fma_f32 {D}, {D}, {X(i)}, {D}"]
    return o
def safe(d, h, g):
    return pk(d, h) + [f"v_mov_b32 v{d}, 0x4e800000", f"v_mov_b32 v{NP_[g]}, v{d+6}", f"v_mov_b32 v{NP_[g]+1}, v{d+7}",
                       f"v_mul_f32 v{DP_[g]}, v{d}, v{d+2}", f"v_mul_f32 v{DP_[g]+1}, v{d}, v{d+3}"]
def check(lab, ng=2):
    if ng == 2: o = [f"v_fma_f32 v{EADDR}, v{DP_[0]}, v{DP_[0]+1}, v{DP_[1]}", f"v_add_f32 v{EADDR}, v{EADDR}, v{DP_[1]+1}"]
    else: o = [f"v_add_f32 v{EADDR}, v{DP_[0]}, v{DP_[0]+1}"]
    return o + [f"v_cmp_ngt_f32 vcc, 0x57800000, v{EADDR}", f"s_cbranch_vccnz {lab}"]
def accum(a, c, ks, tag):
    for k in ks:
        a(f"""v_fmac_f32 v{ACC}, v{NP_[k//2]+k%2}, v{DP_[k//2]+k%2}
        s_bitcmp1_b32 s{S_FF}, {k}
        s_cbranch_scc0 k2_nofl{tag}_{k}
        s_mov_b32 m0, s{S_FO}
        v_add_f32 v{XA[c]+k}, v{XA[c]+k}, v{ACC}
        v_mov_b32 v{ACC}, 0
        ds_write_addtid_b32 v{XA[c]+k} offset:{XAU}
        s_add_u32 s{S_FO}, s{S_FO}, {RS}
        k2_nofl{tag}_{k}:""")

def mainloop(a):
    em = lambda ls: [a(x) for x in ls]
    a(f"""k_join:
    s_mov_b32 s{S_E0}, 0x0f0f0f0f
    s_mov_b32 s{S_E0+1}, 0x0f0f0f0f
    s_mov_b32 s{S_E1}, 0xf0f0f0f0
    s_mov_b32 s{S_E1+1}, 0xf0f0f0f0
    s_mov_b32 s{S_FIRST}, 1""")
    if "contig" in OPT:
        a(f"""s_and_b32 s{S_Y}, s{S_W}, 3
        s_lshl_b32 s{S_Y}, s{S_Y}, 2
        s_lshr_b32 s{S_Z}, s{S_W}, 2
        s_add_u32 s{S_Y}, s{S_Y}, s{S_Z}
        s_lshl_b32 s{S_Y}, s{S_Y}, 3""")
    else: a(f"s_lshl_b32 s{S_Y}, s{S_W}, 3")
    a(f"v_mov_b32 v{T1}, s{S_Y}\nv_lshlrev_b32 v{T2}, 4, v{LANE}")
    wait(a, C_GO, 8, mask=0xf)
    a(f"""ds_read_b64 v[0:1], v{T1} offset:{BND}
    ds_read_b64 v[2:3], v{T1} offset:{BND+8}
    ds_read_b32 v4, v{ACC} offset:{BND+132}
    ds_read_b128 v[{B0}:{B0+3}], v{T2} offset:{BW}
    ds_read_b128 v[{B1}:{B1+3}], v{T2} offset:{BW+1024}
    s_waitcnt lgkmcnt(2)
    v_readfirstlane_b32 s{S_SL}, v4
    v_readfirstlane_b32 s{S_N0}, v0
    v_readfirstlane_b32 s{S_Q0}, v1
    v_readfirstlane_b32 s{S_N1}, v2
    v_readfirstlane_b32 s{S_NQ}, v3
    v_lshlrev_b32 v{PROW}, 2, v1
    v_lshl_add_u32 v{PEAD}, v1, 1, v{PEAD}
    s_sub_u32 s{S_NQ}, s{S_NQ}, s{S_Q0}
    s_lshr_b32 s{S_NQ}, s{S_NQ}, 2
    s_lshr_b32 s{S_Q0}, s{S_Q0}, 2
    s_mul_i32 s{S_FO}, s{S_N0}, {RS}
    s_cmp_gt_u32 s{S_SL}, {SLOTCAP}
    s_cselect_b32 s{S_NQ}, 0, s{S_NQ}""")
    a(f"""k2_block:
    v_add_u32 v{T2}, s{S_Q0}, v{LANE}""")
    em(rd_ad(0))
    a(f"s_cmp_eq_u32 s{S_NQ}, 0\ns_cbranch_scc1 k2_epi")
    a(f"ds_read_u8 v{T3}, v{T2} offset:{FLG}")
    em(rd_eidx(0))
    a(f"""s_min_u32 s{S_Y}, s{S_NQ}, 64
    s_add_u32 s{S_NT}, s{S_Y}, 3
    s_lshr_b32 s{S_NT}, s{S_NT}, 2
    s_mov_b32 s{S_RO}, s{S_FO}
    v_cmp_gt_u32 vcc, s{S_Y}, v{LANE}
    s_sub_u32 s{S_Y}, s{S_Y}, 1
    s_and_b32 s{S_T}, s{S_Y}, 2
    s_waitcnt lgkmcnt(0)
    v_cmp_ne_u32 s[{S_FF}:{S_FF+1}], 0, v{T3}
    s_and_b64 s[{S_FF}:{S_FF+1}], s[{S_FF}:{S_FF+1}], vcc
    s_mov_b64 s[{S_FR}:{S_FR+1}], s[{S_FF}:{S_FF+1}]
    s_bitset0_b64 s[{S_FR}:{S_FR+1}], s{S_Y}
    s_cmp_eq_u32 s{S_FIRST}, 0
    s_cbranch_scc1 k2_g0""")
    if "gearly" in OPT: wait(a, C_GO, 0x108, mask=0xfff)
    else: wait(a, C_GO, 0x4108)
    a("k2_g0:")
    em(gathers(G[0])); em(rd_ad(1))
    a(f"s_cmp_eq_u32 s{S_FIRST}, 0\ns_cbranch_scc1 k2_nobar")
    wait(a, C_RDY, 4)
    a(f"""s_mov_b32 s{S_FIRST}, 0
    k2_nobar:
    s_setprio 3""")
    stamp(a, 10)
    a("s_waitcnt lgkmcnt(0)")
    em(rd_a()); em(rd_eidx(1)); em(rd_xa(XA[0]))
    em(gathers(G[1])); em(rd_ad(2))
    a("s_waitcnt lgkmcnt(4)")
    em(bigs(Dd[0], XA[0]))
    em(rd_a()); em(rd_eidx(2)); em(rd_xa(XA[1]))
    a("s_waitcnt vmcnt(16)")
    em(smalls(Dd[0], G[0]))
    stamp(a, 11)
    a(f"s_nop 5\ns_cmp_eq_u32 s{S_NT}, 1\ns_cbranch_scc1 k2_last0")
    a("k2_loop:")
    rc = [f"v_rcp_f32 v{DP_[k//2]+k%2}, v{DP_[k//2]+k%2}" for k in range(4)]
    for u in range(2):
        c, n = u, 1 - u
        e = [f"v_exp_f32 v{Dd[c]+j}, v{Dd[c]+j}" for j in range(16)]
        b = bigs(Dd[n], XA[n])
        a("s_waitcnt lgkmcnt(4)")
        em([b[0]] + e[0:4] + [b[1]] + e[4:8] + ["s_waitcnt lgkmcnt(0)", b[2]] + e[8:12])
        em(rd_a()); em(rd_eidx(3 + u)); em(e[12:16])
        em(inter(seq(Dd[c], G[c], 0), seq(Dd[c] + 8, G[c] + 8, 1)))
        em(check(f"k2_safe{u}"))
        a(f"k2_ok{u}:\ns_cmp_le_u32 s{S_NT}, 2\ns_cbranch_scc1 k2_noload{u}")
        em(gathers(G[c]))
        em(rd_ad(3 + u))
        a(f"s_waitcnt vmcnt(16)\nk2_loaded{u}:")
        em(inter(smalls(Dd[n], G[n]), rc))
        accum(a, c, range(4), str(u))
        em(rd_xa(XA[c]))
        a(f"s_lshr_b64 s[{S_FF}:{S_FF+1}], s[{S_FF}:{S_FF+1}], 4")
        if u == 1: a(f"v_add_u32 v{PROW}, 128, v{PROW}\nv_add_u32 v{PEAD}, 64, v{PEAD}")
        nx = 'k2_mid' if u == 0 else 'k2_loop'
        a(f"""s_sub_u32 s{S_NT}, s{S_NT}, 1
        s_cmp_gt_u32 s{S_NT}, {PRIO[0]}
        s_cbranch_scc1 {nx}
        s_setprio 2
        s_cmp_gt_u32 s{S_NT}, {PRIO[1]}
        s_cbranch_scc1 {nx}
        s_setprio 1
        s_cmp_gt_u32 s{S_NT}, 1""")
        a(f"s_cbranch_scc0 k2_last1\nk2_mid:" if u == 0 else "s_cbranch_scc1 k2_loop")
    for c in range(2):
        e = [f"v_exp_f32 v{Dd[c]+j}, v{Dd[c]+j}" for j in range(16)]
        a(f"k2_last{c}:\ns_setprio {oi('lprio', 0)}\ns_cmp_eq_u32 s{S_T}, 0\ns_cbranch_scc1 k2_half{c}")
        em(e); em(inter(seq(Dd[c], G[c], 0), seq(Dd[c] + 8, G[c] + 8, 1)))
        em(check(f"k2_safe{c+2}"))
        a(f"k2_ok{c+2}:"); em(rc)
        accum(a, c, range(4), f"l{c}")
        a(f"s_branch k2_loopend\nk2_half{c}:")
        em(e[:8]); em(seq(Dd[c], G[c], 0))
        em(check(f"k2_safe{c+4}", 1))
        a(f"k2_ok{c+4}:"); em(rc[:2]); a("s_nop 0")
        accum(a, c, range(2), f"h{c}")
        if c == 0: a("s_branch k2_loopend")
    a(f"""k2_loopend:
    v_mbcnt_lo_u32_b32 v{LANE}, -1, 0
    v_mbcnt_hi_u32_b32 v{LANE}, -1, v{LANE}
    s_cmp_le_u32 s{S_NQ}, 64
    s_cbranch_scc1 k2_epi
    s_sub_u32 s{S_NQ}, s{S_NQ}, 64
    s_add_u32 s{S_Q0}, s{S_Q0}, 64
    v_add_u32 v{PROW}, 128, v{PROW}
    v_add_u32 v{PEAD}, 64, v{PEAD}
    s_waitcnt lgkmcnt(0)
    s_branch k2_block""")
    for u in range(2): a(f"k2_noload{u}:\ns_waitcnt vmcnt(0)\ns_branch k2_loaded{u}")
    for u in range(6):
        c = u % 2
        a(f"k2_safe{u}:")
        em(safe(Dd[c], G[c], 0))
        if u < 4: em(safe(Dd[c] + 8, G[c] + 8, 1))
        a(f"s_branch k2_ok{u}")

def epilogue(a):
    E = 0; CW = 64; C2 = 66
    OSC = {"": " sc1", "sc1": " sc1", "plain": "", "nt": " nt"}[OPT.get("outsc", "")]
    a("k2_epi:")
    stamp(a, 12)
    a(f"""v_lshrrev_b32 v{T0}, 3, v{LANE}
    v_and_b32 v{T1}, 7, v{LANE}
    v_add_u32 v{T0}, s{S_N0}, v{T0}
    v_mul_u32_u24 v{T2}, {RS}, v{T0}
    v_lshl_add_u32 v{T2}, v{T1}, 5, v{T2}
    v_lshlrev_b32 v{T3}, 9, v{T0}
    v_lshl_add_u32 v{T3}, v{T1}, 4, v{T3}
    s_mul_i32 s{S_X}, s{S_R}, {L.RN*512}
    s_lshl_b32 s{S_Y}, s{S_S}, 7
    s_add_u32 s{S_X}, s{S_X}, s{S_Y}
    s_waitcnt vmcnt(0) lgkmcnt(0)
    v_mov_b32 v{CW}, 0xb5b8aa3b
    v_mov_b32 v{CW+1}, 0xb5b8aa3b
    v_mov_b32 v{C2}, 0x49800000
    v_mov_b32 v{C2+1}, 0x49800000""")
    def silu(n):
        for i in range(n): a(f"v_pk_mul_f32 v[{E+8+2*i}:{E+9+2*i}], v[{E+2*i}:{E+2*i+1}], v[{CW}:{CW+1}]")
        for i in range(2*n): a(f"v_exp_f32 v{E+8+i}, v{E+8+i}")
        for i in range(n): a(f"v_pk_fma_f32 v[{E+8+2*i}:{E+9+2*i}], v[{E+8+2*i}:{E+9+2*i}], v[{C2}:{C2+1}], v[{C2}:{C2+1}]")
        for i in range(2*n): a(f"v_rcp_f32 v{E+8+i}, v{E+8+i}")
        for i in range(n): a(f"v_pk_mul_f32 v[{E+2*i}:{E+2*i+1}], v[{E+2*i}:{E+2*i+1}], v[{E+8+2*i}:{E+9+2*i}]")
        for i in range(n): a(f"v_cvt_pk_bf16_f32 v{E+16+i}, v{E+2*i}, v{E+2*i+1}")
    a(f"""k2_eloop:
    s_add_u32 s{S_Y}, s{S_N0}, 4
    s_cmp_ge_u32 s{S_Y}, s{S_N1}
    s_cbranch_scc1 k2_e4
    ds_read_b128 v[{E}:{E+3}], v{T2} offset:{XAU}
    ds_read_b128 v[{E+4}:{E+7}], v{T2} offset:{XAU+16}
    v_cmp_gt_u32 vcc, s{S_N1}, v{T0}
    v_add_u32 v{T0}, 8, v{T0}
    v_add_u32 v{T2}, {8*RS}, v{T2}
    s_waitcnt lgkmcnt(0)""")
    silu(4)
    a(f"""s_mov_b64 exec, vcc
    buffer_store_dwordx4 v[{E+16}:{E+19}], v{T3}, s[{R_OUT}:{R_OUT+3}], s{S_X} offen{OSC}
    s_mov_b64 exec, -1
    v_add_u32 v{T3}, 0x1000, v{T3}
    s_add_u32 s{S_N0}, s{S_N0}, 8
    s_branch k2_eloop
    k2_e4:
    s_cmp_ge_u32 s{S_N0}, s{S_N1}
    s_cbranch_scc1 k2_done
    v_lshrrev_b32 v{T0}, 4, v{LANE}
    v_and_b32 v{T1}, 15, v{LANE}
    v_add_u32 v{T0}, s{S_N0}, v{T0}
    v_mul_u32_u24 v{T2}, {RS}, v{T0}
    v_lshl_add_u32 v{T2}, v{T1}, 4, v{T2}
    ds_read_b128 v[{E}:{E+3}], v{T2} offset:{XAU}
    v_lshlrev_b32 v{T3}, 9, v{T0}
    v_lshl_add_u32 v{T3}, v{T1}, 3, v{T3}
    v_cmp_gt_u32 vcc, s{S_N1}, v{T0}
    s_waitcnt lgkmcnt(0)""")
    silu(2)
    a(f"""s_mov_b64 exec, vcc
    buffer_store_dwordx2 v[{E+16}:{E+17}], v{T3}, s[{R_OUT}:{R_OUT+3}], s{S_X} offen{OSC}
    s_mov_b64 exec, -1
    k2_done:""")

def kernel(a):
    a(f".globl {NAME}\n.p2align 8\n.type {NAME},@function\n{NAME}:")
    a(f"""s_cmp_ge_u32 s2, 256
    s_cbranch_scc1 k_end
    s_load_dwordx16 s[4:19], s[0:1], 0
    s_load_dwordx4 s[20:23], s[0:1], 64""")
    if STAMPS: a(f"s_memrealtime s[{ST0}:{ST0+1}]")
    a(f"v_lshrrev_b32 v1, 6, v0")
    MAP = OPT.get("map", "4")
    if MAP == "4":
        a(f"""s_and_b32 s{S_S}, s2, 3
        s_lshr_b32 s{S_R}, s2, 3
        s_bfe_u32 s{S_X}, s2, 0x10002
        s_lshl_b32 s{S_X}, s{S_X}, 5
        s_add_u32 s{S_R}, s{S_R}, s{S_X}""")
    elif MAP == "2":
        a(f"""s_and_b32 s{S_S}, s2, 1
        s_lshl_b32 s{S_S}, s{S_S}, 1
        s_bfe_u32 s{S_X}, s2, 0x10003
        s_add_u32 s{S_S}, s{S_S}, s{S_X}
        s_lshr_b32 s{S_R}, s2, 4
        s_bfe_u32 s{S_X}, s2, 0x20001
        s_lshl_b32 s{S_X}, s{S_X}, 4
        s_add_u32 s{S_R}, s{S_R}, s{S_X}""")
    else:
        a(f"""s_bfe_u32 s{S_S}, s2, 0x20003
        s_lshr_b32 s{S_R}, s2, 5
        s_and_b32 s{S_X}, s2, 7
        s_lshl_b32 s{S_X}, s{S_X}, 3
        s_add_u32 s{S_R}, s{S_R}, s{S_X}""")
    a(f"""v_readfirstlane_b32 s{S_W}, v1
    s_mul_i32 s{S_X}, s{S_R}, {L.RN}
    s_sub_u32 s{S_NV}, {L.N}, s{S_X}
    s_min_u32 s{S_NV}, s{S_NV}, {L.RN}
    v_and_b32 v{LANE}, 63, v0
    v_mov_b32 v{CB}, {CNT}
    v_mov_b32 v{ONE}, 1""")
    if STAMPS:
        for j in range(1, 16): a(f"s_mov_b64 s[{ST0+2*j}:{ST0+2*j+1}], 0")
    a(f"""s_cmp_ge_u32 s{S_W}, 8
    s_waitcnt lgkmcnt(0)
    s_cbranch_scc1 g_role""")
    s_role(a); g_role(a); mainloop(a); epilogue(a)
    if STAMPS:
        a("s_waitcnt vmcnt(0)"); stamp(a, 13); stamp_flush(a)
    a("k_end:\ns_endpgm")

if __name__ == "__main__":
    a = Asm()
    kernel(a)
    hdr = open("gather_scatter__edge_featured_mpnn_egc__graph.s.ref").read().split("; Override launch")[0]
    out = hdr + f"""; @launch grid=(256,1,1) block=(1024,1,1) lds={LDSZ}
.amdgcn_target "amdgcn-amd-amdhsa--gfx950"
.text
""" + a.text() + f""".section .rodata,"a"
.p2align 6
.amdhsa_kernel {NAME}
  .amdhsa_next_free_vgpr 128
  .amdhsa_next_free_sgpr 102
  .amdhsa_accum_offset 128
  .amdhsa_group_segment_fixed_size 0
  .amdhsa_kernarg_size 80
  .amdhsa_user_sgpr_count 2
  .amdhsa_user_sgpr_kernarg_segment_ptr 1
  .amdhsa_system_sgpr_workgroup_id_x 1
  .amdhsa_float_denorm_mode_32 3
.end_amdhsa_kernel
"""
    open(sys.argv[1], "w").write(out)
```

```python
import sys
from dsl import *
import layout as L

OPT = {}
for x in sys.argv[2:]:
    if x.startswith("--"):
        k, _, val = x[2:].partition("=")
        OPT[k] = val
def oi(k, d): return int(OPT.get(k, d))
STAMPS = "stamps" in OPT
PRIO = [int(y) for y in OPT.get("prio", "4,2,1").split(",")]
NAME = "gather_scatter__edge_featured_mpnn_egc__graph_kernel"
SC = " sc1"

SLOTCAP = 3136
ROW = 0
EAD = ROW + (SLOTCAP + 64) * 4
HIST = EAD + (SLOTCAP + 64) * 2
QST = HIST + 1024
FLG = QST + 1024
BND = FLG + 1024
BW = BND + 256
XAU = BW + 2048
RS = 272; STG = 32 * RS
XP = 1056; XST = 16 * XP
XT = XAU + STG
X0 = 131072
XS = [X0] + [XT + i * XST for i in range(4)]
EA = XAU + 160 * RS
REORD = XT + 4 * XST
RINGS = [113152, 121856]
PERM = 157696
CNT = 163328; H1 = 163584
NE = 192
EA_E = CNT - 8 * NE * 32
LCAP = (EA_E - EA) // 32
MARK = 148480; MARK2 = MARK
LDSZ = 163840
assert XAU == 24576 and REORD <= RINGS[0] and RINGS[0] + STG <= RINGS[1] and RINGS[1] + STG <= X0 and X0 + XST <= MARK and MARK + 8192 <= PERM and PERM + 2560 <= CNT
assert EA % 32 == 0 and BW % 32 == 0 and EA_E >= REORD
(C_S1, C_S2, C_S3, C_S4, C_S5, C_S6, C_W, C_F, C_E, C_REC, C_OVF, C_D, C_I, C_PE, C_AE, C_R2, C_XI, C_GO, C_IDX, C_P2) = [4 * i for i in range(20)]
C_X = 80; C_TAG = 104; C_RDY = 112; C_MK = 116; CT = REORD; C_BT = 128
WS_FL = 0x1740000
WS_FE = 0x1750000
FSH = oi('fsh', 3)
NJ = 7; NK = 2 * NJ
SPIN = 0x40000

P_X, P_EA, P_SRC, P_DST, P_UW, P_VW, P_GW, P_OUT, P_DBG, P_WS = 4, 6, 8, 10, 12, 14, 16, 18, 20, 22
S_R, S_S, S_W, S_NV = 24, 25, 26, 27
R_TBL, R_OUT = 28, 32
RA, RB, RC, RD, RE = 36, 40, 44, 48, 52
S_X, S_Y, S_Z, S_T, S_BASE, S_SL, S_N0, S_N1, S_Q0, S_NQ, S_NT, S_FO, S_RO, S_FIRST = range(56, 70)
S_G = 3
S_M = [4 + 2 * j for j in range(7)]
TAG = 18
S_FF, S_FR, S_E0, S_E1 = 8, 10, 12, 14
ST0 = 70

CLK = [int(y) for y in OPT.get("clk", "11,12").split(",")]
def stamp(a, j):
    if not STAMPS: return
    if "only" in OPT and str(j) not in OPT["only"].split(","): return
    a(f"s_memrealtime s[{ST0+2*j}:{ST0+2*j+1}]")
    if j in CLK: a(f"s_memtime s[{ST0+28+2*CLK.index(j)}:{ST0+29+2*CLK.index(j)}]")
    a("s_waitcnt lgkmcnt(0)")
def stamp_flush(a):
    a(f"""s_lshl_b32 s56, s2, 4
    s_add_u32 s56, s56, s{S_W}
    s_lshl_b32 s56, s56, 7
    s_add_u32 s56, s56, {L.WS_STAMP:#x}
    s_add_u32 s58, s{P_WS}, s56
    s_addc_u32 s59, s{P_WS+1}, 0
    s_mov_b64 exec, 1
    v_mov_b32 v0, 0""")
    for j in range(16):
        a(f"v_mov_b32 v2, s{ST0+2*j}\nv_mov_b32 v3, s{ST0+2*j+1}\nglobal_store_dwordx2 v0, v[2:3], s[58:59] offset:{8*j}\ns_nop 1")

G = [0, 16]; Dd = [32, 48]; AD = 64; A0 = 80; A1 = 84; B0 = 88; B1 = 92; SEL = 96; A2 = 100
XA = [104, 108]; CC = 112; ACC = 114; EIDX = 115; EADDR = 116; PROW = 117; PEAD = 118; KHC = 119
LANE = 120; TID = 121
T0, T1, T2, T3 = 122, 123, 124, 125
CB, ONE = 126, 127
EX = 36

def slot_of_reg(j):
    g, i, ab = j // 8, (j % 8) // 2, j % 2
    return (2 * g + ab) * 4 + i

def consts(a):
    a.c("SEL (16x16x32 A operand): lane(row=l%16,kq=l/16): 1.0 at element 2*(row%4) iff kq==row/4")
    a(f"""v_lshrrev_b32 v{T0}, 4, v{LANE}
    v_bfe_u32 v{T1}, v{LANE}, 2, 2
    v_and_b32 v{T2}, 3, v{LANE}
    v_cmp_eq_u32 vcc, v{T0}, v{T1}
    v_mov_b32 v{T3}, 0x3f80
    v_mov_b32 v{CC}, 0x30800000
    v_cndmask_b32 v{T2}, 7, v{T2}, vcc""")
    for k in range(4):
        a(f"v_cmp_eq_u32 vcc, {k}, v{T2}\nv_mov_b32 v{A0+2*k}, 0\nv_mov_b32 v{A0+2*k+1}, 0\nv_cndmask_b32 v{SEL+k}, 0, v{T3}, vcc")
    a.c("A2 (32x32x16 A operand): row=8a+4h+b, reg j=4a+b, quad=2*(j/8)+(j%2); 1.0 at element 2*quad iff kh==h")
    a(f"""v_lshrrev_b32 v{T0}, 5, v{LANE}
    v_bfe_u32 v{T1}, v{LANE}, 2, 1
    v_cmp_eq_u32 vcc, v{T0}, v{T1}
    v_bfe_u32 v{T1}, v{LANE}, 4, 1
    v_and_b32 v{T2}, 1, v{LANE}
    v_lshl_add_u32 v{PEAD}, v{T1}, 1, v{T2}
    v_cndmask_b32 v{T2}, 7, v{PEAD}, vcc""")
    fill = [f"v_bfe_u32 v{T1}, v{LANE}, 3, 1", f"v_lshl_add_u32 v{PEAD}, v{PEAD}, 1, v{T1}",
            f"v_bfe_u32 v{T1}, v{LANE}, 1, 1", f"v_lshl_add_u32 v{PEAD}, v{PEAD}, 1, v{T1}",
            f"v_lshlrev_b32 v{PEAD}, 1, v{PEAD}", f"v_lshlrev_b32 v{KHC}, 4, v{T0}",
            f"v_mov_b32 v{ACC}, 0", f"v_mov_b32 v{CC+1}, 0x30800000"]
    for k in range(4):
        a(f"v_cmp_eq_u32 vcc, {k}, v{T2}\n{fill[2*k]}\n{fill[2*k+1]}\nv_cndmask_b32 v{A2+k}, 0, v{T3}, vcc")

def ldconsts(a):
    a(f"""v_lshlrev_b32 v{T1}, 4, v{LANE}
    v_add_u32 v{T1}, {CT}, v{T1}
    ds_read_b128 v[{SEL}:{SEL+3}], v{T1}
    ds_read_b128 v[{A2}:{A2+3}], v{T1} offset:1024
    ds_read_b128 v[{EADDR}:{EADDR+3}], v{T1} offset:2048
    ds_read_b128 v[{A0}:{A0+3}], v{T1} offset:3072
    ds_read_b128 v[{A1}:{A1+3}], v{T1} offset:3072""")

_lab = [0]
def spin(a, off, tv, ts, n=8, sl=0, mask=None, first=True):
    _lab[0] += 1; k = _lab[0]
    if not first: a(f"s_branch sp{k}r")
    a(f"sp{k}:")
    if mask is not None: a(f"s_and_b32 s{ts}, s{ts}, {mask:#x}")
    a(f"s_cmp_ge_u32 s{ts}, {n}\ns_cbranch_scc1 sp{k}e")
    if sl: a(f"s_sleep {sl}")
    a(f"""sp{k}r:
    ds_read_b32 v{tv}, v{CB} offset:{off}
    s_waitcnt lgkmcnt(0)
    v_readfirstlane_b32 s{ts}, v{tv}
    s_branch sp{k}
    sp{k}e:""")
def wait(a, off, n, sl=1, mask=None): spin(a, off, T0, S_X, n, sl, mask, first=False)
def sync(a, off, wait=True, n=8, sl=0):
    a(f"""s_mov_b64 exec, 1
    ds_add_rtn_u32 v{T0}, v{CB}, v{ONE} offset:{off}
    s_mov_b64 exec, -1
    s_waitcnt lgkmcnt(0)
    v_readfirstlane_b32 s{S_X}, v{T0}
    s_add_u32 s{S_X}, s{S_X}, 1""")
    if wait: spin(a, off, T0, S_X, n, sl)
def arrive(a, off, inc=None):
    a(f"s_mov_b64 exec, 1\nds_add_u32 v{CB}, v{inc or ONE} offset:{off}\ns_mov_b64 exec, -1")

def common_srds(a):
    a(f"s_mul_i32 s{S_X}, s{S_S}, {L.TBL_SL}")
    srd(a, R_TBL, P_WS, L.WS_TBL, L.TBL_SL, stride=4, w3=0x800000, soff=S_X)
    srd(a, R_OUT, P_OUT, 0, L.N * 512)

def publish_done(a, lab, V, cnt, n, S):
    sync(a, cnt, wait=False)
    a(f"s_cmp_lg_u32 s{S_X}, {n}\ns_cbranch_scc1 {lab}")
    if S:
        a(f"""s_lshl_b32 s{S_X}, s2, {FSH}
        s_add_u32 s{S_X}, s{S_X}, {WS_FE:#x}""")
    else:
        a(f"""v_readfirstlane_b32 s{TAG}, v{V}
        v_readfirstlane_b32 s{TAG+1}, v{V+1}
        s_lshl_b32 s{S_X}, s{S_S}, 6
        s_add_u32 s{S_X}, s{S_X}, s{S_R}
        s_lshl_b32 s{S_X}, s{S_X}, {FSH}
        s_add_u32 s{S_X}, s{S_X}, {WS_FL:#x}""")
    a(f"""s_atomic_swap_x2 s[{TAG}:{TAG+1}], s[{P_WS}:{P_WS+1}], s{S_X}
    s_mov_b32 s{S_X}, 0
    {lab}:""")

def flag_poll(a, lab, AV, FV, TV, sl):
    a(f"""s_mov_b32 s{S_Y}, {SPIN}
    {lab}:
    s_waitcnt vmcnt(0)
    v_cmp_ne_u64 vcc, {TV}, v[{FV}:{FV+1}]
    s_and_b64 exec, exec, vcc
    s_cbranch_scc0 {lab}e
    s_sleep {sl}
    global_load_dwordx2 v[{FV}:{FV+1}], v{AV}, s[{P_WS}:{P_WS+1}] sc1
    s_sub_u32 s{S_Y}, s{S_Y}, 1
    s_cbranch_scc0 {lab}
    {lab}e:
    s_mov_b64 exec, -1""")

def s_role(a):
    DS, SR, RG, ID, RKK, CN, INC, GRN = 2, 4, 6, 8, 10, 12, 13, 14
    LM, GA, CA_, BWA = 16, 17, 18, 19
    EV = 20
    PV = 32
    CW, NON = 36, 38
    ZV = 40
    IOT, MQ, HD, SP = 48, 52, 56, 60
    IDV = 64
    DEL, PA, MA1, PR2, HB = 88, 89, 90, 91, 92
    M1 = 60
    a(f"""v_mov_b32 v{T2}, 0
    v_mov_b32 v{T3}, 0
    v_lshl_add_u32 v{T1}, v{LANE}, 3, v{CB}
    ds_write_b64 v{T1}, v[{T2}:{T3}]
    s_mul_i32 s{S_X}, s2, {L.CH*4}""")
    srd(a, RA, P_DST, 0, L.CH * 4, soff=S_X)
    a(f"""v_lshlrev_b32 v{T0}, 2, v0
    buffer_load_dword v{DS}, v{T0}, s[{RA}:{RA+3}], 0 offen
    buffer_load_dword v{DS+1}, v{T0}, s[{RA}:{RA+3}], 0 offen offset:2048""")
    srd(a, RB, P_SRC, 0, L.CH * 4, soff=S_X)
    a(f"""buffer_load_dword v{SR}, v{T0}, s[{RB}:{RB+3}], 0 offen
    buffer_load_dword v{SR+1}, v{T0}, s[{RB}:{RB+3}], 0 offen offset:2048""")
    EPF = OPT.get("epf", "b")
    def epf():
        a(f"s_mul_i32 s{S_X}, s2, {L.CH*32}")
        srd(a, RC, P_EA, 0, L.CH * 32, soff=S_X)
        if EPF != "n":
            a(f"""v_subrev_u32 v{T1}, {512-160}, v0
            v_lshlrev_b32 v{T1}, 7, v{T1}
            buffer_load_dword v{EV}, v{T1}, s[{RC}:{RC+3}], 0 offen""")
    if EPF == "b": epf()
    a("s_waitcnt lgkmcnt(0)\ns_barrier")
    if EPF != "b": epf()
    NP = 0 if EPF == "n" else 1
    a(f"s_mul_i32 s{S_X}, s2, {L.CHS*32}")
    srd(a, RD, P_WS, L.WS_EA, L.CH * 32, soff=S_X)
    a(f"s_mul_i32 s{S_X}, s2, {L.CHS*4}")
    srd(a, RE, P_WS, L.WS_ID, L.CHS * 4, soff=S_X)
    a(f"""v_cmp_gt_u32 vcc, {L.CH-512}, v0
    s_mov_b64 s[{M1}:{M1+1}], vcc
    v_lshlrev_b32 v{GA}, 4, v0
    v_add_u32 v{LM}, {MARK}, v{GA}
    v_lshlrev_b32 v{PR2}, 1, v0
    v_and_b32 v{PR2}, -4, v{PR2}
    v_add_u32 v{PR2}, {PERM}, v{PR2}
    v_and_b32 v{HB}, 16, v{GA}
    v_lshlrev_b32 v{ID}, 22, v0
    v_add_u32 v{ID+1}, 0x80000000, v{ID}
    v_mov_b32 v{ZV+4}, 0
    v_lshl_add_u32 v{T1}, v{LANE}, 2, v{CB}
    s_movk_i32 s{S_Y}, {-L.RN}
    s_mov_b32 s{S_Z}, {H1}
    s_waitcnt vmcnt({2+NP})""")
    stamp(a, 1)
    for k in range(2): a(f"v_mul_u32_u24 v{RG+k}, 13358, v{DS+k}")
    for k in range(2): a(f"v_lshrrev_b32 v{RG+k}, 21, v{RG+k}")
    for k in range(2): a(f"v_mad_i32_i24 v{DS+k}, v{RG+k}, s{S_Y}, v{DS+k}")
    for k in range(2): a(f"v_lshl_add_u32 v{RG+k}, v{RG+k}, 2, s{S_Z}")
    a(f"""ds_add_rtn_u32 v{RKK}, v{RG}, v{ONE}
    s_mov_b64 exec, s[{M1}:{M1+1}]
    ds_add_rtn_u32 v{RKK+1}, v{RG+1}, v{ONE}""")
    sync(a, C_S1)
    a(f"ds_read_b32 v{CN}, v{T1} offset:{H1-CNT}")
    srd(a, RA, P_GW, 0, 528 * 512)
    a(f"""v_or_b32 v{ID}, v{ID}, v{DS}
    v_or_b32 v{ID+1}, v{ID+1}, v{DS+1}
    s_waitcnt lgkmcnt(0)
    v_mov_b32 v{INC}, v{CN}""")
    scan(a, "v_add_u32", [INC])
    a(f"""v_sub_u32 v{INC}, v{INC}, v{CN}
    ds_bpermute_b32 v{T2}, v{RG}, v{INC}
    ds_bpermute_b32 v{T3}, v{RG+1}, v{INC}
    v_lshl_or_b32 v{GRN}, v{CN}, 10, v{INC}
    s_mov_b32 s{S_Y}, {PERM}
    s_waitcnt vmcnt({NP})
    v_lshl_or_b32 v{ID}, v{SR}, 8, v{ID}
    v_lshl_or_b32 v{ID+1}, v{SR+1}, 8, v{ID+1}
    s_waitcnt lgkmcnt(0)
    v_add_u32 v{RG}, v{T2}, v{RKK}
    v_add_u32 v{RG+1}, v{T3}, v{RKK+1}
    v_lshl_add_u32 v{DS}, v{RG}, 2, s{S_Y}
    v_lshl_add_u32 v{DS+1}, v{RG+1}, 2, s{S_Y}
    ds_write_b32 v{DS}, v{ID}
    s_mov_b64 exec, s[{M1}:{M1+1}]
    ds_write_b32 v{DS+1}, v{ID+1}""")
    sync(a, C_S2)
    a(f"ds_read_b128 v[{IDV}:{IDV+3}], v{LM} offset:{PERM-MARK}")
    for k in range(3): a(f"ds_read_b32 v{PV+k}, v{PR2} offset:{1024*k}")
    a(f"s_lshl_b32 s{S_X}, s2, 9")
    srd(a, RB, P_WS, L.WS_OFF, 512, soff=S_X)
    GR, LEN, PRE, INC2, MKB = 2, 4, 5, 12, 8
    consts(a)
    a(f"v_lshlrev_b32 v{T0}, 2, v{LANE}\nv_sub_u32 v{T0}, s{S_NV}, v{T0}")
    fill = [f"v_mul_u32_u24 v{IOT}, 0x80008, v{LANE}", f"v_add_u32 v{IOT}, 0x10000, v{IOT}", f"v_add_u32 v{IOT+1}, 0x20002, v{IOT}",
            f"v_add_u32 v{IOT+2}, 0x40004, v{IOT}", f"v_add_u32 v{IOT+3}, 0x60006, v{IOT}", f"v_mul_u32_u24 v{DEL}, {L.CHS}, v{LANE}",
            f"v_lshlrev_b32 v{PA}, 9, v{LANE}", f"v_mov_b32 v{GR}, 0"]
    for k in range(4): a(f"v_cmp_lt_i32 vcc, {k}, v{T0}\n{fill[2*k]}\n{fill[2*k+1]}\nv_cndmask_b32 v{MQ+k}, 0, 4, vcc")
    a(f"""s_lshr_b32 s{S_X}, s2, 3
    s_add_u32 s{S_X}, s{S_X}, {L.N}
    s_lshl_b32 s{S_X}, s{S_X}, 8""")
    for k in range(4): a(f"v_mov_b32 v{ZV+k}, s{S_X}\nv_mov_b32 v{ZV+4+k}, 0\nv_mov_b32 v{SP+k}, {(BW//32) * 0x10001:#x}")
    a(f"""ds_write_b128 v{LM}, v[{ZV+4}:{ZV+7}]
    s_lshl_b32 s{S_N0}, s{S_W}, 10
    s_add_u32 s{S_N0}, s{S_N0}, {MARK}
    v_lshl_add_u32 v{MA1}, v{LANE}, 1, s{S_N0}
    s_lshl_b32 s{S_Z}, s{S_W}, 14
    s_lshl_b32 s{S_Y}, s{S_R}, 3
    s_add_u32 s{S_Z}, s{S_Z}, s{S_Y}
    s_add_u32 s{S_Z}, s{S_Z}, {L.WS_OFF:#x}
    v_add_u32 v{PA}, s{S_Z}, v{PA}""")
    if "shold" in OPT: wait(a, C_I, 8)
    a(f"""s_waitcnt lgkmcnt(1)
    buffer_store_dwordx4 v[{IDV}:{IDV+3}], v{GA}, s[{RE}:{RE+3}], 0 offen{SC}
    global_load_dwordx2 v[{NON}:{NON+1}], v{ZV+4}, s[{P_DBG}:{P_DBG+1}] offset:32 sc1
    s_waitcnt lgkmcnt(0)""")
    EGX = "egx" in OPT
    for k in range(3):
        a(f"""v_lshrrev_b32 v{PV+k}, 22, v{PV+k}
        v_lshl_or_b32 v{PV+k}, v{PV+k}, 5, v{HB}""")
    def eag():
        for k in range(3): a(f"buffer_load_dwordx4 v[{EV+4*k}:{EV+4*k+3}], v{PV+k}, s[{RC}:{RC+3}], 0 offen")
    if not EGX: eag()
    stamp(a, 2)
    GR, LEN, PRE, INC2, MKB = 2, 4, 5, 12, 8
    a(f"""v_lshlrev_b32 v{T2}, 3, v{LANE}
    s_mov_b32 s{S_Y}, {SPIN}
    s_waitcnt vmcnt({0 if EGX else 3})
    s_nonce:
    v_readfirstlane_b32 s{S_NT+1}, v{NON+1}
    v_readfirstlane_b32 s{S_NT}, v{NON}
    s_sub_u32 s{S_Y}, s{S_Y}, 1
    s_cbranch_scc1 s_nonceok
    s_cmp_lg_u32 s{S_NT+1}, 0
    s_cbranch_scc1 s_nonceok
    global_load_dwordx2 v[{NON}:{NON+1}], v{ZV+4}, s[{P_DBG}:{P_DBG+1}] offset:32 sc1
    s_waitcnt vmcnt(0)
    s_branch s_nonce
    s_nonceok:
    s_and_b32 s{S_N1}, s{S_NT+1}, 0xfff
    v_lshl_or_b32 v{GRN}, s{S_N1}, 20, v{GRN}
    v_mov_b32 v{GRN+1}, s{S_NT}
    s_mov_b64 exec, 1
    ds_write_b64 v{CB}, v[{NON}:{NON+1}] offset:{C_TAG}""")
    sync(a, C_S3, wait=False)
    def east():
        a(f"s_movk_i32 s{S_Y}, 8192\ns_movk_i32 s{S_Z}, 16384")
        for k, so in enumerate(("0", f"s{S_Y}", f"s{S_Z}")):
            a(f"buffer_store_dwordx4 v[{EV+4*k}:{EV+4*k+3}], v{GA}, s[{RD}:{RD+3}], {so} offen{SC}")
    a(f"""s_cmp_lg_u32 s{S_X}, 8
    s_cbranch_scc1 s_nopub
    buffer_store_dwordx2 v[{GRN}:{GRN+1}], v{T2}, s[{RB}:{RB+3}], 0 offen{SC}""")
    if EGX:
        a("s_nopub:")
        wait(a, C_XI, 4)
        eag()
    else:
        a("s_waitcnt vmcnt(1)\ns_branch s_pub\ns_nopub:\ns_waitcnt vmcnt(0)\ns_pub:")
        if "esx" in OPT: wait(a, C_XI, 4)
        east()
    stamp(a, 3)
    a(f"""v_lshrrev_b32 v{T0}, 5, v{LANE}
    v_and_b32 v{T2}, 31, v{LANE}
    v_lshlrev_b32 v{T2}, 1, v{T2}
    v_lshl_add_u32 v{CA_}, v{T0}, 12, v{T2}
    s_and_b32 s{S_X}, s{S_W}, 3
    s_lshr_b32 s{S_Y}, s{S_W}, 2
    s_lshl_b32 s{S_T}, s{S_X}, 10
    s_lshl_b32 s{S_Z}, s{S_Y}, 6
    s_add_u32 s{S_T}, s{S_T}, s{S_Z}
    s_lshl_b32 s{S_Z}, s{S_S}, 7
    s_add_u32 s{S_T}, s{S_T}, s{S_Z}
    s_add_u32 s{S_T}, s{S_T}, {512*512}
    buffer_load_ushort v{CW}, v{CA_}, s[{RA}:{RA+3}], s{S_T} offen
    buffer_load_ushort v{CW+1}, v{CA_}, s[{RA}:{RA+3}], s{S_T} offen offset:512
    s_lshl_b32 s{S_X}, s{S_X}, 2
    s_lshl_b32 s{S_Y}, s{S_Y}, 10
    s_add_u32 s{S_X}, s{S_X}, s{S_Y}
    v_lshl_add_u32 v{BWA}, v{LANE}, 4, s{S_X}""")
    common_srds(a)
    a(f"s_mov_b64 s[{TAG}:{TAG+1}], s[{S_NT}:{S_NT+1}]")
    a(f"s_mul_i32 s{S_X}, s{S_W}, {32*L.CHS*4}")
    srd(a, RE, P_WS, L.WS_ID, 32 * L.CHS, stride=4, soff=S_X)
    wait(a, C_F, 8)
    a.c("LDS init of the list area")
    a(f"""ds_write_b128 v{GA}, v[{ZV}:{ZV+3}] offset:{ROW}
    v_cmp_gt_u32 vcc, {(HIST-EAD)//16}, v0
    s_mov_b64 exec, vcc
    ds_write_b128 v{GA}, v[{SP}:{SP+3}] offset:{EAD}
    v_cmp_gt_u32 vcc, {(EAD-ROW)//16-512}, v0
    s_mov_b64 exec, vcc
    ds_write_b128 v{GA}, v[{ZV}:{ZV+3}] offset:{ROW+8192}
    v_cmp_gt_u32 vcc, {(BW-HIST)//16}, v0
    s_mov_b64 exec, vcc
    ds_write_b128 v{GA}, v[{ZV+4}:{ZV+7}] offset:{HIST}
    s_mov_b64 exec, -1
    s_cmp_lg_u32 s{S_W}, 7
    s_cbranch_scc1 s_noct
    v_add_u32 v{T1}, {CT - 7*1024}, v{GA}
    ds_write_b128 v{T1}, v[{SEL}:{SEL+3}]
    ds_write_b128 v{T1}, v[{A2}:{A2+3}] offset:1024
    ds_write_b128 v{T1}, v[{EADDR}:{EADDR+3}] offset:2048
    ds_write_b128 v{T1}, v[{A0}:{A0+3}] offset:3072
    s_noct:""")
    arrive(a, C_S4)
    if "pearly" in OPT:
        if oi("pearly", 0): a(f"s_sleep {oi('pearly', 0)}")
        a(f"""s_mov_b32 exec_hi, 0
        global_load_dwordx2 v[{GR}:{GR+1}], v{PA}, s[{P_WS}:{P_WS+1}] sc1
        s_mov_b64 exec, -1
        s_waitcnt vmcnt(1)""")
        publish_done(a, "s_pd", GRN, C_S6, 8, True)
    elif not EGX:
        a("s_waitcnt vmcnt(0)")
        publish_done(a, "s_pd", GRN, C_S6, 8, True)
    else: a("s_waitcnt vmcnt(0)")
    if oi("pdel", 0): a(f"s_sleep {oi('pdel', 0)}")
    if "pgate" in OPT: wait(a, C_X + 4 * oi("pgate", 0), 0x400, mask=0xf00, sl=2)
    stamp(a, 4)
    if "sprio" in OPT: a(f"s_setprio {OPT['sprio']}")
    a(f"s_mov_b32 exec_hi, 0")
    if "pearly" not in OPT: a(f"global_load_dwordx2 v[{GR}:{GR+1}], v{PA}, s[{P_WS}:{P_WS+1}] sc1")
    if EGX:
        a("s_mov_b64 exec, -1")
        east()
        a("s_mov_b32 exec_hi, 0")
    a(f"""s_mov_b32 s{S_Y}, {SPIN}
    s_waitcnt vmcnt({3 if EGX else 0})
    s_poll:
    v_lshrrev_b32 v{T0}, 20, v{GR}
    v_cmp_ne_u32 vcc, s{TAG}, v{GR+1}
    v_cmp_ne_u32 s[{S_M[0]}:{S_M[0]+1}], s{S_N1}, v{T0}
    s_or_b64 vcc, vcc, s[{S_M[0]}:{S_M[0]+1}]
    s_cbranch_scc0 s_pollok
    s_mov_b64 exec, vcc
    s_sleep {oi("psl", 2)}
    global_load_dwordx2 v[{GR}:{GR+1}], v{PA}, s[{P_WS}:{P_WS+1}] sc1
    s_sub_u32 s{S_Y}, s{S_Y}, 1
    s_waitcnt vmcnt(0)
    s_cbranch_scc0 s_poll
    v_mov_b32 v{GR}, 0
    s_pollok:
    s_mov_b64 exec, -1""")
    stamp(a, 5)
    IDX, IDW, HA, RK, QV = 64, 28, 64, 72, 20
    a(f"""v_lshlrev_b32 v{CW}, 16, v{CW}
    v_lshlrev_b32 v{CW+1}, 16, v{CW+1}
    v_mul_f32 v{CW}, 0xbfb8aa3b, v{CW}
    v_mul_f32 v{CW+1}, 0xbfb8aa3b, v{CW+1}
    v_bfe_u32 v{LEN}, v{GR}, 10, 10
    v_and_b32 v{GR}, 0x3ff, v{GR}
    v_mov_b32 v{INC2}, v{LEN}
    v_add_u32 v{DEL}, v{DEL}, v{GR}
    v_cvt_pk_bf16_f32 v{CW}, v{CW}, v{CW+1}""")
    for m in ("row_shr:1", "row_shr:2", "row_shr:4", "row_shr:8"):
        a(f"v_add_u32_dpp v{INC2}, v{INC2}, v{INC2} {m} row_mask:0xf bank_mask:0xf bound_ctrl:0\ns_nop 1")
    a(f"""v_add_u32_dpp v{INC2}, v{INC2}, v{INC2} row_bcast:15 row_mask:0xa bank_mask:0xf
    v_cmp_lt_u32 vcc, 0, v{LEN}
    v_sub_u32 v{PRE}, v{INC2}, v{LEN}
    v_readlane_b32 s{S_T}, v{INC2}, 31
    v_sub_u32 v{DEL}, v{DEL}, v{PRE}
    v_lshl_add_u32 v{T0}, v{PRE}, 1, s{S_N0}
    v_subrev_u32 v{INC2}, {NE - 31}, v{INC2}
    s_cmp_gt_u32 s{S_T}, {64*NJ}
    s_cselect_b64 exec, 0, vcc
    ds_write_b16 v{T0}, v{DEL}
    s_mov_b64 exec, -1
    ds_read_b128 v[{MKB}:{MKB+3}], v{LM}
    v_max_i32 v{INC2}, 0, v{INC2}
    v_and_b32 v{INC2}, 0xffffffe0, v{INC2}
    s_mov_b32 exec_lo, 0x80000000
    s_mov_b32 exec_hi, 0
    ds_add_rtn_u32 v{T0}, v{CB}, v{INC2} offset:{C_REC}
    s_mov_b64 exec, -1
    s_waitcnt lgkmcnt(1)""")
    for k in range(4): a(f"v_pk_max_u16 v{MKB+k}, v{MKB+k}, v{MKB+k} op_sel:[0,0] op_sel_hi:[1,0]")
    for k in range(1, 4): a(f"v_pk_max_u16 v{MKB+k}, v{MKB+k}, v{MKB+k-1} op_sel:[0,1] op_sel_hi:[1,1]")
    a(f"v_lshrrev_b32 v{INC2}, 16, v{MKB+3}")
    scan(a, "v_max_u32", [INC2])
    a(f"""v_mov_b32 v{PRE}, 0
    s_waitcnt lgkmcnt(0)
    v_mov_b32_dpp v{PRE}, v{INC2} wave_shr:1 row_mask:0xf bank_mask:0xf
    v_readlane_b32 s{S_BASE}, v{T0}, 31""")
    for k in range(4): a(f"v_pk_max_u16 v{MKB+k}, v{MKB+k}, v{PRE} op_sel:[0,0] op_sel_hi:[1,0]")
    for k in range(4): a(f"v_pk_add_u16 v{HD+k}, v{MKB+k}, v{IOT+k}")
    a(f"ds_write_b128 v{LM}, v[{HD}:{HD+3}]")
    for j in range(NJ): a(f"ds_read_u16 v{IDX+j}, v{MA1} offset:{128*j}")
    a(f"ds_read_b32 v{T1}, v{CB} offset:{C_S4}\nds_write_b128 v{LM}, v[{MKB}:{MKB+3}]")
    a.c("capacity guard")
    a(f"""s_add_u32 s{S_X}, s{S_BASE}, s{S_T}
    s_cmp_gt_u32 s{S_X}, {LCAP + NE - 32}
    s_cselect_b32 s{S_T}, {64*NJ+1}, s{S_T}
    s_cmp_gt_u32 s{S_T}, {64*NJ}
    s_cbranch_scc0 s_fits
    s_mov_b32 s{S_T}, 0
    ds_write_b32 v{CB}, v{ONE} offset:{C_OVF}
    s_fits:""")
    for j in range(NJ):
        a(f"s_sub_i32 s{S_X}, s{S_T}, {64*j}\nv_cmp_gt_i32 s[{S_M[j]}:{S_M[j]+1}], s{S_X}, v{LANE}")
    a("s_waitcnt lgkmcnt(0)")
    for j in range(NJ):
        a(f"s_mov_b64 exec, s[{S_M[j]}:{S_M[j]+1}]")
        if j >= 5: a("s_cbranch_execz s_idsdone")
        a(f"buffer_load_dword v{IDW+j}, v{IDX+j}, s[{RE}:{RE+3}], 0 idxen{SC}")
    a(f"s_idsdone:\ns_mov_b64 exec, -1\nv_readfirstlane_b32 s{S_X}, v{T1}")
    stamp(a, 6)
    a(f"""v_mov_b32 v{T2}, s{S_BASE}
    v_mov_b32 v{T3}, s{S_T}
    v_lshl_add_u32 v{GR}, s{S_W}, 3, v{CB}
    s_mov_b64 exec, 1
    ds_write_b64 v{GR}, v[{T2}:{T3}] offset:{C_BT}
    ds_add_u32 v{CB}, v{ONE} offset:{C_IDX}
    s_mov_b64 exec, -1""")
    if "sprio2" in OPT: a(f"s_setprio {OPT['sprio2']}")
    a(f"ds_write_b32 v{BWA}, v{CW} offset:{BW}")
    spin(a, C_S4, T0, S_X)
    a(f"""v_lshlrev_b32 v{T1}, 4, v{LANE}
    s_mul_i32 s{S_G}, s{S_W}, {NE}
    s_add_u32 s{S_G}, s{S_G}, {EA_E//32}
    s_waitcnt vmcnt(0)""")
    if EGX: publish_done(a, "s_pd", GRN, C_S6, 8, True)
    stamp(a, 7)
    sh = lambda j: a(f"v_lshlrev_b32_sdwa v{HA+j}, 2, v{IDW+j} dst_sel:DWORD dst_unused:UNUSED_PAD src0_sel:DWORD src1_sel:BYTE_0")
    for j in range(5): sh(j)
    for j in range(NJ):
        a(f"s_mov_b64 exec, s[{S_M[j]}:{S_M[j]+1}]")
        if j >= 5:
            a("s_cbranch_execz s_histdone"); sh(j)
        a(f"ds_add_rtn_u32 v{RK+j}, v{HA+j}, v{ONE} offset:{HIST}")
        a(f"v_and_b32 v{IDW+j}, 0x3fff00, v{IDW+j}")
    a("s_histdone:")
    sync(a, C_S5)
    a(f"""ds_read_b128 v[{HD}:{HD+3}], v{T1} offset:{HIST}
    s_add_u32 s{S_X}, s{S_BASE}, {EA//32 - NE}
    v_add_u32 v{LEN}, s{S_X}, v{LANE}
    v_add_u32 v{PRE}, s{S_G}, v{LANE}
    v_lshlrev_b32 v{T2}, 2, v0
    s_waitcnt lgkmcnt(0)""")
    for k in range(4): a(f"v_add_u32 v{HD+k}, 3, v{HD+k}")
    for k in range(4): a(f"v_and_b32 v{HD+k}, -4, v{HD+k}")
    for k in range(4): a(f"v_max_u32 v{HD+k}, v{HD+k}, v{MQ+k}")
    a(f"""v_add_u32 v{HD+1}, v{HD}, v{HD+1}
    v_add_u32 v{HD+2}, v{HD+1}, v{HD+2}
    v_add_u32 v{HD+3}, v{HD+2}, v{HD+3}
    v_mov_b32 v{INC2}, v{HD+3}""")
    scan(a, "v_add_u32", [INC2])
    a(f"""v_sub_u32 v{SP}, v{INC2}, v{HD+3}
    v_readlane_b32 s{S_SL}, v{INC2}, 63
    v_add_u32 v{SP+1}, v{SP}, v{HD}
    v_add_u32 v{SP+2}, v{SP}, v{HD+1}
    v_add_u32 v{SP+3}, v{SP}, v{HD+2}
    ds_write_b128 v{T1}, v[{SP}:{SP+3}] offset:{QST}""")
    BV = 8
    a(f"ds_read_b32 v{BV}, v{T2} offset:{QST}\nds_read_b32 v{BV+3}, v{T2} offset:{QST+4}")
    for j in range(NJ):
        if j >= 5: a(f"s_mov_b64 exec, s[{S_M[j]}:{S_M[j]+1}]\ns_cbranch_execz s_qdone")
        a(f"ds_read_b32 v{QV+j}, v{HA+j} offset:{QST}")
    stamp(a, 8)
    a(f"""s_qdone:
    s_cmp_gt_u32 s{S_SL}, {oi("slotcap", SLOTCAP)}
    s_cbranch_scc1 s_ovf
    s_waitcnt lgkmcnt(0)""")
    for j in range(NJ):
        a(f"s_mov_b64 exec, s[{S_M[j]}:{S_M[j]+1}]")
        if j >= 4: a("s_cbranch_execz s_scatdone")
        a(f"""v_add_lshl_u32 v{HA+j}, v{QV+j}, v{RK+j}, 2
        v_add_lshl_u32 v{QV+j}, v{QV+j}, v{RK+j}, 1
        v_add_u32 v{RK+j}, {64*j}, v{PRE if 64*j < NE else LEN}
        ds_write_b32 v{HA+j}, v{IDW+j} offset:{ROW}
        ds_write_b16 v{QV+j}, v{RK+j} offset:{EAD}""")
    a.c("node threads: end-of-node flags and the 16 wave boundaries")
    a(f"""s_scatdone:
    s_mov_b64 exec, -1
    s_cmp_ge_u32 s{S_W}, 3
    s_cbranch_scc1 s_fin
    v_cvt_f32_u32 v{T0}, s{S_SL}
    v_cmp_gt_u32 vcc, s{S_NV}, v0
    v_rcp_f32 v{T0}, v{T0}
    s_mov_b64 exec, vcc
    v_cvt_f32_u32 v{BV}, v{BV}
    v_cvt_f32_u32 v{BV+1}, v{BV+3}
    v_mul_f32 v{T0}, 0x41800000, v{T0}
    v_lshrrev_b32 v{T3}, 2, v{BV+3}
    v_cmp_eq_u32 vcc, s{S_SL}, v{BV+3}
    v_mul_f32 v{BV}, v{BV}, v{T0}
    v_mul_f32 v{BV+1}, v{BV+1}, v{T0}
    ds_write_b8 v{T3}, v{ONE} offset:{FLG-1}
    v_cvt_u32_f32 v{BV}, v{BV}
    v_cvt_u32_f32 v{BV+1}, v{BV+1}
    v_min_u32 v{BV}, 15, v{BV}
    v_min_u32 v{BV+1}, 15, v{BV+1}
    v_add_u32 v{BV+2}, 1, v0
    v_cndmask_b32 v{BV+1}, v{BV+1}, 16, vcc
    s_bnd:
    v_cmp_lt_u32 vcc, v{BV}, v{BV+1}
    s_and_b64 exec, exec, vcc
    s_cbranch_scc0 s_fin
    v_add_u32 v{BV}, 1, v{BV}
    v_lshlrev_b32 v{T3}, 3, v{BV}
    ds_write_b64 v{T3}, v[{BV+2}:{BV+3}] offset:{BND}
    s_branch s_bnd
    s_ovf:
    s_mov_b64 exec, 1
    ds_write_b32 v{CB}, v{ONE} offset:{C_OVF}
    s_fin:""")
    arrive(a, C_GO)
    stamp(a, 9)
    a.c("wave 0 polls the 64 table flags of its slice")
    a(f"""s_cmp_lg_u32 s{S_W}, 0
    s_cbranch_scc1 k_join
    s_lshl_b32 s{S_Y}, s{S_S}, {6+FSH}
    s_add_u32 s{S_Y}, s{S_Y}, {WS_FL:#x}
    v_lshl_add_u32 v2, v{LANE}, {FSH}, s{S_Y}
    v_mov_b32 v3, 0x100""")
    wait(a, C_D, 4)
    if oi("fdel", 8): a(f"s_sleep {oi('fdel', 8)}")
    a(f"global_load_dwordx2 v[4:5], v2, s[{P_WS}:{P_WS+1}] sc1")
    flag_poll(a, "s_fp", 2, 4, f"s[{TAG}:{TAG+1}]", oi("fsl", 4))
    arrive(a, C_GO, 3)
    a("s_branch k_join")

def g_role(a):
    R_X, R_GW, R_VW, R_UW, R_O = RA, RB, RC, RD, RE
    BF, ACC_, AR, CO = 0, 64, 96, 112
    XR, OA, CA, SA, CV, XA_ = T1, TID, [T2, T3], LANE, T0, T3
    WA0, WA1, BA, U0, U1, U2 = 96, 97, 98, 99, 100, 101
    SP0, SP1, SXL, SXB, SG8 = S_T, S_BASE, S_N0, S_N1, S_SL
    a("g_role:")
    nrow = 8 if OPT.get("map", "4") == "4" else 16
    a.c("touch a distinct part of this slice's weights (fills this die's L2): wave 8 gate rows, wave 9 v/u rows")
    a(f"""s_cmp_ge_u32 s{S_W}, 10
    s_cbranch_scc1 g_nowpf
    s_lshr_b32 s{S_Y}, s2, {3 if nrow == 8 else 4}
    s_mul_i32 s{S_Y}, s{S_Y}, {nrow*512}
    s_lshl_b32 s{S_X}, s{S_S}, 7
    s_add_u32 s{S_Y}, s{S_Y}, s{S_X}
    v_lshl_add_u32 v{U1}, v{LANE}, 9, s{S_Y}
    s_mov_b64 exec, {(1 << nrow) - 1:#x}
    s_cmp_eq_u32 s{S_W}, 8
    s_cbranch_scc0 g_wpf2
    global_load_dword v5, v{U1}, s[{P_GW}:{P_GW+1}]
    v_add_u32 v{U2}, {256*512}, v{U1}
    global_load_dword v6, v{U2}, s[{P_GW}:{P_GW+1}]
    s_branch g_wpf3
    g_wpf2:
    global_load_dword v5, v{U1}, s[{P_VW}:{P_VW+1}]
    global_load_dword v6, v{U1}, s[{P_UW}:{P_UW+1}]
    g_wpf3:
    s_mov_b64 exec, -1
    g_nowpf:""")
    if "code" in OPT:
        a.c("touch a distinct part of the code (fills this die's L2)")
        a(f"""s_cmp_lg_u32 s{S_W}, 10
        s_cbranch_scc1 g_nocode
        s_getpc_b64 s[{S_Q0}:{S_Q0+1}]
        g_pc:
        s_sub_u32 s{S_Q0}, s{S_Q0}, g_pc-{NAME}
        s_subb_u32 s{S_Q0+1}, s{S_Q0+1}, 0
        s_lshr_b32 s{S_X}, s2, 3
        s_lshl_b32 s{S_X}, s{S_X}, 7
        v_lshl_add_u32 v{U1}, v{LANE}, 12, s{S_X}
        v_cmp_gt_u32 vcc, k_end-{NAME}, v{U1}
        s_mov_b64 exec, vcc
        global_load_dword v5, v{U1}, s[{S_Q0}:{S_Q0+1}]
        s_mov_b64 exec, -1
        g_nocode:""")
    a(f"s_and_b32 s{S_G}, s{S_W}, 3\ns_and_b32 s{SG8}, s{S_W}, 7")
    srd(a, R_GW, P_GW, 0, 528 * 512)
    srd(a, R_VW, P_VW, 0, 256 * 512)
    a(f"""v_lshrrev_b32 v{U0}, 3, v{LANE}
    v_and_b32 v{U1}, 2, v{U0}
    v_and_b32 v{U2}, 7, v{LANE}
    v_xor_b32 v{U1}, v{U1}, v{U2}
    v_lshlrev_b32 v{U1}, 4, v{U1}
    v_lshl_add_u32 v{WA0}, v{U0}, 9, v{U1}
    v_xor_b32 v{WA1}, 64, v{WA0}""")
    srd(a, R_UW, P_UW, 0, 256 * 512)
    srd(a, R_X, P_X, 0, L.N * 512)
    if "xq" in OPT:
        n = oi("xq", 4)
        per = 640 // n // 4
        a(f"""s_cmp_lt_u32 s{S_W}, 12
        s_cbranch_scc1 g_noxq
        v_mul_u32_u24 v{U1}, {128*n}, v{LANE}
        s_mul_i32 s{S_X}, s{S_R}, {L.RN*512}
        s_mul_i32 s{S_Y}, s{S_G}, {20480}
        s_add_u32 s{S_X}, s{S_X}, s{S_Y}
        s_and_b32 s{S_Y}, s{S_S}, {n-1}
        s_lshl_b32 s{S_Y}, s{S_Y}, 7
        s_add_u32 s{S_X}, s{S_X}, s{S_Y}""")
        for k in range(0, per, 64):
            m = min(64, per - k)
            if m < 64: a(f"s_mov_b32 exec_lo, {min(0xffffffff, (1 << min(m, 32)) - 1):#x}\ns_mov_b32 exec_hi, {((1 << max(m-32, 0)) - 1):#x}")
            a(f"buffer_load_dword v5, v{U1}, s[{R_X}:{R_X+3}], s{S_X} offen\ns_add_u32 s{S_X}, s{S_X}, {64*128*n}")
        a("s_mov_b64 exec, -1\ng_noxq:")
    a.c("launch nonce: workgroup 0 publishes the clock")
    a(f"""s_sub_u32 s{S_X}, s{S_W}, 15
    s_or_b32 s{S_X}, s2, s{S_X}
    s_cbranch_scc1 g_nononce
    s_memrealtime s[{S_Z}:{S_Z+1}]
    v_mov_b32 v4, 0
    s_waitcnt lgkmcnt(0)
    s_bitset1_b32 s{S_Z+1}, 31
    v_mov_b32 v2, s{S_Z}
    v_mov_b32 v3, s{S_Z+1}
    s_mov_b64 exec, 1
    global_store_dwordx2 v4, v[2:3], s[{P_DBG}:{P_DBG+1}] offset:32 sc1
    s_mov_b64 exec, -1
    g_nononce:
    v_lshrrev_b32 v{U0}, 5, v{LANE}
    v_xor_b32 v{U1}, v{U0}, v{LANE}
    v_lshlrev_b32 v{XA_}, 4, v{U1}
    s_lshr_b32 s{S_NT}, s2, 3
    s_and_b32 s{S_NT}, s{S_NT}, {oi("rot", 31)}
    s_xor_b32 s{S_NT}, s{S_NT}, s{SG8}
    s_lshl_b32 s{S_X}, s{S_NT}, 12
    s_lshl_b32 s{S_NT}, s{S_NT}, 10
    s_lshl_b32 s{S_Y}, s{S_S}, 7
    s_add_u32 s{S_X}, s{S_X}, s{S_Y}
    s_lshl_b32 s{S_Z}, s{SG8}, 10
    s_mul_i32 s{SXB}, s{S_R}, {L.RN*512}
    s_add_u32 s{S_Q0}, s{SXB}, s{S_Z}
    s_mul_i32 s{SXL}, s{SG8}, {XP}
    s_barrier""")
    def x0():
        for j in range(2):
            a(f"""s_add_u32 m0, s{SXL}, {X0 + j*8*XP}
            s_add_u32 s{S_Y}, s{S_Q0}, {j*8192}
            buffer_load_dwordx4 v{XA_}, s[{R_X}:{R_X+3}], s{S_Y} offen lds""")
    if "x0f" in OPT: x0()
    for m, (sr, row0) in enumerate(((R_GW, 256), (R_VW, 0), (R_GW, 0), (R_UW, 0))):
        for j in range(4):
            a(f"""s_xor_b32 m0, s{S_NT}, {m*32768 + j*8192}
            s_xor_b32 s{S_Y}, s{S_X}, {j*32768 + row0*512}
            buffer_load_dwordx4 v{WA0 + m % 2}, s[{sr}:{sr+3}], s{S_Y} offen lds""")
            if oi("ww", 0): a(f"s_waitcnt vmcnt({oi('ww', 0)-1})")
    if "x0a" in OPT:
        a(f"s_cmp_lt_u32 s{S_W}, 12\ns_cbranch_scc1 g_nox0")
        x0()
        a(f"s_sub_u32 s{SXL}, s{SXL}, {4*XP}\ns_sub_u32 s{S_Q0}, s{S_Q0}, 4096")
        x0()
        a("g_nox0:")
    elif "x0f" not in OPT: x0()
    arrive(a, C_I)
    if "touch" in OPT:
        a(f"""s_cmp_lg_u32 s{S_W}, 14
        s_cbranch_scc1 g_notouch
        s_load_dword s{S_NT}, s[{P_OUT}:{P_OUT+1}], s{SXB}
        s_mul_i32 s{S_X}, s{S_S}, {L.TBL_SL}""")
        for k in range(2): a(f"s_load_dword s{S_NT}, s[{P_WS}:{P_WS+1}], s{S_X}\ns_add_u32 s{S_X}, s{S_X}, {L.TBL_SL//2 - 64}")
        a(f"s_load_dword s{S_NT}, s[{P_WS}:{P_WS+1}], s{S_X}")
        for off in (L.WS_EA + 0x1ff000, L.WS_EA + 0x3ff000, L.WS_EA + 0x5ff000, L.WS_ID + 0xff000):
            a(f"s_mov_b32 s{S_X}, {off:#x}\ns_load_dword s{S_NT}, s[{P_WS}:{P_WS+1}], s{S_X}")
        a("g_notouch:")
    a.c("weight-fragment address: lane = (kh, m, r, c)")
    a(f"""v_bfe_u32 v{U1}, v{LANE}, 2, 2
    v_lshl_add_u32 v{U1}, v{U0}, 3, v{U1}
    v_lshlrev_b32 v{BA}, 7, v{U1}
    v_bfe_u32 v{U1}, v{LANE}, 3, 2
    v_xor_b32 v{U1}, s{S_G}, v{U1}
    v_lshl_add_u32 v{BA}, v{U1}, 5, v{BA}
    v_and_b32 v{U1}, 1, v{LANE}
    v_lshl_add_u32 v{BA}, v{U1}, 4, v{BA}
    v_bfe_u32 v{U2}, v{LANE}, 1, 1
    v_lshl_add_u32 v{BA}, v{U2}, 3, v{BA}
    v_bfe_u32 v{U2}, v{LANE}, 4, 1
    v_lshl_add_u32 v{BA}, v{U2}, 15, v{BA}
    s_cmp_ge_u32 s{S_W}, 12
    s_cselect_b32 s{S_Y}, 0x10000, 0
    v_add_u32 v{BA}, s{S_Y}, v{BA}
    s_mov_b32 s{S_Y}, {RINGS[0]}
    s_cselect_b32 s{S_Y}, {XAU}, s{S_Y}
    s_lshl_b32 s{S_X}, s{S_G}, 6
    s_add_u32 s{S_Y}, s{S_Y}, s{S_X}
    v_xor_b32 v{U2}, v{U0}, v{U1}
    v_lshlrev_b32 v{U2}, 4, v{U2}
    v_lshl_add_u32 v{XR}, v{U1}, 9, v{U2}
    v_bfe_u32 v{U1}, v{LANE}, 1, 4
    v_mul_u32_u24 v{U1}, {XP}, v{U1}
    v_add_u32 v{XR}, v{XR}, v{U1}
    v_add_u32 v{XR}, {X0}, v{XR}
    v_and_b32 v{U1}, 31, v{LANE}
    v_mul_u32_u24 v{U1}, {RS}, v{U1}
    v_lshl_add_u32 v{U1}, v{U0}, 5, v{U1}
    v_add_u32 v{OA}, s{S_Y}, v{U1}
    s_lshl_b32 s{S_Z}, s{S_G}, 10
    s_add_u32 s{SXB}, s{SXB}, s{S_Z}
    s_mul_i32 s{SXL}, s{S_G}, {XP}
    v_lshl_add_u32 v{SA}, v{LANE}, 4, s{S_Z}
    v_lshrrev_b32 v{U1}, 8, v{SA}
    v_lshl_add_u32 v{U1}, v{U1}, 4, v{SA}
    v_add_u32 v{CA[0]}, {RINGS[0]}, v{U1}
    s_mul_i32 s{S_X}, s{S_S}, {L.TBL_SL}
    s_mul_i32 s{S_Y}, s{S_R}, {L.RN*256}
    s_add_u32 s{S_X}, s{S_X}, s{S_Y}""")
    srd(a, R_O, P_WS, L.WS_TBL, L.RN * 256, soff=S_X)
    common_srds(a)
    a(f"s_mov_b32 s{SP0}, 0x07060100\ns_mov_b32 s{SP1}, 0x07060302\n" + ("s_waitcnt vmcnt(4)\ns_cmp_ge_u32 s%d, 12\ns_cbranch_scc1 g_ww\ns_waitcnt vmcnt(0)\ng_ww:" % S_W if "x0a" in OPT else f"s_waitcnt vmcnt({0 if 'x0f' in OPT else 2})"))
    stamp(a, 1)
    if "xpf" in OPT:
        half = OPT.get("map", "4") == "2"
        a(f"s_cmp_ge_u32 s{S_W}, 12\ns_cbranch_scc1 g_noxpf")
        wait(a, C_I, 8)
        a(f"""v_mbcnt_lo_u32_b32 v{U1}, -1, 0
        v_mbcnt_hi_u32_b32 v{U1}, -1, v{U1}
        v_lshlrev_b32 v{U1}, 7, v{U1}
        s_mul_i32 s{S_X}, s{S_R}, {L.RN*512}
        s_lshl_b32 s{S_Y}, s{S_G}, 14
        s_add_u32 s{S_X}, s{S_X}, s{S_Y}
        s_add_u32 s{S_X}, s{S_X}, 16384""")
        if half:
            a(f"""s_and_b32 s{S_Y}, s{S_S}, 1
            s_lshl_b32 s{S_Y}, s{S_Y}, 13
            s_add_u32 s{S_X}, s{S_X}, s{S_Y}
            buffer_load_dword v{CO}, v{U1}, s[{R_X}:{R_X+3}], s{S_X} offen""")
        else:
            a(f"""buffer_load_dword v{CO}, v{U1}, s[{R_X}:{R_X+3}], s{S_X} offen
            s_add_u32 s{S_X}, s{S_X}, 8192
            buffer_load_dword v{CO}, v{U1}, s[{R_X}:{R_X+3}], s{S_X} offen""")
        a("g_noxpf:")
    sync(a, C_W)
    for ks in range(16):
        for hf in range(2):
            r = BF + ks*4 + hf*2
            a(f"ds_read_b64_tr_b16 v[{r}:{r+1}], v{BA} offset:{ks*2048 + hf*512}")
    if "xpf" in OPT: a(f"s_cmp_lt_u32 s{S_W}, 12\ns_cbranch_scc1 g_nw\ns_waitcnt vmcnt(0)\ng_nw:")
    elif "fx0" not in OPT: a("s_waitcnt vmcnt(0)")
    sync(a, C_F)
    stamp(a, 2)
    K = 0x8000 + (L.HVEXP << 23)
    ARAT, RDAT = oi("arat", 4), oi("rdat", 8)

    XW = oi("xw", 4)
    SIG = [int(y) for y in OPT.get("sig", "3,6,9,12").split(",")]
    HOLD = oi("hold", 30)
    def xst(st):
        for j in range(4):
            a(f"""s_add_u32 m0, s{SXL}, {XS[st] + j*4*XP}
            s_add_u32 s{S_Y}, s{SXB}, {st*16384 + j*4096}
            buffer_load_dwordx4 v{XA_}, s[{R_X}:{R_X+3}], s{S_Y} offen lds""")
    NR_, LA_ = 6, 5
    def stream(P):
        ds = []
        def dsop(tag, ins): a(ins); ds.append(tag)
        def dswait(tag):
            i = max(k for k, t in enumerate(ds) if t == tag)
            a(f"s_waitcnt lgkmcnt({min(15, len(ds) - 1 - i)})")
        def rdA(n):
            st, ks = divmod(n, 16)
            if n == 16: a(f"v_add_u32 v{XR}, {(XT - X0) & 0xffffffff:#x}, v{XR}")
            r = AR + (n % NR_) * 4
            dsop(("A", n), f"ds_read_b128 v[{r}:{r+3}], v{XR} offset:{max(st-1, 0)*XST + ks*32}")
        def pack(st):
            x = ACC_ + (st % 2) * 16; h = x + 8
            o = [f"v_mul_f32 v{x+r}, 0xbfb8aa3b, v{x+r}" for r in range(8)]
            if not P:
                o += [f"v_mul_f32 v{h+r}, 0x49800000, v{h+r}" for r in range(8)]
                return o + [f"v_cvt_pk_bf16_f32 v{h+r}, v{x+r}, v{h+r}" for r in range(8)]
            o += [f"v_add_u32 v{h+r}, {K:#x}, v{h+r}" for r in range(8)]
            o += [f"v_cvt_pk_bf16_f32 v{x+r}, v{x+r}, v{x+r+1}" for r in range(0, 8, 2)]
            o += [f"v_sub_u32_sdwa v{h+r}, v{h+r}, v{x+(r&6)} dst_sel:DWORD dst_unused:UNUSED_PAD src0_sel:DWORD src1_sel:WORD_{r&1}" for r in range(8)]
            o += [f"v_perm_b32 v{h+r}, v{h+r}, v{x+(r&6)}, s{SP1 if r&1 else SP0}" for r in range(8)]
            return o
        def wr(st):
            h = ACC_ + (st % 2) * 16 + 8
            for q in range(2): dsop(("W", st), f"ds_write_b128 v{OA}, v[{h+4*q}:{h+4*q+3}] offset:{16*q}")
            d = (RINGS[(st+1) % 2] - RINGS[st % 2]) if P else STG
            if st < 4: a(f"v_add_u32 v{OA}, {d & 0xffffffff:#x}, v{OA}")
        def copy_rd(st, r=CO):
            for q in range(2): dsop(("C", st), f"ds_read_b128 v[{r+4*q}:{r+4*q+3}], v{CA[st%2]} offset:{q*16*RS}")
        def copy_st(st, r=CO):
            dswait(("C", st))
            for q in range(2):
                a(f"s_mov_b32 s{S_X}, {st*8192 + q*4096}\nbuffer_store_dwordx4 v[{r+4*q}:{r+4*q+3}], v{SA}, s[{R_O}:{R_O+3}], s{S_X} offen{SC}")
        def darr(tag, off):
            a("s_mov_b64 exec, 1")
            dsop(tag, f"ds_add_u32 v{CB}, v{ONE} offset:{off}")
            a("s_mov_b64 exec, -1")
        for n in range(LA_): rdA(n)
        pend = []
        for n in range(80):
            st, ks = divmod(n, 16)
            c_off = C_X + 4 * st
            if not P:
                for k_, at in enumerate(SIG):
                    if at == n:
                        xs = k_ + 1
                        a(f"s_waitcnt vmcnt({4 * (min(4, xs + XW - 1) - xs)})\ns_mov_b64 exec, 1")
                        dsop(("X", xs), f"ds_add_u32 v{CB}, v{T2} offset:{C_X + 4*k_}")
                        a("s_mov_b64 exec, -1")
                        if xs + XW <= 4: xst(xs + XW)
                if n == HOLD + 1: spin(a, C_S4, LANE, S_X, n=8, sl=1, first=False)
                if n == HOLD: spin(a, (C_X + 4 * oi("as", 5)) if oi("as", 5) < 5 else C_R2, LANE, S_X, n=4, sl=1, mask=0xf, first=False)
            if ks == ARAT: darr(("S", st), c_off)
            if ks == RDAT: dsop(("R", st), f"ds_read_b32 v{CV}, v{CB} offset:{c_off}")
            if ks == 16 - LA_:
                dswait(("R", st))
                a(f"v_readfirstlane_b32 s{S_X}, v{CV}")
                if P: spin(a, c_off, CV, S_X, n=(0x404 if st < 4 else 4), sl=1, mask=0xf0f)
                elif st < 2: spin(a, c_off, CV, S_X, n=0x400, sl=1, mask=0xf00)
                else: spin(a, c_off, CV, S_X, n=(0x444 if st < 4 else 0x44), sl=1, mask=0xfff)
                if st == 1: stamp(a, 4)
                if st == 3: stamp(a, 5)
            cr = ACC_ + ((st + 1) % 2) * 16
            if ks == 14 and P:
                if st == 2 and "xpf" in OPT: a("s_waitcnt vmcnt(0)")
                if st >= 2: copy_rd(st - 2, cr)
                if st == 4: darr("R2", C_R2)
            if n + LA_ < 80: rdA(n + LA_)
            if n % 2 == 0: dswait(("A", n + 1))
            r = AR + (n % NR_) * 4
            c = ACC_ + (st % 2) * 16
            a(f"v_mfma_f32_32x32x16_bf16 v[{c}:{c+15}], v[{BF+ks*4}:{BF+ks*4+3}], v[{r}:{r+3}], " + ("0" if ks == 0 else f"v[{c}:{c+15}]"))
            if ks == 2 and pend: a("s_nop 5")
            if ks >= 2:
                for _ in range(3 if P else 2):
                    if pend: a(pend.pop(0))
            if ks == 14 and st >= 1:
                assert not pend
                wr(st - 1)
            if P and ks == 15 and st >= 2: copy_st(st - 2, cr)
            if ks == 15: pend = pack(st)
        if P: a(f"ds_read_b32 v{CV}, v{CB} offset:{C_R2}\ns_nop 10")
        else: a("s_nop 11")
        for x in pend: a(x)
        if P:
            a(f"s_waitcnt lgkmcnt(0)\nv_readfirstlane_b32 s{S_X}, v{CV}")
            spin(a, C_R2, CV, S_X, n=4)
        wr(4)
        stamp(a, 6)
        if P:
            sync(a, C_E, n=4)
            copy_rd(3, AR + 8); copy_rd(4, AR)
            copy_st(3, AR + 8); copy_st(4, AR)
            arrive(a, C_PE)

    a(f"s_cmp_ge_u32 s{S_W}, 12\ns_cbranch_scc1 a_role")
    a(f"v_add_u32 v{CA[1]}, {(RINGS[1]-RINGS[0]) & 0xffffffff:#x}, v{CA[0]}")
    if "fx0" in OPT: wait(a, C_MK, 4, sl=0)
    if "pprio" in OPT: a(f"s_setprio {OPT['pprio']}")
    stamp(a, 3)
    stream(True)
    a(f"s_setprio {oi('ptail', 3)}")
    stamp(a, 7)
    a(f"""v_mbcnt_lo_u32_b32 v{LANE}, -1, 0
    v_mbcnt_hi_u32_b32 v{LANE}, -1, v{LANE}
    s_lshl_b32 s{S_Y}, s{S_G}, {6+FSH}
    s_add_u32 s{S_Y}, s{S_Y}, {WS_FE:#x}
    v_lshl_add_u32 v2, v{LANE}, {FSH}, s{S_Y}
    global_load_dwordx2 v[4:5], v2, s[{P_WS}:{P_WS+1}] sc1
    ds_read_b32 v13, v{CB} offset:{C_IDX}
    s_mul_i32 s{S_X}, s{S_G}, {64*L.CHS*32}""")
    srd(a, RD, P_WS, L.WS_EA, 64 * L.CHS * 32, soff=S_X)
    a(f"""v_and_b32 v3, 62, v{LANE}
    s_lshl_b32 s{S_X}, s{S_G}, 11
    s_add_u32 s{S_X}, s{S_X}, {MARK2}
    v_add_u32 v3, s{S_X}, v3
    v_lshl_add_u32 v6, s{S_G}, 4, v{CB}
    v_lshlrev_b32 v7, 4, v{LANE}
    v_add_u32 v12, {32*L.CHS*32}, v7
    s_waitcnt lgkmcnt(0)
    v_readfirstlane_b32 s{S_NT}, v13
    s_cmp_ge_u32 s{S_NT}, 8
    s_cbranch_scc1 p_idx""")
    a.c("indices not ready yet: publish the table first")
    wait(a, C_S3, 1)
    a(f"ds_read_b64 v[0:1], v{CB} offset:{C_TAG}\ns_waitcnt vmcnt(0)")
    publish_done(a, "p_pd0", 0, C_D, 4, False)
    wait(a, C_IDX, 8)
    PX = 16
    a(f"p_idx:\nds_read_b64 v[0:1], v{CB} offset:{C_TAG}\nds_read_b128 v[8:11], v6 offset:{C_BT}")
    for h in range(2):
        for k in range(NK): a(f"ds_read_u16 v{PX+NK*h+k}, v3 offset:{1024*h + 64*k}")
    arrive(a, C_P2)
    a("s_waitcnt lgkmcnt(0)")
    SB, ST = [S_BASE, S_N0], [S_T, S_N1]
    for h in range(2): a(f"v_readfirstlane_b32 s{SB[h]}, v{8+2*h}\nv_readfirstlane_b32 s{ST[h]}, v{9+2*h}")
    k0 = NE // 32
    for h in range(2):
        for k in range(k0): a(f"v_lshl_add_u32 v{PX+NK*h+k}, v{PX+NK*h+k}, 5, v{12 if h else 7}")
    wait(a, C_P2, 4, sl=0)
    wait(a, C_X + 4, 0x40, mask=0xf0, sl=0)
    a(f"s_cmp_lt_u32 s{S_NT}, 8\ns_cbranch_scc1 p_pd1\ns_waitcnt vmcnt(1)")
    publish_done(a, "p_pd1", 0, C_D, 4, False)
    flag_poll(a, "p_fp", 2, 4, "v[0:1]", oi("psl", 2))
    EW = oi("ew", 8)
    a(f"s_mul_i32 s{S_Z}, s{S_G}, {2*NE*32}\ns_movk_i32 s{S_Y}, 4096")
    for h in range(2):
        for k in range(k0):
            if k % 4 == 0: a(f"s_add_u32 m0, s{S_Z}, {EA_E + h*NE*32 + 1024*k}")
            a(f"s_waitcnt vmcnt({EW-1})\nbuffer_load_dwordx4 v{PX+NK*h+k}, s[{RD}:{RD+3}], {'0' if k < 4 else 's%d' % S_Y} offen offset:{1024*(k%4)}{SC} lds")
        if h == 0:
            for hh in range(2):
                for k in range(k0, 10): a(f"v_lshl_add_u32 v{PX+NK*hh+k}, v{PX+NK*hh+k}, 5, v{12 if hh else 7}")
    stamp(a, 9)
    a("s_setprio 0")
    ldconsts(a)
    arrive(a, C_AE)
    wait(a, C_AE, 8, sl=2)
    a("s_setprio 3")
    for h in range(2):
        a(f"s_lshl_b32 s{S_Z}, s{SB[h]}, 5")
        for k in range(k0, NK):
            if (k - k0) % 4 == 0: a(f"s_add_u32 m0, s{S_Z}, {EA + 1024*(k-k0)}\ns_movk_i32 s{S_X}, {1024*k}")
            a(f"""s_cmp_gt_u32 s{ST[h]}, {32*k}
            s_cbranch_scc0 p_ld{h}
            {"v_lshl_add_u32 v%d, v%d, 5, v%d" % (PX+NK*h+k, PX+NK*h+k, 12 if h else 7) if k >= 10 else ""}
            s_waitcnt vmcnt({EW-1})
            buffer_load_dwordx4 v{PX+NK*h+k}, s[{RD}:{RD+3}], s{S_X} offen offset:{1024*((k-k0)%4)}{SC} lds""")
        a(f"p_ld{h}:")
    a(f"v_mov_b32 v3, 0x1000")
    arrive(a, C_GO, 3)
    a("s_waitcnt vmcnt(0)")
    arrive(a, C_RDY)
    a("s_branch k_join")
    a("a_role:")
    a(f"v_mov_b32 v{T2}, 0x100")
    if "fx0" in OPT:
        xst(1)
        a("s_waitcnt vmcnt(4)")
        arrive(a, C_MK)
        for st in range(2, 1 + XW): xst(st)
        arrive(a, C_XI)
        wait(a, C_MK, 4, sl=0)
    else:
        for st in range(1, 1 + XW): xst(st)
        arrive(a, C_XI)
    a(f"v_mov_b32 v{ONE}, 16")
    if "aprio" in OPT: a(f"s_setprio {OPT['aprio']}")
    stamp(a, 3)
    stream(False)
    a(f"v_mov_b32 v{ONE}, 1")
    a(f"v_mbcnt_lo_u32_b32 v{LANE}, -1, 0\nv_mbcnt_hi_u32_b32 v{LANE}, -1, v{LANE}")
    ldconsts(a)
    arrive(a, C_AE)
    a("s_setprio 0")
    stamp(a, 7)

def rd_ad(t): return [f"ds_read_b128 v[{AD+4*q}:{AD+4*q+3}], v{PROW} offset:{ROW + 64*t + 16*q}" for q in range(4)]
def gathers(g): return [f"buffer_load_dword v{g+j}, v{AD+slot_of_reg(j)}, s[{R_TBL}:{R_TBL+3}], 0 offen{SC}" for j in range(16)]
def rd_eidx(t): return [f"ds_read_u16 v{EIDX}, v{PEAD} offset:{EAD + 32*t}"]
def rd_a():
    return [f"v_lshl_add_u32 v{EADDR}, v{EIDX}, 5, v{KHC}",
            f"s_mov_b64 exec, s[{S_E0}:{S_E0+1}]", f"ds_read_b128 v[{A0}:{A0+3}], v{EADDR}",
            f"s_mov_b64 exec, s[{S_E1}:{S_E1+1}]", f"ds_read_b128 v[{A1}:{A1+3}], v{EADDR}", "s_mov_b64 exec, -1"]
def rd_xa(x):
    o = [f"s_mov_b32 m0, s{S_RO}"]
    for k in range(4):
        o += [f"s_bitcmp1_b32 s{S_FR}, {k}", f"ds_read_addtid_b32 v{x+k} offset:{XAU}", f"s_cselect_b32 s{S_X}, {RS}, 0"]
        o += [f"s_add_u32 m0, m0, s{S_X}" if k < 3 else f"s_add_u32 s{S_RO}, m0, s{S_X}"]
    o += [f"s_lshr_b64 s[{S_FR}:{S_FR+1}], s[{S_FR}:{S_FR+1}], 4"]
    return o
def bigs(d, x):
    D = f"v[{d}:{d+15}]"
    return [f"v_mfma_f32_32x32x16_bf16 {D}, v[{A0}:{A0+3}], v[{B0}:{B0+3}], 0",
            f"v_mfma_f32_32x32x16_bf16 {D}, v[{A1}:{A1+3}], v[{B1}:{B1+3}], {D}",
            f"v_mfma_f32_32x32x16_bf16 {D}, v[{A2}:{A2+3}], v[{x}:{x+3}], {D}"]
def smalls(d, g):
    return [f"v_mfma_f32_16x16x32_bf16 v[{d+4*q}:{d+4*q+3}], v[{SEL}:{SEL+3}], v[{g+4*q}:{g+4*q+3}], v[{d+4*q}:{d+4*q+3}]" for q in range(4)]
def pk(d, h):
    X = lambda i: f"v[{d+2*i}:{d+2*i+1}]"; H = lambda i: f"v[{h+2*i}:{h+2*i+1}]"; C = f"v[{CC}:{CC+1}]"
    return [f"v_pk_fma_f32 {X(i)}, {X(i)}, {C}, {C} clamp" for i in range(4)] + [
        f"v_pk_mul_f32 {H(0)}, {H(0)}, {X(1)}", f"v_pk_mul_f32 {H(2)}, {H(2)}, {X(3)}",
        f"v_pk_fma_f32 {H(0)}, {H(1)}, {X(0)}, {H(0)}", f"v_pk_fma_f32 {H(2)}, {H(3)}, {X(2)}, {H(2)}",
        f"v_pk_mul_f32 {X(0)}, {X(0)}, {X(1)}", f"v_pk_mul_f32 {X(2)}, {X(2)}, {X(3)}",
        f"v_pk_mul_f32 {X(1)}, {X(0)}, {X(2)}", f"v_pk_mul_f32 {X(3)}, {H(0)}, {X(2)}",
        f"v_pk_fma_f32 {X(3)}, {H(2)}, {X(0)}, {X(3)}"]

NP_ = [120, 124]; DP_ = [122, 126]
def P2(r): return f"v[{r}:{r+1}]"
def seq(d, h, g):
    X = lambda i: P2(d + 2*i); H = lambda i: P2(h + 2*i); N = P2(NP_[g]); D = P2(DP_[g])
    o = [f"v_pk_add_f32 {D}, {X(0)}, 1.0 op_sel_hi:[1,0]", f"v_pk_fma_f32 {N}, {H(0)}, {X(1)}, {H(0)}",
         f"v_pk_fma_f32 {N}, {H(1)}, {D}, {N}", f"v_pk_fma_f32 {D}, {D}, {X(1)}, {D}"]
    for i in (2, 3):
        o += [f"v_pk_fma_f32 {N}, {N}, {X(i)}, {N}", f"v_pk_fma_f32 {N}, {H(i)}, {D}, {N}", f"v_pk_fma_f32 {D}, {D}, {X(i)}, {D}"]
    return o
def safe(d, h, g):
    return [f"v_mov_b32 v{CC}, 0x30800000", f"v_mov_b32 v{CC+1}, 0x30800000"] + pk(d, h) + [f"v_mov_b32 v{d}, 0x4e800000", f"v_mov_b32 v{NP_[g]}, v{d+6}", f"v_mov_b32 v{NP_[g]+1}, v{d+7}",
                       f"v_mul_f32 v{DP_[g]}, v{d}, v{d+2}", f"v_mul_f32 v{DP_[g]+1}, v{d}, v{d+3}"]
def check(lab, ng=2):
    if ng == 2: o = [f"v_fma_f32 v{EADDR}, v{DP_[0]}, v{DP_[0]+1}, v{DP_[1]}", f"v_add_f32 v{EADDR}, v{EADDR}, v{DP_[1]+1}"]
    else: o = [f"v_add_f32 v{EADDR}, v{DP_[0]}, v{DP_[0]+1}"]
    return o + [f"v_cmp_ngt_f32 vcc, 0x57800000, v{EADDR}", f"s_cbranch_vccnz {lab}"]
def accum(a, c, ks, tag):
    for k in ks:
        nx = XA[c] + k + 1 if k < 3 else XA[1 - c]
        a(f"""v_fmac_f32 v{ACC}, v{NP_[k//2]+k%2}, v{DP_[k//2]+k%2}
        s_bitcmp1_b32 s{S_FF}, {k}
        s_cbranch_scc0 k2_nofl{tag}_{k}
        s_mov_b32 m0, s{S_FO}
        s_add_u32 s{S_FO}, s{S_FO}, {RS}
        ds_write_addtid_b32 v{ACC} offset:{XAU}
        v_and_b32 v{ACC}, 0xffff0000, v{nx}
        k2_nofl{tag}_{k}:""")

def mainloop(a):
    em = lambda ls: [a(x) for x in ls]
    a(f"""k_join:
    s_mov_b32 s{S_E0}, 0x0f0f0f0f
    s_mov_b32 s{S_E0+1}, 0x0f0f0f0f
    s_mov_b32 s{S_E1}, 0xf0f0f0f0
    s_mov_b32 s{S_E1+1}, 0xf0f0f0f0
    s_mov_b32 s{S_FIRST}, 1
    s_mov_b32 s{S_BASE}, 1""")
    if "contig" in OPT:
        a(f"""s_and_b32 s{S_Y}, s{S_W}, 3
        s_lshl_b32 s{S_Y}, s{S_Y}, 2
        s_lshr_b32 s{S_Z}, s{S_W}, 2
        s_add_u32 s{S_Y}, s{S_Y}, s{S_Z}
        s_lshl_b32 s{S_Y}, s{S_Y}, 3""")
    else: a(f"s_lshl_b32 s{S_Y}, s{S_W}, 3")
    a(f"v_mov_b32 v{T1}, s{S_Y}\nv_lshlrev_b32 v{T2}, 4, v{LANE}")
    wait(a, C_GO, 8, mask=0xf)
    a(f"""ds_read_b64 v[0:1], v{T1} offset:{BND}
    ds_read_b64 v[2:3], v{T1} offset:{BND+8}
    ds_read_b32 v5, v{CB} offset:{C_OVF}
    ds_read_b128 v[{B0}:{B0+3}], v{T2} offset:{BW}
    ds_read_b128 v[{B1}:{B1+3}], v{T2} offset:{BW+1024}
    s_waitcnt lgkmcnt(2)
    v_readfirstlane_b32 s{S_N0}, v0
    v_readfirstlane_b32 s{S_Q0}, v1
    v_readfirstlane_b32 s{S_N1}, v2
    v_readfirstlane_b32 s{S_NQ}, v3
    v_lshlrev_b32 v{PROW}, 2, v1
    v_lshl_add_u32 v{PEAD}, v1, 1, v{PEAD}
    s_sub_u32 s{S_NQ}, s{S_NQ}, s{S_Q0}
    s_lshr_b32 s{S_NQ}, s{S_NQ}, 2
    s_lshr_b32 s{S_Q0}, s{S_Q0}, 2
    s_mul_i32 s{S_FO}, s{S_N0}, {RS}
    v_readfirstlane_b32 s{S_X}, v5
    s_cmp_lg_u32 s{S_X}, 0
    s_cbranch_scc1 k_slow""")
    a(f"""k2_block:
    v_add_u32 v{T2}, s{S_Q0}, v{LANE}""")
    em(rd_ad(0))
    a(f"s_cmp_eq_u32 s{S_NQ}, 0\ns_cbranch_scc1 k2_epi")
    a(f"ds_read_u8 v{T3}, v{T2} offset:{FLG}")
    em(rd_eidx(0))
    a(f"""s_min_u32 s{S_Y}, s{S_NQ}, 64
    s_add_u32 s{S_NT}, s{S_Y}, 3
    s_lshr_b32 s{S_NT}, s{S_NT}, 2
    s_mov_b32 s{S_RO}, s{S_FO}
    v_cmp_gt_u32 vcc, s{S_Y}, v{LANE}
    s_sub_u32 s{S_Y}, s{S_Y}, 1
    s_and_b32 s{S_T}, s{S_Y}, 2
    s_waitcnt lgkmcnt(0)
    v_cmp_ne_u32 s[{S_FF}:{S_FF+1}], 0, v{T3}
    s_and_b64 s[{S_FF}:{S_FF+1}], s[{S_FF}:{S_FF+1}], vcc
    s_mov_b64 s[{S_FR}:{S_FR+1}], s[{S_FF}:{S_FF+1}]
    s_bitset0_b64 s[{S_FR}:{S_FR+1}], s{S_Y}
    s_cmp_eq_u32 s{S_FIRST}, 0
    s_cbranch_scc1 k2_g0""")
    if "gearly" in OPT: wait(a, C_GO, 0x108, mask=0xfff)
    else: wait(a, C_GO, 0x4108)
    a("k2_g0:")
    em(gathers(G[0])); em(rd_ad(1))
    a(f"s_cmp_eq_u32 s{S_FIRST}, 0\ns_cbranch_scc1 k2_nobar")
    wait(a, C_RDY, 4)
    a(f"""s_mov_b32 s{S_FIRST}, 0
    k2_nobar:
    s_setprio 3""")
    stamp(a, 10)
    a("s_waitcnt lgkmcnt(0)")
    em(rd_a()); em(rd_eidx(1)); em(rd_xa(XA[0]))
    em(gathers(G[1])); em(rd_ad(2))
    a("s_waitcnt lgkmcnt(4)")
    em(bigs(Dd[0], XA[0]))
    a(f"s_cmp_eq_u32 s{S_BASE}, 0\ns_cbranch_scc1 k2_keep\nv_and_b32 v{ACC}, 0xffff0000, v{XA[0]}\nk2_keep:\ns_lshr_b32 s{S_BASE}, s{S_FF+1}, 31")
    em(rd_a()); em(rd_eidx(2)); em(rd_xa(XA[1]))
    a("s_waitcnt vmcnt(16)")
    em(smalls(Dd[0], G[0]))
    stamp(a, 11)
    a(f"s_nop 5\ns_cmp_eq_u32 s{S_NT}, 1\ns_cbranch_scc1 k2_last0")
    a("k2_loop:")
    rc = [f"v_rcp_f32 v{DP_[k//2]+k%2}, v{DP_[k//2]+k%2}" for k in range(4)]
    for u in range(2):
        c, n = u, 1 - u
        e = [f"v_exp_f32 v{Dd[c]+j}, v{Dd[c]+j}" for j in range(16)]
        b = bigs(Dd[n], XA[n])
        a("s_waitcnt lgkmcnt(4)")
        em([b[0]] + e[0:4] + [b[1]] + e[4:8] + ["s_waitcnt lgkmcnt(0)", b[2]] + e[8:12])
        em(rd_a()); em(rd_eidx(3 + u)); em(e[12:16])
        em(inter(seq(Dd[c], G[c], 0), seq(Dd[c] + 8, G[c] + 8, 1)))
        em(check(f"k2_safe{u}"))
        a(f"k2_ok{u}:\ns_cmp_le_u32 s{S_NT}, 2\ns_cbranch_scc1 k2_noload{u}")
        em(gathers(G[c]))
        em(rd_ad(3 + u))
        a(f"s_waitcnt vmcnt(16)\nk2_loaded{u}:")
        em(inter(smalls(Dd[n], G[n]), rc))
        accum(a, c, range(4), str(u))
        em(rd_xa(XA[c]))
        a(f"s_lshr_b64 s[{S_FF}:{S_FF+1}], s[{S_FF}:{S_FF+1}], 4")
        if u == 1: a(f"v_add_u32 v{PROW}, 128, v{PROW}\nv_add_u32 v{PEAD}, 64, v{PEAD}")
        nx = 'k2_mid' if u == 0 else 'k2_loop'
        a(f"""s_sub_u32 s{S_NT}, s{S_NT}, 1
        s_cmp_gt_u32 s{S_NT}, {PRIO[0]}
        s_cbranch_scc1 {nx}
        s_setprio 2
        s_cmp_gt_u32 s{S_NT}, {PRIO[1]}
        s_cbranch_scc1 {nx}
        s_setprio 1
        s_cmp_gt_u32 s{S_NT}, 1""")
        a(f"s_cbranch_scc0 k2_last1\nk2_mid:" if u == 0 else "s_cbranch_scc1 k2_loop")
    for c in range(2):
        e = [f"v_exp_f32 v{Dd[c]+j}, v{Dd[c]+j}" for j in range(16)]
        a(f"k2_last{c}:\ns_setprio {oi('lprio', 0)}\ns_cmp_eq_u32 s{S_T}, 0\ns_cbranch_scc1 k2_half{c}")
        em(e); em(inter(seq(Dd[c], G[c], 0), seq(Dd[c] + 8, G[c] + 8, 1)))
        em(check(f"k2_safe{c+2}"))
        a(f"k2_ok{c+2}:"); em(rc)
        accum(a, c, range(4), f"l{c}")
        a(f"s_branch k2_loopend\nk2_half{c}:")
        em(e[:8]); em(seq(Dd[c], G[c], 0))
        em(check(f"k2_safe{c+4}", 1))
        a(f"k2_ok{c+4}:"); em(rc[:2]); a("s_nop 0")
        accum(a, c, range(2), f"h{c}")
        if c == 0: a("s_branch k2_loopend")
    a(f"""k2_loopend:
    v_mbcnt_lo_u32_b32 v{LANE}, -1, 0
    v_mbcnt_hi_u32_b32 v{LANE}, -1, v{LANE}
    s_cmp_le_u32 s{S_NQ}, 64
    s_cbranch_scc1 k2_epi
    s_sub_u32 s{S_NQ}, s{S_NQ}, 64
    s_add_u32 s{S_Q0}, s{S_Q0}, 64
    v_add_u32 v{PROW}, 128, v{PROW}
    v_add_u32 v{PEAD}, 64, v{PEAD}
    s_waitcnt lgkmcnt(0)
    s_branch k2_block""")
    for u in range(2): a(f"k2_noload{u}:\ns_waitcnt vmcnt(0)\ns_branch k2_loaded{u}")
    for u in range(6):
        c = u % 2
        a(f"k2_safe{u}:")
        em(safe(Dd[c], G[c], 0))
        if u < 4: em(safe(Dd[c] + 8, G[c] + 8, 1))
        a(f"s_branch k2_ok{u}")

def epilogue(a):
    E = 0; CW = 64; C2 = 66
    OSC = {"": " sc1", "sc1": " sc1", "plain": "", "nt": " nt"}[OPT.get("outsc", "")]
    a("k2_epi:")
    stamp(a, 12)
    a(f"""v_lshrrev_b32 v{T0}, 3, v{LANE}
    v_and_b32 v{T1}, 7, v{LANE}
    v_add_u32 v{T0}, s{S_N0}, v{T0}
    v_mul_u32_u24 v{T2}, {RS}, v{T0}
    v_lshl_add_u32 v{T2}, v{T1}, 5, v{T2}
    v_lshlrev_b32 v{T3}, 9, v{T0}
    v_lshl_add_u32 v{T3}, v{T1}, 4, v{T3}
    s_mul_i32 s{S_X}, s{S_R}, {L.RN*512}
    s_lshl_b32 s{S_Y}, s{S_S}, 7
    s_add_u32 s{S_X}, s{S_X}, s{S_Y}
    s_waitcnt vmcnt(0) lgkmcnt(0)
    v_mov_b32 v{CW}, 0xb5b8aa3b
    v_mov_b32 v{CW+1}, 0xb5b8aa3b
    v_mov_b32 v{C2}, 0x49800000
    v_mov_b32 v{C2+1}, 0x49800000""")
    def silu(n):
        for i in range(n): a(f"v_pk_mul_f32 v[{E+8+2*i}:{E+9+2*i}], v[{E+2*i}:{E+2*i+1}], v[{CW}:{CW+1}]")
        for i in range(2*n): a(f"v_exp_f32 v{E+8+i}, v{E+8+i}")
        for i in range(n): a(f"v_pk_fma_f32 v[{E+8+2*i}:{E+9+2*i}], v[{E+8+2*i}:{E+9+2*i}], v[{C2}:{C2+1}], v[{C2}:{C2+1}]")
        for i in range(2*n): a(f"v_rcp_f32 v{E+8+i}, v{E+8+i}")
        for i in range(n): a(f"v_pk_mul_f32 v[{E+2*i}:{E+2*i+1}], v[{E+2*i}:{E+2*i+1}], v[{E+8+2*i}:{E+9+2*i}]")
        for i in range(n): a(f"v_cvt_pk_bf16_f32 v{E+16+i}, v{E+2*i}, v{E+2*i+1}")
    a(f"""k2_eloop:
    s_add_u32 s{S_Y}, s{S_N0}, 4
    s_cmp_ge_u32 s{S_Y}, s{S_N1}
    s_cbranch_scc1 k2_e4
    ds_read_b128 v[{E}:{E+3}], v{T2} offset:{XAU}
    ds_read_b128 v[{E+4}:{E+7}], v{T2} offset:{XAU+16}
    v_cmp_gt_u32 vcc, s{S_N1}, v{T0}
    v_add_u32 v{T0}, 8, v{T0}
    v_add_u32 v{T2}, {8*RS}, v{T2}
    s_waitcnt lgkmcnt(0)""")
    silu(4)
    a(f"""s_mov_b64 exec, vcc
    buffer_store_dwordx4 v[{E+16}:{E+19}], v{T3}, s[{R_OUT}:{R_OUT+3}], s{S_X} offen{OSC}
    s_mov_b64 exec, -1
    v_add_u32 v{T3}, 0x1000, v{T3}
    s_add_u32 s{S_N0}, s{S_N0}, 8
    s_branch k2_eloop
    k2_e4:
    s_cmp_ge_u32 s{S_N0}, s{S_N1}
    s_cbranch_scc1 k2_done
    v_lshrrev_b32 v{T0}, 4, v{LANE}
    v_and_b32 v{T1}, 15, v{LANE}
    v_add_u32 v{T0}, s{S_N0}, v{T0}
    v_mul_u32_u24 v{T2}, {RS}, v{T0}
    v_lshl_add_u32 v{T2}, v{T1}, 4, v{T2}
    ds_read_b128 v[{E}:{E+3}], v{T2} offset:{XAU}
    v_lshlrev_b32 v{T3}, 9, v{T0}
    v_lshl_add_u32 v{T3}, v{T1}, 3, v{T3}
    v_cmp_gt_u32 vcc, s{S_N1}, v{T0}
    s_waitcnt lgkmcnt(0)""")
    silu(2)
    a(f"""s_mov_b64 exec, vcc
    buffer_store_dwordx2 v[{E+16}:{E+17}], v{T3}, s[{R_OUT}:{R_OUT+3}], s{S_X} offen{OSC}
    s_mov_b64 exec, -1
    k2_done:""")

def slowpath(a):
    CF, DV, SV, L4, TT, GV, XV, AV, ZZ = 0, 16, 17, 18, 19, 20, 21, 22, 24
    MK, EAS, SD, SS, SE = 4, 8, S_T, S_BASE, S_SL
    a("k_slow:\ns_setprio 0")
    wait(a, C_GO, 0x4108)
    wait(a, C_RDY, 4)
    a(f"""s_load_dwordx2 s[{RA}:{RA+1}], s[0:1], 24
    s_load_dwordx2 s[{RB}:{RB+1}], s[0:1], 16
    s_load_dwordx2 s[{RC}:{RC+1}], s[0:1], 8
    s_load_dwordx2 s[{RD}:{RD+1}], s[0:1], 48
    v_lshlrev_b32 v{L4}, 2, v{LANE}
    v_lshlrev_b32 v{TT}, 1, v{LANE}
    s_lshl_b32 s{S_X}, s{S_W}, 10
    s_add_u32 s{S_X}, s{S_X}, {EA}
    v_lshl_add_u32 v{AV}, v{LANE}, 4, s{S_X}""")
    for k in range(4): a(f"v_mov_b32 v{ZZ+k}, 0")
    for k in range(3): a(f"ds_write_b128 v{AV}, v[{ZZ}:{ZZ+3}] offset:{16384*k}")
    a(f"""s_waitcnt lgkmcnt(0)
    s_mov_b32 s{RA+2}, {L.E*4}
    s_mov_b32 s{RA+3}, 0x20000
    s_mov_b32 s{RB+2}, {L.E*4}
    s_mov_b32 s{RB+3}, 0x20000
    s_mov_b32 s{RC+2}, {L.E*32}
    s_mov_b32 s{RC+3}, 0x20000
    s_mov_b32 s{RD+2}, {528*512}
    s_mov_b32 s{RD+3}, 0x20000
    s_lshl_b32 s{S_X}, s{S_S}, 7
    s_add_u32 s{S_X}, s{S_X}, {512*512}
    s_add_u32 s{S_Y}, s{S_X}, 4096""")
    for k in range(16): a(f"buffer_load_ushort v{CF+k}, v{TT}, s[{RD}:{RD+3}], s{S_X if k < 8 else S_Y} offen offset:{512*(k%8)}")
    a("s_waitcnt vmcnt(0)")
    for k in range(16): a(f"v_lshlrev_b32 v{CF+k}, 16, v{CF+k}\nv_mul_f32 v{CF+k}, 0xbfb8aa3b, v{CF+k}")
    a(f"""s_mul_i32 s{S_Z}, s{S_R}, {L.RN}
    s_lshl_b32 s{S_NT}, s{S_W}, 8
    s_barrier
    sl_blk:
    buffer_load_dword v{DV}, v{L4}, s[{RA}:{RA+3}], s{S_NT} offen
    buffer_load_dword v{SV}, v{L4}, s[{RB}:{RB+3}], s{S_NT} offen
    s_waitcnt vmcnt(0)
    v_subrev_u32 v{DV}, s{S_Z}, v{DV}
    v_cmp_gt_u32 s[{MK}:{MK+1}], s{S_NV}, v{DV}
    v_mul_u32_u24 v{DV}, {RS}, v{DV}
    v_and_b32 v{SV}, 0x3fff, v{SV}
    v_lshlrev_b32 v{SV}, 8, v{SV}
    sl_edge:
    s_cmp_eq_u64 s[{MK}:{MK+1}], 0
    s_cbranch_scc1 sl_next
    s_ff1_i32_b64 s{S_X}, s[{MK}:{MK+1}]
    s_bitset0_b64 s[{MK}:{MK+1}], s{S_X}
    v_readlane_b32 s{SD}, v{DV}, s{S_X}
    v_readlane_b32 s{SS}, v{SV}, s{S_X}
    s_lshl_b32 s{SE}, s{S_NT}, 3
    s_lshl_b32 s{S_X}, s{S_X}, 5
    s_add_u32 s{SE}, s{SE}, s{S_X}
    s_buffer_load_dwordx8 s[{EAS}:{EAS+7}], s[{RC}:{RC+3}], s{SE}
    v_mov_b32 v{TT}, s{SS}
    v_add_u32 v{AV}, s{SD}, v{L4}
    buffer_load_dword v{GV}, v{TT}, s[{R_TBL}:{R_TBL+3}], 0 offen{SC}
    ds_read_b32 v{XV}, v{AV} offset:{XAU}
    v_add_u32 v{AV}, {EA}, v{AV}
    s_waitcnt vmcnt(0) lgkmcnt(0)
    v_lshlrev_b32 v{XV}, 16, v{XV}
    v_lshlrev_b32 v{TT}, 16, v{GV}
    v_add_f32 v{XV}, v{XV}, v{TT}""")
    for k in range(8):
        a(f"""s_lshl_b32 s{S_X}, s{EAS+k}, 16
        s_and_b32 s{S_Y}, s{EAS+k}, 0xffff0000
        v_fmac_f32 v{XV}, s{S_X}, v{CF+2*k}
        v_fmac_f32 v{XV}, s{S_Y}, v{CF+2*k+1}""")
    a(f"""v_exp_f32 v{XV}, v{XV}
    s_nop 0
    v_add_f32 v{XV}, 1.0, v{XV}
    v_rcp_f32 v{XV}, v{XV}
    s_nop 0
    v_mul_f32 v{XV}, v{XV}, v{GV}
    ds_add_f32 v{AV}, v{XV}
    s_branch sl_edge
    sl_next:
    s_add_u32 s{S_NT}, s{S_NT}, 4096
    s_cmp_lt_u32 s{S_NT}, {L.E*4}
    s_cbranch_scc1 sl_blk
    s_waitcnt lgkmcnt(0)
    s_barrier
    s_mul_i32 s{S_N0}, s{S_W}, 10
    s_add_u32 s{S_N1}, s{S_N0}, 10
    s_min_u32 s{S_N0}, s{S_N0}, s{S_NV}
    s_min_u32 s{S_N1}, s{S_N1}, s{S_NV}
    s_mul_i32 s{S_X}, s{S_W}, {10*RS}
    v_add_u32 v{AV}, s{S_X}, v{L4}
    v_add_u32 v{TT}, {EA}, v{AV}""")
    for k in range(10):
        a(f"""ds_read_b32 v{XV}, v{AV} offset:{XAU + k*RS}
        ds_read_b32 v{GV}, v{TT} offset:{k*RS}
        s_waitcnt lgkmcnt(0)
        v_and_b32 v{XV}, 0xffff0000, v{XV}
        v_add_f32 v{XV}, v{XV}, v{GV}
        ds_write_b32 v{AV}, v{XV} offset:{XAU + k*RS}""")
    a("s_branch k2_epi")

def kernel(a):
    a(f".globl {NAME}\n.p2align 8\n.type {NAME},@function\n{NAME}:")
    a(f"""s_cmp_ge_u32 s2, 256
    s_cbranch_scc1 k_end
    s_load_dwordx16 s[4:19], s[0:1], 0
    s_load_dwordx4 s[20:23], s[0:1], 64""")
    if STAMPS: a(f"s_memrealtime s[{ST0}:{ST0+1}]")
    a(f"v_lshrrev_b32 v1, 6, v0")
    MAP = OPT.get("map", "4")
    if MAP == "4":
        a(f"""s_and_b32 s{S_S}, s2, 3
        s_lshr_b32 s{S_R}, s2, 3
        s_bfe_u32 s{S_X}, s2, 0x10002
        s_lshl_b32 s{S_X}, s{S_X}, 5
        s_add_u32 s{S_R}, s{S_R}, s{S_X}""")
    elif MAP == "2":
        a(f"""s_and_b32 s{S_S}, s2, 1
        s_lshl_b32 s{S_S}, s{S_S}, 1
        s_bfe_u32 s{S_X}, s2, 0x10003
        s_add_u32 s{S_S}, s{S_S}, s{S_X}
        s_lshr_b32 s{S_R}, s2, 4
        s_bfe_u32 s{S_X}, s2, 0x20001
        s_lshl_b32 s{S_X}, s{S_X}, 4
        s_add_u32 s{S_R}, s{S_R}, s{S_X}""")
    else:
        a(f"""s_bfe_u32 s{S_S}, s2, 0x20003
        s_lshr_b32 s{S_R}, s2, 5
        s_and_b32 s{S_X}, s2, 7
        s_lshl_b32 s{S_X}, s{S_X}, 3
        s_add_u32 s{S_R}, s{S_R}, s{S_X}""")
    a(f"""v_readfirstlane_b32 s{S_W}, v1
    s_mul_i32 s{S_X}, s{S_R}, {L.RN}
    s_sub_u32 s{S_NV}, {L.N}, s{S_X}
    s_min_u32 s{S_NV}, s{S_NV}, {L.RN}
    v_and_b32 v{LANE}, 63, v0
    v_mov_b32 v{CB}, {CNT}
    v_mov_b32 v{ONE}, 1""")
    if STAMPS:
        for j in range(1, 16): a(f"s_mov_b64 s[{ST0+2*j}:{ST0+2*j+1}], 0")
    a(f"""s_cmp_ge_u32 s{S_W}, 8
    s_waitcnt lgkmcnt(0)
    s_cbranch_scc1 g_role""")
    s_role(a); g_role(a); mainloop(a); slowpath(a); epilogue(a)
    if STAMPS:
        a("s_waitcnt vmcnt(0)"); stamp(a, 13)
        if "xcc" in OPT: a(f"s_getreg_b32 s{ST0+28}, hwreg(HW_REG_XCC_ID)\ns_getreg_b32 s{ST0+29}, hwreg(HW_REG_HW_ID)")
        stamp_flush(a)
    a("k_end:\ns_endpgm")

if __name__ == "__main__":
    a = Asm()
    kernel(a)
    hdr = open("gather_scatter__edge_featured_mpnn_egc__graph.s.ref").read().split("; Override launch")[0]
    out = hdr + f"""; @launch grid=(256,1,1) block=(1024,1,1) lds={LDSZ}
.amdgcn_target "amdgcn-amd-amdhsa--gfx950"
.text
""" + a.text() + f""".section .rodata,"a"
.p2align 6
.amdhsa_kernel {NAME}
  .amdhsa_next_free_vgpr 128
  .amdhsa_next_free_sgpr 102
  .amdhsa_accum_offset 128
  .amdhsa_group_segment_fixed_size 0
  .amdhsa_kernarg_size 80
  .amdhsa_user_sgpr_count 2
  .amdhsa_user_sgpr_kernarg_segment_ptr 1
  .amdhsa_system_sgpr_workgroup_id_x 1
  .amdhsa_float_denorm_mode_32 3
.end_amdhsa_kernel
"""
    open(sys.argv[1], "w").write(out)
```

```python
import sys
from dsl import *
import layout as L

OPT = {}
for x in sys.argv[2:]:
    if x.startswith("--"):
        k, _, val = x[2:].partition("=")
        OPT[k] = val
def oi(k, d): return int(OPT.get(k, d))
STAMPS = "stamps" in OPT
PRIO = [int(y) for y in OPT.get("prio", "4,2,1").split(",")]
NAME = "gather_scatter__edge_featured_mpnn_egc__graph_kernel"
SC = " sc1"

SLOTCAP = 3136
ROW = 0
EAD = ROW + (SLOTCAP + 64) * 4
HIST = EAD + (SLOTCAP + 64) * 2
QST = HIST + 1024
FLG = QST + 1024
BND = FLG + 1024
BW = BND + 256
XAU = BW + 2048
RS = 272; STG = 32 * RS
XP = 1056; XST = 16 * XP
XT = XAU + STG
X0 = 131072
XS = [X0] + [XT + i * XST for i in range(4)]
EA = XAU + 160 * RS
REORD = XT + 4 * XST
RINGS = [113152, 121856]
PERM = 157696
CNT = 163328; H1 = 163584
NE = 192
EA_E = CNT - 8 * NE * 32
LCAP = (EA_E - EA) // 32
MARK = 148480; MARK2 = MARK
LDSZ = 163840
assert XAU == 24576 and REORD <= RINGS[0] and RINGS[0] + STG <= RINGS[1] and RINGS[1] + STG <= X0 and X0 + XST <= MARK and MARK + 8192 <= PERM and PERM + 2560 <= CNT
assert EA % 32 == 0 and BW % 32 == 0 and EA_E >= REORD
(C_S1, C_S2, C_S3, C_S4, C_S5, C_S6, C_W, C_F, C_E, C_REC, C_OVF, C_D, C_I, C_PE, C_AE, C_R2, C_XI, C_GO, C_IDX, C_P2) = [4 * i for i in range(20)]
C_X = 80; C_TAG = 104; C_RDY = 112; C_MK = 116; CT = REORD; C_BT = 128
WS_FL = 0x1740000
WS_FE = 0x1750000
FSH = oi('fsh', 3)
NJ = 7; NK = 2 * NJ
SPIN = 0x40000

P_X, P_EA, P_SRC, P_DST, P_UW, P_VW, P_GW, P_OUT, P_DBG, P_WS = 4, 6, 8, 10, 12, 14, 16, 18, 20, 22
S_R, S_S, S_W, S_NV = 24, 25, 26, 27
R_TBL, R_OUT = 28, 32
RA, RB, RC, RD, RE = 36, 40, 44, 48, 52
S_X, S_Y, S_Z, S_T, S_BASE, S_SL, S_N0, S_N1, S_Q0, S_NQ, S_NT, S_FO, S_RO, S_FIRST = range(56, 70)
S_G = 3
S_M = [4 + 2 * j for j in range(7)]
TAG = 18
S_FF, S_FR, S_E0, S_E1 = 8, 10, 12, 14
ST0 = 70

CLK = [int(y) for y in OPT.get("clk", "11,12").split(",")]
def stamp(a, j):
    if not STAMPS: return
    if "only" in OPT and str(j) not in OPT["only"].split(","): return
    a(f"s_memrealtime s[{ST0+2*j}:{ST0+2*j+1}]")
    if j in CLK: a(f"s_memtime s[{ST0+28+2*CLK.index(j)}:{ST0+29+2*CLK.index(j)}]")
    a("s_waitcnt lgkmcnt(0)")
def stamp_flush(a):
    a(f"""s_lshl_b32 s56, s2, 4
    s_add_u32 s56, s56, s{S_W}
    s_lshl_b32 s56, s56, 7
    s_add_u32 s56, s56, {L.WS_STAMP:#x}
    s_add_u32 s58, s{P_WS}, s56
    s_addc_u32 s59, s{P_WS+1}, 0
    s_mov_b64 exec, 1
    v_mov_b32 v0, 0""")
    for j in range(16):
        a(f"v_mov_b32 v2, s{ST0+2*j}\nv_mov_b32 v3, s{ST0+2*j+1}\nglobal_store_dwordx2 v0, v[2:3], s[58:59] offset:{8*j}\ns_nop 1")

G = [0, 16]; Dd = [32, 48]; AD = 64; A0 = 80; A1 = 84; B0 = 88; B1 = 92; SEL = 96; A2 = 100
XA = [104, 108]; CC = 112; ACC = 114; EIDX = 115; EADDR = 116; PROW = 117; PEAD = 118; KHC = 119
LANE = 120; TID = 121
T0, T1, T2, T3 = 122, 123, 124, 125
CB, ONE = 126, 127
EX = 36

def slot_of_reg(j):
    g, i, ab = j // 8, (j % 8) // 2, j % 2
    return (2 * g + ab) * 4 + i

def consts(a):
    a.c("SEL (16x16x32 A operand): lane(row=l%16,kq=l/16): 1.0 at element 2*(row%4) iff kq==row/4")
    a(f"""v_lshrrev_b32 v{T0}, 4, v{LANE}
    v_bfe_u32 v{T1}, v{LANE}, 2, 2
    v_and_b32 v{T2}, 3, v{LANE}
    v_cmp_eq_u32 vcc, v{T0}, v{T1}
    v_mov_b32 v{T3}, 0x3f80
    v_mov_b32 v{CC}, 0x30800000
    v_cndmask_b32 v{T2}, 7, v{T2}, vcc""")
    for k in range(4):
        a(f"v_cmp_eq_u32 vcc, {k}, v{T2}\nv_mov_b32 v{A0+2*k}, 0\nv_mov_b32 v{A0+2*k+1}, 0\nv_cndmask_b32 v{SEL+k}, 0, v{T3}, vcc")
    a.c("A2 (32x32x16 A operand): row=8a+4h+b, reg j=4a+b, quad=2*(j/8)+(j%2); 1.0 at element 2*quad iff kh==h")
    a(f"""v_lshrrev_b32 v{T0}, 5, v{LANE}
    v_bfe_u32 v{T1}, v{LANE}, 2, 1
    v_cmp_eq_u32 vcc, v{T0}, v{T1}
    v_bfe_u32 v{T1}, v{LANE}, 4, 1
    v_and_b32 v{T2}, 1, v{LANE}
    v_lshl_add_u32 v{PEAD}, v{T1}, 1, v{T2}
    v_cndmask_b32 v{T2}, 7, v{PEAD}, vcc""")
    fill = [f"v_bfe_u32 v{T1}, v{LANE}, 3, 1", f"v_lshl_add_u32 v{PEAD}, v{PEAD}, 1, v{T1}",
            f"v_bfe_u32 v{T1}, v{LANE}, 1, 1", f"v_lshl_add_u32 v{PEAD}, v{PEAD}, 1, v{T1}",
            f"v_lshlrev_b32 v{PEAD}, 1, v{PEAD}", f"v_lshlrev_b32 v{KHC}, 4, v{T0}",
            f"v_mov_b32 v{ACC}, 0", f"v_mov_b32 v{CC+1}, 0x30800000"]
    for k in range(4):
        a(f"v_cmp_eq_u32 vcc, {k}, v{T2}\n{fill[2*k]}\n{fill[2*k+1]}\nv_cndmask_b32 v{A2+k}, 0, v{T3}, vcc")

def ldconsts(a):
    a(f"""v_lshlrev_b32 v{T1}, 4, v{LANE}
    v_add_u32 v{T1}, {CT}, v{T1}
    ds_read_b128 v[{SEL}:{SEL+3}], v{T1}
    ds_read_b128 v[{A2}:{A2+3}], v{T1} offset:1024
    ds_read_b128 v[{EADDR}:{EADDR+3}], v{T1} offset:2048
    ds_read_b128 v[{A0}:{A0+3}], v{T1} offset:3072
    ds_read_b128 v[{A1}:{A1+3}], v{T1} offset:3072""")

_lab = [0]
def spin(a, off, tv, ts, n=8, sl=0, mask=None, first=True):
    _lab[0] += 1; k = _lab[0]
    if not first: a(f"s_branch sp{k}r")
    a(f"sp{k}:")
    if mask is not None: a(f"s_and_b32 s{ts}, s{ts}, {mask:#x}")
    a(f"s_cmp_ge_u32 s{ts}, {n}\ns_cbranch_scc1 sp{k}e")
    if sl: a(f"s_sleep {sl}")
    a(f"""sp{k}r:
    ds_read_b32 v{tv}, v{CB} offset:{off}
    s_waitcnt lgkmcnt(0)
    v_readfirstlane_b32 s{ts}, v{tv}
    s_branch sp{k}
    sp{k}e:""")
def wait(a, off, n, sl=1, mask=None): spin(a, off, T0, S_X, n, sl, mask, first=False)
def sync(a, off, wait=True, n=8, sl=0):
    a(f"""s_mov_b64 exec, 1
    ds_add_rtn_u32 v{T0}, v{CB}, v{ONE} offset:{off}
    s_mov_b64 exec, -1
    s_waitcnt lgkmcnt(0)
    v_readfirstlane_b32 s{S_X}, v{T0}
    s_add_u32 s{S_X}, s{S_X}, 1""")
    if wait: spin(a, off, T0, S_X, n, sl)
def arrive(a, off, inc=None):
    a(f"s_mov_b64 exec, 1\nds_add_u32 v{CB}, v{inc or ONE} offset:{off}\ns_mov_b64 exec, -1")

def common_srds(a):
    a(f"s_mul_i32 s{S_X}, s{S_S}, {L.TBL_SL}")
    srd(a, R_TBL, P_WS, L.WS_TBL, L.TBL_SL, stride=4, w3=0x800000, soff=S_X)
    srd(a, R_OUT, P_OUT, 0, L.N * 512)

def publish_done(a, lab, V, cnt, n, S):
    sync(a, cnt, wait=False)
    a(f"s_cmp_lg_u32 s{S_X}, {n}\ns_cbranch_scc1 {lab}")
    if S:
        a(f"""s_lshl_b32 s{S_X}, s2, {FSH}
        s_add_u32 s{S_X}, s{S_X}, {WS_FE:#x}""")
    else:
        a(f"""v_readfirstlane_b32 s{TAG}, v{V}
        v_readfirstlane_b32 s{TAG+1}, v{V+1}
        s_lshl_b32 s{S_X}, s{S_S}, 6
        s_add_u32 s{S_X}, s{S_X}, s{S_R}
        s_lshl_b32 s{S_X}, s{S_X}, {FSH}
        s_add_u32 s{S_X}, s{S_X}, {WS_FL:#x}""")
    a(f"""s_atomic_swap_x2 s[{TAG}:{TAG+1}], s[{P_WS}:{P_WS+1}], s{S_X}
    s_mov_b32 s{S_X}, 0
    {lab}:""")

def flag_poll(a, lab, AV, FV, TV, sl):
    a(f"""s_mov_b32 s{S_Y}, {SPIN}
    {lab}:
    s_waitcnt vmcnt(0)
    v_cmp_ne_u64 vcc, {TV}, v[{FV}:{FV+1}]
    s_and_b64 exec, exec, vcc
    s_cbranch_scc0 {lab}e
    s_sleep {sl}
    global_load_dwordx2 v[{FV}:{FV+1}], v{AV}, s[{P_WS}:{P_WS+1}] sc1
    s_sub_u32 s{S_Y}, s{S_Y}, 1
    s_cbranch_scc0 {lab}
    {lab}e:
    s_mov_b64 exec, -1""")

def s_role(a):
    DS, SR, RG, ID, RKK, CN, INC, GRN = 2, 4, 6, 8, 10, 12, 13, 14
    LM, GA, CA_, BWA = 16, 17, 18, 19
    EV = 20
    PV = 32
    CW, NON = 36, 38
    ZV = 40
    IOT, MQ, HD, SP = 48, 52, 56, 60
    IDV = 64
    DEL, PA, MA1, PR2, HB = 88, 89, 90, 91, 92
    M1 = 60
    a(f"""v_mov_b32 v{T2}, 0
    v_mov_b32 v{T3}, 0
    v_lshl_add_u32 v{T1}, v{LANE}, 3, v{CB}
    ds_write_b64 v{T1}, v[{T2}:{T3}]
    s_mul_i32 s{S_X}, s2, {L.CH*4}""")
    srd(a, RA, P_DST, 0, L.CH * 4, soff=S_X)
    a(f"""v_lshlrev_b32 v{T0}, 2, v0
    buffer_load_dword v{DS}, v{T0}, s[{RA}:{RA+3}], 0 offen
    buffer_load_dword v{DS+1}, v{T0}, s[{RA}:{RA+3}], 0 offen offset:2048""")
    srd(a, RB, P_SRC, 0, L.CH * 4, soff=S_X)
    a(f"""buffer_load_dword v{SR}, v{T0}, s[{RB}:{RB+3}], 0 offen
    buffer_load_dword v{SR+1}, v{T0}, s[{RB}:{RB+3}], 0 offen offset:2048""")
    EPF = OPT.get("epf", "b")
    def epf():
        a(f"s_mul_i32 s{S_X}, s2, {L.CH*32}")
        srd(a, RC, P_EA, 0, L.CH * 32, soff=S_X)
        if EPF != "n":
            a(f"""v_subrev_u32 v{T1}, {512-160}, v0
            v_lshlrev_b32 v{T1}, 7, v{T1}
            s_and_b32 s{S_X}, s2, {(oi('stag', 1) << 3) if "stag" in OPT else 0}
            s_cselect_b32 s{S_X}, 0x8000, 0
            buffer_load_dword v{EV}, v{T1}, s[{RC}:{RC+3}], s{S_X} offen""")
    if EPF == "b": epf()
    a("s_waitcnt lgkmcnt(0)\ns_barrier")
    if EPF != "b": epf()
    NP = 0 if EPF == "n" else 1
    a(f"s_mul_i32 s{S_X}, s2, {L.CHS*32}")
    srd(a, RD, P_WS, L.WS_EA, L.CH * 32, soff=S_X)
    a(f"s_mul_i32 s{S_X}, s2, {L.CHS*4}")
    srd(a, RE, P_WS, L.WS_ID, L.CHS * 4, soff=S_X)
    a(f"""v_cmp_gt_u32 vcc, {L.CH-512}, v0
    s_mov_b64 s[{M1}:{M1+1}], vcc
    v_lshlrev_b32 v{GA}, 4, v0
    v_add_u32 v{LM}, {MARK}, v{GA}
    v_lshlrev_b32 v{PR2}, 1, v0
    v_and_b32 v{PR2}, -4, v{PR2}
    v_add_u32 v{PR2}, {PERM}, v{PR2}
    v_and_b32 v{HB}, 16, v{GA}
    v_lshlrev_b32 v{ID}, 22, v0
    v_add_u32 v{ID+1}, 0x80000000, v{ID}
    v_mov_b32 v{ZV+4}, 0
    v_lshl_add_u32 v{T1}, v{LANE}, 2, v{CB}
    s_movk_i32 s{S_Y}, {-L.RN}
    s_mov_b32 s{S_Z}, {H1}
    s_waitcnt vmcnt({2+NP})""")
    stamp(a, 1)
    for k in range(2): a(f"v_mul_u32_u24 v{RG+k}, 13358, v{DS+k}")
    for k in range(2): a(f"v_lshrrev_b32 v{RG+k}, 21, v{RG+k}")
    for k in range(2): a(f"v_mad_i32_i24 v{DS+k}, v{RG+k}, s{S_Y}, v{DS+k}")
    for k in range(2): a(f"v_lshl_add_u32 v{RG+k}, v{RG+k}, 2, s{S_Z}")
    a(f"""ds_add_rtn_u32 v{RKK}, v{RG}, v{ONE}
    s_mov_b64 exec, s[{M1}:{M1+1}]
    ds_add_rtn_u32 v{RKK+1}, v{RG+1}, v{ONE}""")
    sync(a, C_S1)
    a(f"ds_read_b32 v{CN}, v{T1} offset:{H1-CNT}")
    srd(a, RA, P_GW, 0, 528 * 512)
    a(f"""v_or_b32 v{ID}, v{ID}, v{DS}
    v_or_b32 v{ID+1}, v{ID+1}, v{DS+1}
    s_waitcnt lgkmcnt(0)
    v_mov_b32 v{INC}, v{CN}""")
    scan(a, "v_add_u32", [INC])
    a(f"""v_sub_u32 v{INC}, v{INC}, v{CN}
    ds_bpermute_b32 v{T2}, v{RG}, v{INC}
    ds_bpermute_b32 v{T3}, v{RG+1}, v{INC}
    v_lshl_or_b32 v{GRN}, v{CN}, 10, v{INC}
    s_mov_b32 s{S_Y}, {PERM}
    s_waitcnt vmcnt({NP})
    v_lshl_or_b32 v{ID}, v{SR}, 8, v{ID}
    v_lshl_or_b32 v{ID+1}, v{SR+1}, 8, v{ID+1}
    s_waitcnt lgkmcnt(0)
    v_add_u32 v{RG}, v{T2}, v{RKK}
    v_add_u32 v{RG+1}, v{T3}, v{RKK+1}
    v_lshl_add_u32 v{DS}, v{RG}, 2, s{S_Y}
    v_lshl_add_u32 v{DS+1}, v{RG+1}, 2, s{S_Y}
    ds_write_b32 v{DS}, v{ID}
    s_mov_b64 exec, s[{M1}:{M1+1}]
    ds_write_b32 v{DS+1}, v{ID+1}""")
    sync(a, C_S2)
    a(f"ds_read_b128 v[{IDV}:{IDV+3}], v{LM} offset:{PERM-MARK}")
    for k in range(3): a(f"ds_read_b32 v{PV+k}, v{PR2} offset:{1024*k}")
    a(f"s_lshl_b32 s{S_X}, s2, 9")
    srd(a, RB, P_WS, L.WS_OFF, 512, soff=S_X)
    GR, LEN, PRE, INC2, MKB = 2, 4, 5, 12, 8
    consts(a)
    a(f"v_lshlrev_b32 v{T0}, 2, v{LANE}\nv_sub_u32 v{T0}, s{S_NV}, v{T0}")
    fill = [f"v_mul_u32_u24 v{IOT}, 0x80008, v{LANE}", f"v_add_u32 v{IOT}, 0x10000, v{IOT}", f"v_add_u32 v{IOT+1}, 0x20002, v{IOT}",
            f"v_add_u32 v{IOT+2}, 0x40004, v{IOT}", f"v_add_u32 v{IOT+3}, 0x60006, v{IOT}", f"v_mul_u32_u24 v{DEL}, {L.CHS}, v{LANE}",
            f"v_lshlrev_b32 v{PA}, 9, v{LANE}", f"v_mov_b32 v{GR}, 0"]
    for k in range(4): a(f"v_cmp_lt_i32 vcc, {k}, v{T0}\n{fill[2*k]}\n{fill[2*k+1]}\nv_cndmask_b32 v{MQ+k}, 0, 4, vcc")
    a(f"""s_lshr_b32 s{S_X}, s2, 3
    s_add_u32 s{S_X}, s{S_X}, {L.N}
    s_lshl_b32 s{S_X}, s{S_X}, 8""")
    for k in range(4): a(f"v_mov_b32 v{ZV+k}, s{S_X}\nv_mov_b32 v{ZV+4+k}, 0\nv_mov_b32 v{SP+k}, {(BW//32) * 0x10001:#x}")
    a(f"""ds_write_b128 v{LM}, v[{ZV+4}:{ZV+7}]
    s_lshl_b32 s{S_N0}, s{S_W}, 10
    s_add_u32 s{S_N0}, s{S_N0}, {MARK}
    v_lshl_add_u32 v{MA1}, v{LANE}, 1, s{S_N0}
    s_lshl_b32 s{S_Z}, s{S_W}, 14
    s_lshl_b32 s{S_Y}, s{S_R}, 3
    s_add_u32 s{S_Z}, s{S_Z}, s{S_Y}
    s_add_u32 s{S_Z}, s{S_Z}, {L.WS_OFF:#x}
    v_add_u32 v{PA}, s{S_Z}, v{PA}""")
    if "shold" in OPT: wait(a, C_I, 8)
    a(f"""s_waitcnt lgkmcnt(1)
    buffer_store_dwordx4 v[{IDV}:{IDV+3}], v{GA}, s[{RE}:{RE+3}], 0 offen{SC}
    global_load_dwordx2 v[{NON}:{NON+1}], v{ZV+4}, s[{P_DBG}:{P_DBG+1}] offset:32 sc1
    s_waitcnt lgkmcnt(0)""")
    EGX = "egx" in OPT
    for k in range(3):
        a(f"""v_lshrrev_b32 v{PV+k}, 22, v{PV+k}
        v_lshl_or_b32 v{PV+k}, v{PV+k}, 5, v{HB}""")
    def eag():
        for k in range(3): a(f"buffer_load_dwordx4 v[{EV+4*k}:{EV+4*k+3}], v{PV+k}, s[{RC}:{RC+3}], 0 offen")
    if not EGX: eag()
    stamp(a, 2)
    GR, LEN, PRE, INC2, MKB = 2, 4, 5, 12, 8
    a(f"""v_lshlrev_b32 v{T2}, 3, v{LANE}
    s_mov_b32 s{S_Y}, {SPIN}
    s_waitcnt vmcnt({0 if EGX else 3})
    s_nonce:
    v_readfirstlane_b32 s{S_NT+1}, v{NON+1}
    v_readfirstlane_b32 s{S_NT}, v{NON}
    s_sub_u32 s{S_Y}, s{S_Y}, 1
    s_cbranch_scc1 s_nonceok
    s_cmp_lg_u32 s{S_NT+1}, 0
    s_cbranch_scc1 s_nonceok
    global_load_dwordx2 v[{NON}:{NON+1}], v{ZV+4}, s[{P_DBG}:{P_DBG+1}] offset:32 sc1
    s_waitcnt vmcnt(0)
    s_branch s_nonce
    s_nonceok:
    s_and_b32 s{S_N1}, s{S_NT+1}, 0xfff
    v_lshl_or_b32 v{GRN}, s{S_N1}, 20, v{GRN}
    v_mov_b32 v{GRN+1}, s{S_NT}
    s_mov_b64 exec, 1
    ds_write_b64 v{CB}, v[{NON}:{NON+1}] offset:{C_TAG}""")
    sync(a, C_S3, wait=False)
    def east():
        a(f"s_movk_i32 s{S_Y}, 8192\ns_movk_i32 s{S_Z}, 16384")
        for k, so in enumerate(("0", f"s{S_Y}", f"s{S_Z}")):
            a(f"buffer_store_dwordx4 v[{EV+4*k}:{EV+4*k+3}], v{GA}, s[{RD}:{RD+3}], {so} offen{SC}")
    a(f"""s_cmp_lg_u32 s{S_X}, 8
    s_cbranch_scc1 s_nopub
    buffer_store_dwordx2 v[{GRN}:{GRN+1}], v{T2}, s[{RB}:{RB+3}], 0 offen{SC}""")
    if EGX:
        a("s_nopub:")
        wait(a, C_XI, 4)
        eag()
    else:
        a("s_waitcnt vmcnt(1)\ns_branch s_pub\ns_nopub:\ns_waitcnt vmcnt(0)\ns_pub:")
        if "esx" in OPT: wait(a, C_XI, 4)
        east()
    stamp(a, 3)
    a(f"""v_lshrrev_b32 v{T0}, 5, v{LANE}
    v_and_b32 v{T2}, 31, v{LANE}
    v_lshlrev_b32 v{T2}, 1, v{T2}
    v_lshl_add_u32 v{CA_}, v{T0}, 12, v{T2}
    s_and_b32 s{S_X}, s{S_W}, 3
    s_lshr_b32 s{S_Y}, s{S_W}, 2
    s_lshl_b32 s{S_T}, s{S_X}, 10
    s_lshl_b32 s{S_Z}, s{S_Y}, 6
    s_add_u32 s{S_T}, s{S_T}, s{S_Z}
    s_lshl_b32 s{S_Z}, s{S_S}, 7
    s_add_u32 s{S_T}, s{S_T}, s{S_Z}
    s_add_u32 s{S_T}, s{S_T}, {512*512}
    buffer_load_ushort v{CW}, v{CA_}, s[{RA}:{RA+3}], s{S_T} offen
    buffer_load_ushort v{CW+1}, v{CA_}, s[{RA}:{RA+3}], s{S_T} offen offset:512
    s_lshl_b32 s{S_X}, s{S_X}, 2
    s_lshl_b32 s{S_Y}, s{S_Y}, 10
    s_add_u32 s{S_X}, s{S_X}, s{S_Y}
    v_lshl_add_u32 v{BWA}, v{LANE}, 4, s{S_X}""")
    common_srds(a)
    a(f"s_mov_b64 s[{TAG}:{TAG+1}], s[{S_NT}:{S_NT+1}]")
    a(f"s_mul_i32 s{S_X}, s{S_W}, {32*L.CHS*4}")
    srd(a, RE, P_WS, L.WS_ID, 32 * L.CHS, stride=4, soff=S_X)
    wait(a, C_F, 8)
    a.c("LDS init of the list area")
    a(f"""ds_write_b128 v{GA}, v[{ZV}:{ZV+3}] offset:{ROW}
    v_cmp_gt_u32 vcc, {(HIST-EAD)//16}, v0
    s_mov_b64 exec, vcc
    ds_write_b128 v{GA}, v[{SP}:{SP+3}] offset:{EAD}
    v_cmp_gt_u32 vcc, {(EAD-ROW)//16-512}, v0
    s_mov_b64 exec, vcc
    ds_write_b128 v{GA}, v[{ZV}:{ZV+3}] offset:{ROW+8192}
    v_cmp_gt_u32 vcc, {(BW-HIST)//16}, v0
    s_mov_b64 exec, vcc
    ds_write_b128 v{GA}, v[{ZV+4}:{ZV+7}] offset:{HIST}
    s_mov_b64 exec, -1
    s_cmp_lg_u32 s{S_W}, 7
    s_cbranch_scc1 s_noct
    v_add_u32 v{T1}, {CT - 7*1024}, v{GA}
    ds_write_b128 v{T1}, v[{SEL}:{SEL+3}]
    ds_write_b128 v{T1}, v[{A2}:{A2+3}] offset:1024
    ds_write_b128 v{T1}, v[{EADDR}:{EADDR+3}] offset:2048
    ds_write_b128 v{T1}, v[{A0}:{A0+3}] offset:3072
    s_noct:""")
    arrive(a, C_S4)
    if "pearly" in OPT:
        if oi("pearly", 0): a(f"s_sleep {oi('pearly', 0)}")
        a(f"""s_mov_b32 exec_hi, 0
        global_load_dwordx2 v[{GR}:{GR+1}], v{PA}, s[{P_WS}:{P_WS+1}] sc1
        s_mov_b64 exec, -1
        s_waitcnt vmcnt(1)""")
        publish_done(a, "s_pd", GRN, C_S6, 8, True)
    elif not EGX:
        a("s_waitcnt vmcnt(0)")
        publish_done(a, "s_pd", GRN, C_S6, 8, True)
    else: a("s_waitcnt vmcnt(0)")
    if oi("pdel", 0): a(f"s_sleep {oi('pdel', 0)}")
    if "pgate" in OPT: wait(a, C_X + 4 * oi("pgate", 0), 0x400, mask=0xf00, sl=2)
    stamp(a, 4)
    if "sprio" in OPT: a(f"s_setprio {OPT['sprio']}")
    a(f"s_mov_b32 exec_hi, 0")
    if "pearly" not in OPT: a(f"global_load_dwordx2 v[{GR}:{GR+1}], v{PA}, s[{P_WS}:{P_WS+1}] sc1")
    if EGX:
        a("s_mov_b64 exec, -1")
        east()
        a("s_mov_b32 exec_hi, 0")
    a(f"""s_mov_b32 s{S_Y}, {SPIN}
    s_waitcnt vmcnt({3 if EGX else 0})
    s_poll:
    v_lshrrev_b32 v{T0}, 20, v{GR}
    v_cmp_ne_u32 vcc, s{TAG}, v{GR+1}
    v_cmp_ne_u32 s[{S_M[0]}:{S_M[0]+1}], s{S_N1}, v{T0}
    s_or_b64 vcc, vcc, s[{S_M[0]}:{S_M[0]+1}]
    s_cbranch_scc0 s_pollok
    s_mov_b64 exec, vcc
    s_sleep {oi("psl", 2)}
    global_load_dwordx2 v[{GR}:{GR+1}], v{PA}, s[{P_WS}:{P_WS+1}] sc1
    s_sub_u32 s{S_Y}, s{S_Y}, 1
    s_waitcnt vmcnt(0)
    s_cbranch_scc0 s_poll
    v_mov_b32 v{GR}, 0
    s_pollok:
    s_mov_b64 exec, -1""")
    stamp(a, 5)
    IDX, IDW, HA, RK, QV = 64, 28, 64, 72, 20
    a(f"""v_lshlrev_b32 v{CW}, 16, v{CW}
    v_lshlrev_b32 v{CW+1}, 16, v{CW+1}
    v_mul_f32 v{CW}, 0xbfb8aa3b, v{CW}
    v_mul_f32 v{CW+1}, 0xbfb8aa3b, v{CW+1}
    v_bfe_u32 v{LEN}, v{GR}, 10, 10
    v_and_b32 v{GR}, 0x3ff, v{GR}
    v_mov_b32 v{INC2}, v{LEN}
    v_add_u32 v{DEL}, v{DEL}, v{GR}
    v_cvt_pk_bf16_f32 v{CW}, v{CW}, v{CW+1}""")
    for m in ("row_shr:1", "row_shr:2", "row_shr:4", "row_shr:8"):
        a(f"v_add_u32_dpp v{INC2}, v{INC2}, v{INC2} {m} row_mask:0xf bank_mask:0xf bound_ctrl:0\ns_nop 1")
    a(f"""v_add_u32_dpp v{INC2}, v{INC2}, v{INC2} row_bcast:15 row_mask:0xa bank_mask:0xf
    v_cmp_lt_u32 vcc, 0, v{LEN}
    v_sub_u32 v{PRE}, v{INC2}, v{LEN}
    v_readlane_b32 s{S_T}, v{INC2}, 31
    v_sub_u32 v{DEL}, v{DEL}, v{PRE}
    v_lshl_add_u32 v{T0}, v{PRE}, 1, s{S_N0}
    v_subrev_u32 v{INC2}, {NE - 31}, v{INC2}
    s_cmp_gt_u32 s{S_T}, {64*NJ}
    s_cselect_b64 exec, 0, vcc
    ds_write_b16 v{T0}, v{DEL}
    s_mov_b64 exec, -1
    ds_read_b128 v[{MKB}:{MKB+3}], v{LM}
    v_max_i32 v{INC2}, 0, v{INC2}
    v_and_b32 v{INC2}, 0xffffffe0, v{INC2}
    s_mov_b32 exec_lo, 0x80000000
    s_mov_b32 exec_hi, 0
    ds_add_rtn_u32 v{T0}, v{CB}, v{INC2} offset:{C_REC}
    s_mov_b64 exec, -1
    s_waitcnt lgkmcnt(1)""")
    for k in range(4): a(f"v_pk_max_u16 v{MKB+k}, v{MKB+k}, v{MKB+k} op_sel:[0,0] op_sel_hi:[1,0]")
    for k in range(1, 4): a(f"v_pk_max_u16 v{MKB+k}, v{MKB+k}, v{MKB+k-1} op_sel:[0,1] op_sel_hi:[1,1]")
    a(f"v_lshrrev_b32 v{INC2}, 16, v{MKB+3}")
    scan(a, "v_max_u32", [INC2])
    a(f"""v_mov_b32 v{PRE}, 0
    s_waitcnt lgkmcnt(0)
    v_mov_b32_dpp v{PRE}, v{INC2} wave_shr:1 row_mask:0xf bank_mask:0xf
    v_readlane_b32 s{S_BASE}, v{T0}, 31""")
    for k in range(4): a(f"v_pk_max_u16 v{MKB+k}, v{MKB+k}, v{PRE} op_sel:[0,0] op_sel_hi:[1,0]")
    for k in range(4): a(f"v_pk_add_u16 v{HD+k}, v{MKB+k}, v{IOT+k}")
    a(f"ds_write_b128 v{LM}, v[{HD}:{HD+3}]")
    for j in range(NJ): a(f"ds_read_u16 v{IDX+j}, v{MA1} offset:{128*j}")
    a(f"ds_read_b32 v{T1}, v{CB} offset:{C_S4}\nds_write_b128 v{LM}, v[{MKB}:{MKB+3}]")
    a.c("capacity guard")
    a(f"""s_add_u32 s{S_X}, s{S_BASE}, s{S_T}
    s_cmp_gt_u32 s{S_X}, {LCAP + NE - 32}
    s_cselect_b32 s{S_T}, {64*NJ+1}, s{S_T}
    s_cmp_gt_u32 s{S_T}, {64*NJ}
    s_cbranch_scc0 s_fits
    s_mov_b32 s{S_T}, 0
    ds_write_b32 v{CB}, v{ONE} offset:{C_OVF}
    s_fits:""")
    for j in range(NJ):
        a(f"s_sub_i32 s{S_X}, s{S_T}, {64*j}\nv_cmp_gt_i32 s[{S_M[j]}:{S_M[j]+1}], s{S_X}, v{LANE}")
    a("s_waitcnt lgkmcnt(0)")
    for j in range(NJ):
        a(f"s_mov_b64 exec, s[{S_M[j]}:{S_M[j]+1}]")
        if j >= 5: a("s_cbranch_execz s_idsdone")
        a(f"buffer_load_dword v{IDW+j}, v{IDX+j}, s[{RE}:{RE+3}], 0 idxen{SC}")
    a(f"s_idsdone:\ns_mov_b64 exec, -1\nv_readfirstlane_b32 s{S_X}, v{T1}")
    stamp(a, 6)
    a(f"""v_mov_b32 v{T2}, s{S_BASE}
    v_mov_b32 v{T3}, s{S_T}
    v_lshl_add_u32 v{GR}, s{S_W}, 3, v{CB}
    s_mov_b64 exec, 1
    ds_write_b64 v{GR}, v[{T2}:{T3}] offset:{C_BT}
    ds_add_u32 v{CB}, v{ONE} offset:{C_IDX}
    s_mov_b64 exec, -1""")
    if "sprio2" in OPT: a(f"s_setprio {OPT['sprio2']}")
    a(f"ds_write_b32 v{BWA}, v{CW} offset:{BW}")
    spin(a, C_S4, T0, S_X)
    a(f"""v_lshlrev_b32 v{T1}, 4, v{LANE}
    s_mul_i32 s{S_G}, s{S_W}, {NE}
    s_add_u32 s{S_G}, s{S_G}, {EA_E//32}
    s_waitcnt vmcnt(0)""")
    if EGX: publish_done(a, "s_pd", GRN, C_S6, 8, True)
    stamp(a, 7)
    sh = lambda j: a(f"v_lshlrev_b32_sdwa v{HA+j}, 2, v{IDW+j} dst_sel:DWORD dst_unused:UNUSED_PAD src0_sel:DWORD src1_sel:BYTE_0")
    for j in range(5): sh(j)
    for j in range(NJ):
        a(f"s_mov_b64 exec, s[{S_M[j]}:{S_M[j]+1}]")
        if j >= 5:
            a("s_cbranch_execz s_histdone"); sh(j)
        a(f"ds_add_rtn_u32 v{RK+j}, v{HA+j}, v{ONE} offset:{HIST}")
        a(f"v_and_b32 v{IDW+j}, 0x3fff00, v{IDW+j}")
    a("s_histdone:")
    sync(a, C_S5)
    a(f"""ds_read_b128 v[{HD}:{HD+3}], v{T1} offset:{HIST}
    s_add_u32 s{S_X}, s{S_BASE}, {EA//32 - NE}
    v_add_u32 v{LEN}, s{S_X}, v{LANE}
    v_add_u32 v{PRE}, s{S_G}, v{LANE}
    v_lshlrev_b32 v{T2}, 2, v0
    s_waitcnt lgkmcnt(0)""")
    for k in range(4): a(f"v_add_u32 v{HD+k}, 3, v{HD+k}")
    for k in range(4): a(f"v_and_b32 v{HD+k}, -4, v{HD+k}")
    for k in range(4): a(f"v_max_u32 v{HD+k}, v{HD+k}, v{MQ+k}")
    a(f"""v_add_u32 v{HD+1}, v{HD}, v{HD+1}
    v_add_u32 v{HD+2}, v{HD+1}, v{HD+2}
    v_add_u32 v{HD+3}, v{HD+2}, v{HD+3}
    v_mov_b32 v{INC2}, v{HD+3}""")
    scan(a, "v_add_u32", [INC2])
    a(f"""v_sub_u32 v{SP}, v{INC2}, v{HD+3}
    v_readlane_b32 s{S_SL}, v{INC2}, 63
    v_add_u32 v{SP+1}, v{SP}, v{HD}
    v_add_u32 v{SP+2}, v{SP}, v{HD+1}
    v_add_u32 v{SP+3}, v{SP}, v{HD+2}
    ds_write_b128 v{T1}, v[{SP}:{SP+3}] offset:{QST}""")
    BV = 8
    a(f"ds_read_b32 v{BV}, v{T2} offset:{QST}\nds_read_b32 v{BV+3}, v{T2} offset:{QST+4}")
    for j in range(NJ):
        if j >= 5: a(f"s_mov_b64 exec, s[{S_M[j]}:{S_M[j]+1}]\ns_cbranch_execz s_qdone")
        a(f"ds_read_b32 v{QV+j}, v{HA+j} offset:{QST}")
    stamp(a, 8)
    a(f"""s_qdone:
    s_cmp_gt_u32 s{S_SL}, {oi("slotcap", SLOTCAP)}
    s_cbranch_scc1 s_ovf
    s_waitcnt lgkmcnt(0)""")
    for j in range(NJ):
        a(f"s_mov_b64 exec, s[{S_M[j]}:{S_M[j]+1}]")
        if j >= 4: a("s_cbranch_execz s_scatdone")
        a(f"""v_add_lshl_u32 v{HA+j}, v{QV+j}, v{RK+j}, 2
        v_add_lshl_u32 v{QV+j}, v{QV+j}, v{RK+j}, 1
        v_add_u32 v{RK+j}, {64*j}, v{PRE if 64*j < NE else LEN}
        ds_write_b32 v{HA+j}, v{IDW+j} offset:{ROW}
        ds_write_b16 v{QV+j}, v{RK+j} offset:{EAD}""")
    a.c("node threads: end-of-node flags and the 16 wave boundaries")
    a(f"""s_scatdone:
    s_mov_b64 exec, -1
    s_cmp_ge_u32 s{S_W}, 3
    s_cbranch_scc1 s_fin
    v_cvt_f32_u32 v{T0}, s{S_SL}
    v_cmp_gt_u32 vcc, s{S_NV}, v0
    v_rcp_f32 v{T0}, v{T0}
    s_mov_b64 exec, vcc
    v_cvt_f32_u32 v{BV}, v{BV}
    v_cvt_f32_u32 v{BV+1}, v{BV+3}
    v_mul_f32 v{T0}, 0x41800000, v{T0}
    v_lshrrev_b32 v{T3}, 2, v{BV+3}
    v_cmp_eq_u32 vcc, s{S_SL}, v{BV+3}
    v_mul_f32 v{BV}, v{BV}, v{T0}
    v_mul_f32 v{BV+1}, v{BV+1}, v{T0}
    ds_write_b8 v{T3}, v{ONE} offset:{FLG-1}
    v_cvt_u32_f32 v{BV}, v{BV}
    v_cvt_u32_f32 v{BV+1}, v{BV+1}
    v_min_u32 v{BV}, 15, v{BV}
    v_min_u32 v{BV+1}, 15, v{BV+1}
    v_add_u32 v{BV+2}, 1, v0
    v_cndmask_b32 v{BV+1}, v{BV+1}, 16, vcc
    s_bnd:
    v_cmp_lt_u32 vcc, v{BV}, v{BV+1}
    s_and_b64 exec, exec, vcc
    s_cbranch_scc0 s_fin
    v_add_u32 v{BV}, 1, v{BV}
    v_lshlrev_b32 v{T3}, 3, v{BV}
    ds_write_b64 v{T3}, v[{BV+2}:{BV+3}] offset:{BND}
    s_branch s_bnd
    s_ovf:
    s_mov_b64 exec, 1
    ds_write_b32 v{CB}, v{ONE} offset:{C_OVF}
    s_fin:""")
    arrive(a, C_GO)
    stamp(a, 9)
    a.c("wave 0 polls the 64 table flags of its slice")
    a(f"""s_cmp_lg_u32 s{S_W}, 0
    s_cbranch_scc1 k_join
    s_lshl_b32 s{S_Y}, s{S_S}, {6+FSH}
    s_add_u32 s{S_Y}, s{S_Y}, {WS_FL:#x}
    v_lshl_add_u32 v2, v{LANE}, {FSH}, s{S_Y}
    v_mov_b32 v3, 0x100""")
    wait(a, C_D, 4)
    if oi("fdel", 8): a(f"s_sleep {oi('fdel', 8)}")
    a(f"global_load_dwordx2 v[4:5], v2, s[{P_WS}:{P_WS+1}] sc1")
    flag_poll(a, "s_fp", 2, 4, f"s[{TAG}:{TAG+1}]", oi("fsl", 4))
    arrive(a, C_GO, 3)
    a("s_branch k_join")

def g_role(a):
    R_X, R_GW, R_VW, R_UW, R_O = RA, RB, RC, RD, RE
    BF, ACC_, AR, CO = 0, 64, 96, 112
    XR, OA, CA, SA, CV, XA_ = T1, TID, [T2, T3], LANE, T0, T3
    WA0, WA1, BA, U0, U1, U2 = 96, 97, 98, 99, 100, 101
    SP0, SP1, SXL, SXB, SG8 = S_T, S_BASE, S_N0, S_N1, S_SL
    a("g_role:")
    nrow = 8 if OPT.get("map", "4") == "4" else 16
    a.c("touch a distinct part of this slice's weights (fills this die's L2): wave 8 gate rows, wave 9 v/u rows")
    a(f"""s_cmp_ge_u32 s{S_W}, 10
    s_cbranch_scc1 g_nowpf
    s_lshr_b32 s{S_Y}, s2, {3 if nrow == 8 else 4}
    s_mul_i32 s{S_Y}, s{S_Y}, {nrow*512}
    s_lshl_b32 s{S_X}, s{S_S}, 7
    s_add_u32 s{S_Y}, s{S_Y}, s{S_X}
    v_lshl_add_u32 v{U1}, v{LANE}, 9, s{S_Y}
    s_mov_b64 exec, {(1 << nrow) - 1:#x}
    s_cmp_eq_u32 s{S_W}, 8
    s_cbranch_scc0 g_wpf2
    global_load_dword v5, v{U1}, s[{P_GW}:{P_GW+1}]
    v_add_u32 v{U2}, {256*512}, v{U1}
    global_load_dword v6, v{U2}, s[{P_GW}:{P_GW+1}]
    s_branch g_wpf3
    g_wpf2:
    global_load_dword v5, v{U1}, s[{P_VW}:{P_VW+1}]
    global_load_dword v6, v{U1}, s[{P_UW}:{P_UW+1}]
    g_wpf3:
    s_mov_b64 exec, -1
    g_nowpf:""")
    a(f"s_and_b32 s{S_G}, s{S_W}, 3\ns_and_b32 s{SG8}, s{S_W}, 7")
    srd(a, R_GW, P_GW, 0, 528 * 512)
    srd(a, R_VW, P_VW, 0, 256 * 512)
    a(f"""v_lshrrev_b32 v{U0}, 3, v{LANE}
    v_and_b32 v{U1}, 2, v{U0}
    v_and_b32 v{U2}, 7, v{LANE}
    v_xor_b32 v{U1}, v{U1}, v{U2}
    v_lshlrev_b32 v{U1}, 4, v{U1}
    v_lshl_add_u32 v{WA0}, v{U0}, 9, v{U1}
    v_xor_b32 v{WA1}, 64, v{WA0}""")
    srd(a, R_UW, P_UW, 0, 256 * 512)
    srd(a, R_X, P_X, 0, L.N * 512)
    if "xp" in OPT:
        if "stag" in OPT: a(f"s_and_b32 s{S_X}, s2, {oi('stag', 1) << 3}\ns_cbranch_scc1 g_noxp")
        a(f"""s_cmp_ge_u32 s{SG8}, {oi("xp", 2)}
        s_cbranch_scc1 g_noxp
        v_lshlrev_b32 v{U1}, 7, v{LANE}
        s_mul_i32 s{S_X}, s{S_R}, {L.RN*512}
        s_lshl_b32 s{S_Y}, s{SG8}, 13
        s_add_u32 s{S_X}, s{S_X}, s{S_Y}
        buffer_load_dword v7, v{U1}, s[{R_X}:{R_X+3}], s{S_X} offen
        g_noxp:""")
    if "xq" in OPT:
        n = oi("xq", 4)
        per = 640 // n // 4
        a(f"""s_cmp_lt_u32 s{S_W}, 12
        s_cbranch_scc1 g_noxq
        v_mul_u32_u24 v{U1}, {128*n}, v{LANE}
        s_mul_i32 s{S_X}, s{S_R}, {L.RN*512}
        s_mul_i32 s{S_Y}, s{S_G}, {20480}
        s_add_u32 s{S_X}, s{S_X}, s{S_Y}
        s_and_b32 s{S_Y}, s{S_S}, {n-1}
        s_lshl_b32 s{S_Y}, s{S_Y}, 7
        s_add_u32 s{S_X}, s{S_X}, s{S_Y}""")
        for k in range(0, per, 64):
            m = min(64, per - k)
            if m < 64: a(f"s_mov_b32 exec_lo, {min(0xffffffff, (1 << min(m, 32)) - 1):#x}\ns_mov_b32 exec_hi, {((1 << max(m-32, 0)) - 1):#x}")
            a(f"buffer_load_dword v5, v{U1}, s[{R_X}:{R_X+3}], s{S_X} offen\ns_add_u32 s{S_X}, s{S_X}, {64*128*n}")
        a("s_mov_b64 exec, -1\ng_noxq:")
    a.c("launch nonce: workgroup 0 publishes the clock")
    a(f"""s_sub_u32 s{S_X}, s{S_W}, 15
    s_or_b32 s{S_X}, s2, s{S_X}
    s_cbranch_scc1 g_nononce
    s_memrealtime s[{S_Z}:{S_Z+1}]
    v_mov_b32 v4, 0
    s_waitcnt lgkmcnt(0)
    s_bitset1_b32 s{S_Z+1}, 31
    v_mov_b32 v2, s{S_Z}
    v_mov_b32 v3, s{S_Z+1}
    s_mov_b64 exec, 1
    global_store_dwordx2 v4, v[2:3], s[{P_DBG}:{P_DBG+1}] offset:32 sc1
    s_mov_b64 exec, -1
    g_nononce:
    v_lshrrev_b32 v{U0}, 5, v{LANE}
    v_xor_b32 v{U1}, v{U0}, v{LANE}
    v_lshlrev_b32 v{XA_}, 4, v{U1}
    s_lshr_b32 s{S_NT}, s2, 3
    s_and_b32 s{S_NT}, s{S_NT}, {oi("rot", 31)}
    s_xor_b32 s{S_NT}, s{S_NT}, s{SG8}
    s_lshl_b32 s{S_X}, s{S_NT}, 12
    s_lshl_b32 s{S_NT}, s{S_NT}, 10
    s_lshl_b32 s{S_Y}, s{S_S}, 7
    s_add_u32 s{S_X}, s{S_X}, s{S_Y}
    s_lshl_b32 s{S_Z}, s{SG8}, 10
    s_mul_i32 s{SXB}, s{S_R}, {L.RN*512}
    s_add_u32 s{S_Q0}, s{SXB}, s{S_Z}
    s_mul_i32 s{SXL}, s{SG8}, {XP}
    s_barrier""")
    def x0():
        for j in range(2):
            a(f"""s_add_u32 m0, s{SXL}, {X0 + j*8*XP}
            s_add_u32 s{S_Y}, s{S_Q0}, {j*8192}
            buffer_load_dwordx4 v{XA_}, s[{R_X}:{R_X+3}], s{S_Y} offen lds""")
    if "x0f" in OPT: x0()
    for m, (sr, row0) in enumerate(((R_GW, 256), (R_VW, 0), (R_GW, 0), (R_UW, 0))):
        for j in range(4):
            a(f"""s_xor_b32 m0, s{S_NT}, {m*32768 + j*8192}
            s_xor_b32 s{S_Y}, s{S_X}, {j*32768 + row0*512}
            buffer_load_dwordx4 v{WA0 + m % 2}, s[{sr}:{sr+3}], s{S_Y} offen lds""")
            if oi("ww", 0): a(f"s_waitcnt vmcnt({oi('ww', 0)-1})")
    if "x0a" in OPT:
        a(f"s_cmp_lt_u32 s{S_W}, 12\ns_cbranch_scc1 g_nox0")
        x0()
        a(f"s_sub_u32 s{SXL}, s{SXL}, {4*XP}\ns_sub_u32 s{S_Q0}, s{S_Q0}, 4096")
        x0()
        a("g_nox0:")
    elif "x0f" not in OPT: x0()
    arrive(a, C_I)
    if "touch" in OPT:
        a(f"""s_cmp_lg_u32 s{S_W}, 14
        s_cbranch_scc1 g_notouch
        s_load_dword s{S_NT}, s[{P_OUT}:{P_OUT+1}], s{SXB}
        s_mul_i32 s{S_X}, s{S_S}, {L.TBL_SL}""")
        for k in range(2): a(f"s_load_dword s{S_NT}, s[{P_WS}:{P_WS+1}], s{S_X}\ns_add_u32 s{S_X}, s{S_X}, {L.TBL_SL//2 - 64}")
        a(f"s_load_dword s{S_NT}, s[{P_WS}:{P_WS+1}], s{S_X}")
        for off in (L.WS_EA + 0x1ff000, L.WS_EA + 0x3ff000, L.WS_EA + 0x5ff000, L.WS_ID + 0xff000):
            a(f"s_mov_b32 s{S_X}, {off:#x}\ns_load_dword s{S_NT}, s[{P_WS}:{P_WS+1}], s{S_X}")
        a("g_notouch:")
    a.c("weight-fragment address: lane = (kh, m, r, c)")
    a(f"""v_bfe_u32 v{U1}, v{LANE}, 2, 2
    v_lshl_add_u32 v{U1}, v{U0}, 3, v{U1}
    v_lshlrev_b32 v{BA}, 7, v{U1}
    v_bfe_u32 v{U1}, v{LANE}, 3, 2
    v_xor_b32 v{U1}, s{S_G}, v{U1}
    v_lshl_add_u32 v{BA}, v{U1}, 5, v{BA}
    v_and_b32 v{U1}, 1, v{LANE}
    v_lshl_add_u32 v{BA}, v{U1}, 4, v{BA}
    v_bfe_u32 v{U2}, v{LANE}, 1, 1
    v_lshl_add_u32 v{BA}, v{U2}, 3, v{BA}
    v_bfe_u32 v{U2}, v{LANE}, 4, 1
    v_lshl_add_u32 v{BA}, v{U2}, 15, v{BA}
    s_cmp_ge_u32 s{S_W}, 12
    s_cselect_b32 s{S_Y}, 0x10000, 0
    v_add_u32 v{BA}, s{S_Y}, v{BA}
    s_mov_b32 s{S_Y}, {RINGS[0]}
    s_cselect_b32 s{S_Y}, {XAU}, s{S_Y}
    s_lshl_b32 s{S_X}, s{S_G}, 6
    s_add_u32 s{S_Y}, s{S_Y}, s{S_X}
    v_xor_b32 v{U2}, v{U0}, v{U1}
    v_lshlrev_b32 v{U2}, 4, v{U2}
    v_lshl_add_u32 v{XR}, v{U1}, 9, v{U2}
    v_bfe_u32 v{U1}, v{LANE}, 1, 4
    v_mul_u32_u24 v{U1}, {XP}, v{U1}
    v_add_u32 v{XR}, v{XR}, v{U1}
    v_add_u32 v{XR}, {X0}, v{XR}
    v_and_b32 v{U1}, 31, v{LANE}
    v_mul_u32_u24 v{U1}, {RS}, v{U1}
    v_lshl_add_u32 v{U1}, v{U0}, 5, v{U1}
    v_add_u32 v{OA}, s{S_Y}, v{U1}
    s_lshl_b32 s{S_Z}, s{S_G}, 10
    s_add_u32 s{SXB}, s{SXB}, s{S_Z}
    s_mul_i32 s{SXL}, s{S_G}, {XP}
    v_lshl_add_u32 v{SA}, v{LANE}, 4, s{S_Z}
    v_lshrrev_b32 v{U1}, 8, v{SA}
    v_lshl_add_u32 v{U1}, v{U1}, 4, v{SA}
    v_add_u32 v{CA[0]}, {RINGS[0]}, v{U1}
    s_mul_i32 s{S_X}, s{S_S}, {L.TBL_SL}
    s_mul_i32 s{S_Y}, s{S_R}, {L.RN*256}
    s_add_u32 s{S_X}, s{S_X}, s{S_Y}""")
    srd(a, R_O, P_WS, L.WS_TBL, L.RN * 256, soff=S_X)
    common_srds(a)
    a(f"s_mov_b32 s{SP0}, 0x07060100\ns_mov_b32 s{SP1}, 0x07060302\n" + ("s_waitcnt vmcnt(4)\ns_cmp_ge_u32 s%d, 12\ns_cbranch_scc1 g_ww\ns_waitcnt vmcnt(0)\ng_ww:" % S_W if "x0a" in OPT else f"s_waitcnt vmcnt({0 if 'x0f' in OPT else 2})"))
    stamp(a, 1)
    if "xpf" in OPT:
        half = OPT.get("map", "4") == "2"
        a(f"s_cmp_ge_u32 s{S_W}, 12\ns_cbranch_scc1 g_noxpf")
        wait(a, C_I, 8)
        a(f"""v_mbcnt_lo_u32_b32 v{U1}, -1, 0
        v_mbcnt_hi_u32_b32 v{U1}, -1, v{U1}
        v_lshlrev_b32 v{U1}, 7, v{U1}
        s_mul_i32 s{S_X}, s{S_R}, {L.RN*512}
        s_lshl_b32 s{S_Y}, s{S_G}, 14
        s_add_u32 s{S_X}, s{S_X}, s{S_Y}
        s_add_u32 s{S_X}, s{S_X}, 16384""")
        if half:
            a(f"""s_and_b32 s{S_Y}, s{S_S}, 1
            s_lshl_b32 s{S_Y}, s{S_Y}, 13
            s_add_u32 s{S_X}, s{S_X}, s{S_Y}
            buffer_load_dword v{CO}, v{U1}, s[{R_X}:{R_X+3}], s{S_X} offen""")
        else:
            a(f"""buffer_load_dword v{CO}, v{U1}, s[{R_X}:{R_X+3}], s{S_X} offen
            s_add_u32 s{S_X}, s{S_X}, 8192
            buffer_load_dword v{CO}, v{U1}, s[{R_X}:{R_X+3}], s{S_X} offen""")
        a("g_noxpf:")
    sync(a, C_W)
    for ks in range(16):
        for hf in range(2):
            r = BF + ks*4 + hf*2
            a(f"ds_read_b64_tr_b16 v[{r}:{r+1}], v{BA} offset:{ks*2048 + hf*512}")
    if "xpf" in OPT: a(f"s_cmp_lt_u32 s{S_W}, 12\ns_cbranch_scc1 g_nw\ns_waitcnt vmcnt(0)\ng_nw:")
    elif "fx0" not in OPT: a("s_waitcnt vmcnt(0)")
    sync(a, C_F)
    stamp(a, 2)
    K = 0x8000 + (L.HVEXP << 23)
    ARAT, RDAT = oi("arat", 4), oi("rdat", 8)

    XW = oi("xw", 4)
    SIG = [int(y) for y in OPT.get("sig", "3,6,9,12").split(",")]
    HOLD = oi("hold", 30)
    def xst(st):
        for j in range(4):
            a(f"""s_add_u32 m0, s{SXL}, {XS[st] + j*4*XP}
            s_add_u32 s{S_Y}, s{SXB}, {st*16384 + j*4096}
            buffer_load_dwordx4 v{XA_}, s[{R_X}:{R_X+3}], s{S_Y} offen lds""")
    NR_, LA_ = 6, 5
    def stream(P):
        ds = []
        def dsop(tag, ins): a(ins); ds.append(tag)
        def dswait(tag):
            i = max(k for k, t in enumerate(ds) if t == tag)
            a(f"s_waitcnt lgkmcnt({min(15, len(ds) - 1 - i)})")
        def rdA(n):
            st, ks = divmod(n, 16)
            if n == 16: a(f"v_add_u32 v{XR}, {(XT - X0) & 0xffffffff:#x}, v{XR}")
            r = AR + (n % NR_) * 4
            dsop(("A", n), f"ds_read_b128 v[{r}:{r+3}], v{XR} offset:{max(st-1, 0)*XST + ks*32}")
        def pack(st):
            x = ACC_ + (st % 2) * 16; h = x + 8
            o = [f"v_mul_f32 v{x+r}, 0xbfb8aa3b, v{x+r}" for r in range(8)]
            if not P:
                o += [f"v_mul_f32 v{h+r}, 0x49800000, v{h+r}" for r in range(8)]
                return o + [f"v_cvt_pk_bf16_f32 v{h+r}, v{x+r}, v{h+r}" for r in range(8)]
            o += [f"v_add_u32 v{h+r}, {K:#x}, v{h+r}" for r in range(8)]
            o += [f"v_cvt_pk_bf16_f32 v{x+r}, v{x+r}, v{x+r+1}" for r in range(0, 8, 2)]
            o += [f"v_sub_u32_sdwa v{h+r}, v{h+r}, v{x+(r&6)} dst_sel:DWORD dst_unused:UNUSED_PAD src0_sel:DWORD src1_sel:WORD_{r&1}" for r in range(8)]
            o += [f"v_perm_b32 v{h+r}, v{h+r}, v{x+(r&6)}, s{SP1 if r&1 else SP0}" for r in range(8)]
            return o
        def wr(st):
            h = ACC_ + (st % 2) * 16 + 8
            for q in range(2): dsop(("W", st), f"ds_write_b128 v{OA}, v[{h+4*q}:{h+4*q+3}] offset:{16*q}")
            d = (RINGS[(st+1) % 2] - RINGS[st % 2]) if P else STG
            if st < 4: a(f"v_add_u32 v{OA}, {d & 0xffffffff:#x}, v{OA}")
        def copy_rd(st, r=CO):
            for q in range(2): dsop(("C", st), f"ds_read_b128 v[{r+4*q}:{r+4*q+3}], v{CA[st%2]} offset:{q*16*RS}")
        def copy_st(st, r=CO):
            dswait(("C", st))
            for q in range(2):
                a(f"s_mov_b32 s{S_X}, {st*8192 + q*4096}\nbuffer_store_dwordx4 v[{r+4*q}:{r+4*q+3}], v{SA}, s[{R_O}:{R_O+3}], s{S_X} offen{SC}")
        def darr(tag, off):
            a("s_mov_b64 exec, 1")
            dsop(tag, f"ds_add_u32 v{CB}, v{ONE} offset:{off}")
            a("s_mov_b64 exec, -1")
        for n in range(LA_): rdA(n)
        pend = []
        for n in range(80):
            st, ks = divmod(n, 16)
            c_off = C_X + 4 * st
            if not P:
                for k_, at in enumerate(SIG):
                    if at == n:
                        xs = k_ + 1
                        a(f"s_waitcnt vmcnt({4 * (min(4, xs + XW - 1) - xs)})\ns_mov_b64 exec, 1")
                        dsop(("X", xs), f"ds_add_u32 v{CB}, v{T2} offset:{C_X + 4*k_}")
                        a("s_mov_b64 exec, -1")
                        if xs + XW <= 4: xst(xs + XW)
                if n == HOLD + 1: spin(a, C_S4, LANE, S_X, n=8, sl=1, first=False)
                if n == HOLD: spin(a, (C_X + 4 * oi("as", 5)) if oi("as", 5) < 5 else C_R2, LANE, S_X, n=4, sl=1, mask=0xf, first=False)
            if ks == ARAT: darr(("S", st), c_off)
            if ks == RDAT: dsop(("R", st), f"ds_read_b32 v{CV}, v{CB} offset:{c_off}")
            if ks == 16 - LA_:
                dswait(("R", st))
                a(f"v_readfirstlane_b32 s{S_X}, v{CV}")
                if P: spin(a, c_off, CV, S_X, n=(0x404 if st < 4 else 4), sl=1, mask=0xf0f)
                elif st < 2: spin(a, c_off, CV, S_X, n=0x400, sl=1, mask=0xf00)
                else: spin(a, c_off, CV, S_X, n=(0x444 if st < 4 else 0x44), sl=1, mask=0xfff)
                if st == 1: stamp(a, 4)
                if st == 3: stamp(a, 5)
            cr = ACC_ + ((st + 1) % 2) * 16
            if ks == 14 and P:
                if st == 2 and "xpf" in OPT: a("s_waitcnt vmcnt(0)")
                if st >= 2: copy_rd(st - 2, cr)
                if st == 4: darr("R2", C_R2)
            if n + LA_ < 80: rdA(n + LA_)
            if n % 2 == 0: dswait(("A", n + 1))
            r = AR + (n % NR_) * 4
            c = ACC_ + (st % 2) * 16
            a(f"v_mfma_f32_32x32x16_bf16 v[{c}:{c+15}], v[{BF+ks*4}:{BF+ks*4+3}], v[{r}:{r+3}], " + ("0" if ks == 0 else f"v[{c}:{c+15}]"))
            if ks == 2 and pend: a("s_nop 5")
            if ks >= 2:
                for _ in range(3 if P else 2):
                    if pend: a(pend.pop(0))
            if ks == 14 and st >= 1:
                assert not pend
                wr(st - 1)
            if P and ks == 15 and st >= 2: copy_st(st - 2, cr)
            if ks == 15: pend = pack(st)
        if P: a(f"ds_read_b32 v{CV}, v{CB} offset:{C_R2}\ns_nop 10")
        else: a("s_nop 11")
        for x in pend: a(x)
        if P:
            a(f"s_waitcnt lgkmcnt(0)\nv_readfirstlane_b32 s{S_X}, v{CV}")
            spin(a, C_R2, CV, S_X, n=4)
        wr(4)
        stamp(a, 6)
        if P:
            sync(a, C_E, n=4)
            copy_rd(3, AR + 8); copy_rd(4, AR)
            copy_st(3, AR + 8); copy_st(4, AR)
            arrive(a, C_PE)

    a(f"s_cmp_ge_u32 s{S_W}, 12\ns_cbranch_scc1 a_role")
    a(f"v_add_u32 v{CA[1]}, {(RINGS[1]-RINGS[0]) & 0xffffffff:#x}, v{CA[0]}")
    if "fx0" in OPT: wait(a, C_MK, 4, sl=0)
    if "pprio" in OPT: a(f"s_setprio {OPT['pprio']}")
    stamp(a, 3)
    stream(True)
    a(f"s_setprio {oi('ptail', 3)}")
    stamp(a, 7)
    a(f"""v_mbcnt_lo_u32_b32 v{LANE}, -1, 0
    v_mbcnt_hi_u32_b32 v{LANE}, -1, v{LANE}
    s_lshl_b32 s{S_Y}, s{S_G}, {6+FSH}
    s_add_u32 s{S_Y}, s{S_Y}, {WS_FE:#x}
    v_lshl_add_u32 v2, v{LANE}, {FSH}, s{S_Y}
    global_load_dwordx2 v[4:5], v2, s[{P_WS}:{P_WS+1}] sc1
    ds_read_b32 v13, v{CB} offset:{C_IDX}
    s_mul_i32 s{S_X}, s{S_G}, {64*L.CHS*32}""")
    srd(a, RD, P_WS, L.WS_EA, 64 * L.CHS * 32, soff=S_X)
    a(f"""v_and_b32 v3, 62, v{LANE}
    s_lshl_b32 s{S_X}, s{S_G}, 11
    s_add_u32 s{S_X}, s{S_X}, {MARK2}
    v_add_u32 v3, s{S_X}, v3
    v_lshl_add_u32 v6, s{S_G}, 4, v{CB}
    v_lshlrev_b32 v7, 4, v{LANE}
    v_add_u32 v12, {32*L.CHS*32}, v7
    s_waitcnt lgkmcnt(0)
    v_readfirstlane_b32 s{S_NT}, v13
    s_cmp_ge_u32 s{S_NT}, 8
    s_cbranch_scc1 p_idx""")
    a.c("indices not ready yet: publish the table first")
    wait(a, C_S3, 1)
    a(f"ds_read_b64 v[0:1], v{CB} offset:{C_TAG}\ns_waitcnt vmcnt(0)")
    publish_done(a, "p_pd0", 0, C_D, 4, False)
    wait(a, C_IDX, 8)
    PX = 16
    a(f"p_idx:\nds_read_b64 v[0:1], v{CB} offset:{C_TAG}\nds_read_b128 v[8:11], v6 offset:{C_BT}")
    for h in range(2):
        for k in range(NK): a(f"ds_read_u16 v{PX+NK*h+k}, v3 offset:{1024*h + 64*k}")
    arrive(a, C_P2)
    a("s_waitcnt lgkmcnt(0)")
    SB, ST = [S_BASE, S_N0], [S_T, S_N1]
    for h in range(2): a(f"v_readfirstlane_b32 s{SB[h]}, v{8+2*h}\nv_readfirstlane_b32 s{ST[h]}, v{9+2*h}")
    k0 = NE // 32
    for h in range(2):
        for k in range(k0): a(f"v_lshl_add_u32 v{PX+NK*h+k}, v{PX+NK*h+k}, 5, v{12 if h else 7}")
    wait(a, C_P2, 4, sl=0)
    wait(a, C_X + 4, 0x40, mask=0xf0, sl=0)
    a(f"s_cmp_lt_u32 s{S_NT}, 8\ns_cbranch_scc1 p_pd1\ns_waitcnt vmcnt(1)")
    publish_done(a, "p_pd1", 0, C_D, 4, False)
    flag_poll(a, "p_fp", 2, 4, "v[0:1]", oi("psl", 2))
    EW = oi("ew", 8)
    a(f"s_mul_i32 s{S_Z}, s{S_G}, {2*NE*32}\ns_movk_i32 s{S_Y}, 4096")
    for h in range(2):
        for k in range(k0):
            if k % 4 == 0: a(f"s_add_u32 m0, s{S_Z}, {EA_E + h*NE*32 + 1024*k}")
            a(f"s_waitcnt vmcnt({EW-1})\nbuffer_load_dwordx4 v{PX+NK*h+k}, s[{RD}:{RD+3}], {'0' if k < 4 else 's%d' % S_Y} offen offset:{1024*(k%4)}{SC} lds")
        if h == 0:
            for hh in range(2):
                for k in range(k0, 10): a(f"v_lshl_add_u32 v{PX+NK*hh+k}, v{PX+NK*hh+k}, 5, v{12 if hh else 7}")
    stamp(a, 9)
    a("s_setprio 0")
    ldconsts(a)
    arrive(a, C_AE)
    wait(a, C_AE, 8, sl=2)
    a("s_setprio 3")
    for h in range(2):
        a(f"s_lshl_b32 s{S_Z}, s{SB[h]}, 5")
        for k in range(k0, NK):
            if (k - k0) % 4 == 0: a(f"s_add_u32 m0, s{S_Z}, {EA + 1024*(k-k0)}\ns_movk_i32 s{S_X}, {1024*k}")
            a(f"""s_cmp_gt_u32 s{ST[h]}, {32*k}
            s_cbranch_scc0 p_ld{h}
            {"v_lshl_add_u32 v%d, v%d, 5, v%d" % (PX+NK*h+k, PX+NK*h+k, 12 if h else 7) if k >= 10 else ""}
            s_waitcnt vmcnt({EW-1})
            buffer_load_dwordx4 v{PX+NK*h+k}, s[{RD}:{RD+3}], s{S_X} offen offset:{1024*((k-k0)%4)}{SC} lds""")
        a(f"p_ld{h}:")
    a(f"v_mov_b32 v3, 0x1000")
    arrive(a, C_GO, 3)
    a("s_waitcnt vmcnt(0)")
    arrive(a, C_RDY)
    a("s_branch k_join")
    a("a_role:")
    a(f"v_mov_b32 v{T2}, 0x100")
    if "fx0" in OPT:
        xst(1)
        a("s_waitcnt vmcnt(4)")
        arrive(a, C_MK)
        for st in range(2, 1 + XW): xst(st)
        arrive(a, C_XI)
        wait(a, C_MK, 4, sl=0)
    else:
        for st in range(1, 1 + XW): xst(st)
        arrive(a, C_XI)
    a(f"v_mov_b32 v{ONE}, 16")
    if "aprio" in OPT: a(f"s_setprio {OPT['aprio']}")
    stamp(a, 3)
    stream(False)
    a(f"v_mov_b32 v{ONE}, 1")
    a(f"v_mbcnt_lo_u32_b32 v{LANE}, -1, 0\nv_mbcnt_hi_u32_b32 v{LANE}, -1, v{LANE}")
    ldconsts(a)
    arrive(a, C_AE)
    a("s_setprio 0")
    stamp(a, 7)

def rd_ad(t): return [f"ds_read_b128 v[{AD+4*q}:{AD+4*q+3}], v{PROW} offset:{ROW + 64*t + 16*q}" for q in range(4)]
def gathers(g): return [f"buffer_load_dword v{g+j}, v{AD+slot_of_reg(j)}, s[{R_TBL}:{R_TBL+3}], 0 offen{'' if 'gplain' in OPT else ' nt' if 'gnt' in OPT else SC}" for j in range(16)]
def rd_eidx(t): return [f"ds_read_u16 v{EIDX}, v{PEAD} offset:{EAD + 32*t}"]
def rd_a():
    return [f"v_lshl_add_u32 v{EADDR}, v{EIDX}, 5, v{KHC}",
            f"s_mov_b64 exec, s[{S_E0}:{S_E0+1}]", f"ds_read_b128 v[{A0}:{A0+3}], v{EADDR}",
            f"s_mov_b64 exec, s[{S_E1}:{S_E1+1}]", f"ds_read_b128 v[{A1}:{A1+3}], v{EADDR}", "s_mov_b64 exec, -1"]
def rd_xa(x):
    o = [f"s_mov_b32 m0, s{S_RO}"]
    for k in range(4):
        o += [f"s_bitcmp1_b32 s{S_FR}, {k}", f"ds_read_addtid_b32 v{x+k} offset:{XAU}", f"s_cselect_b32 s{S_X}, {RS}, 0"]
        o += [f"s_add_u32 m0, m0, s{S_X}" if k < 3 else f"s_add_u32 s{S_RO}, m0, s{S_X}"]
    o += [f"s_lshr_b64 s[{S_FR}:{S_FR+1}], s[{S_FR}:{S_FR+1}], 4"]
    return o
def bigs(d, x):
    D = f"v[{d}:{d+15}]"
    return [f"v_mfma_f32_32x32x16_bf16 {D}, v[{A0}:{A0+3}], v[{B0}:{B0+3}], 0",
            f"v_mfma_f32_32x32x16_bf16 {D}, v[{A1}:{A1+3}], v[{B1}:{B1+3}], {D}",
            f"v_mfma_f32_32x32x16_bf16 {D}, v[{A2}:{A2+3}], v[{x}:{x+3}], {D}"]
def smalls(d, g):
    return [f"v_mfma_f32_16x16x32_bf16 v[{d+4*q}:{d+4*q+3}], v[{SEL}:{SEL+3}], v[{g+4*q}:{g+4*q+3}], v[{d+4*q}:{d+4*q+3}]" for q in range(4)]
def pk(d, h):
    X = lambda i: f"v[{d+2*i}:{d+2*i+1}]"; H = lambda i: f"v[{h+2*i}:{h+2*i+1}]"; C = f"v[{CC}:{CC+1}]"
    return [f"v_pk_fma_f32 {X(i)}, {X(i)}, {C}, {C} clamp" for i in range(4)] + [
        f"v_pk_mul_f32 {H(0)}, {H(0)}, {X(1)}", f"v_pk_mul_f32 {H(2)}, {H(2)}, {X(3)}",
        f"v_pk_fma_f32 {H(0)}, {H(1)}, {X(0)}, {H(0)}", f"v_pk_fma_f32 {H(2)}, {H(3)}, {X(2)}, {H(2)}",
        f"v_pk_mul_f32 {X(0)}, {X(0)}, {X(1)}", f"v_pk_mul_f32 {X(2)}, {X(2)}, {X(3)}",
        f"v_pk_mul_f32 {X(1)}, {X(0)}, {X(2)}", f"v_pk_mul_f32 {X(3)}, {H(0)}, {X(2)}",
        f"v_pk_fma_f32 {X(3)}, {H(2)}, {X(0)}, {X(3)}"]

NP_ = [120, 124]; DP_ = [122, 126]
def P2(r): return f"v[{r}:{r+1}]"
def seq(d, h, g):
    X = lambda i: P2(d + 2*i); H = lambda i: P2(h + 2*i); N = P2(NP_[g]); D = P2(DP_[g])
    o = [f"v_pk_add_f32 {D}, {X(0)}, 1.0 op_sel_hi:[1,0]", f"v_pk_fma_f32 {N}, {H(0)}, {X(1)}, {H(0)}",
         f"v_pk_fma_f32 {N}, {H(1)}, {D}, {N}", f"v_pk_fma_f32 {D}, {D}, {X(1)}, {D}"]
    for i in (2, 3):
        o += [f"v_pk_fma_f32 {N}, {N}, {X(i)}, {N}", f"v_pk_fma_f32 {N}, {H(i)}, {D}, {N}", f"v_pk_fma_f32 {D}, {D}, {X(i)}, {D}"]
    return o
def safe(d, h, g):
    return [f"v_mov_b32 v{CC}, 0x30800000", f"v_mov_b32 v{CC+1}, 0x30800000"] + pk(d, h) + [f"v_mov_b32 v{d}, 0x4e800000", f"v_mov_b32 v{NP_[g]}, v{d+6}", f"v_mov_b32 v{NP_[g]+1}, v{d+7}",
                       f"v_mul_f32 v{DP_[g]}, v{d}, v{d+2}", f"v_mul_f32 v{DP_[g]+1}, v{d}, v{d+3}"]
def check(lab, ng=2):
    if ng == 2: o = [f"v_fma_f32 v{EADDR}, v{DP_[0]}, v{DP_[0]+1}, v{DP_[1]}", f"v_add_f32 v{EADDR}, v{EADDR}, v{DP_[1]+1}"]
    else: o = [f"v_add_f32 v{EADDR}, v{DP_[0]}, v{DP_[0]+1}"]
    return o + [f"v_cmp_ngt_f32 vcc, 0x57800000, v{EADDR}", f"s_cbranch_vccnz {lab}"]
OOL = []
def accum(a, c, ks, tag):
    for k in ks:
        nx = XA[c] + k + 1 if k < 3 else XA[1 - c]
        body = f"""s_mov_b32 m0, s{S_FO}
        s_add_u32 s{S_FO}, s{S_FO}, {RS}
        ds_write_addtid_b32 v{ACC} offset:{XAU}
        v_and_b32 v{ACC}, 0xffff0000, v{nx}"""
        if "ool" in OPT:
            a(f"""s_bitcmp1_b32 s{S_FF}, {k}
            v_fmac_f32 v{ACC}, v{NP_[k//2]+k%2}, v{DP_[k//2]+k%2}
            s_cbranch_scc1 k2_fl{tag}_{k}
            k2_nofl{tag}_{k}:""")
            OOL.append(f"k2_fl{tag}_{k}:\n{body}\ns_branch k2_nofl{tag}_{k}")
        else:
            a(f"""v_fmac_f32 v{ACC}, v{NP_[k//2]+k%2}, v{DP_[k//2]+k%2}
            s_bitcmp1_b32 s{S_FF}, {k}
            s_cbranch_scc0 k2_nofl{tag}_{k}
            {body}
            k2_nofl{tag}_{k}:""")

def mainloop(a):
    em = lambda ls: [a(x) for x in ls]
    a(f"""k_join:
    s_mov_b32 s{S_E0}, 0x0f0f0f0f
    s_mov_b32 s{S_E0+1}, 0x0f0f0f0f
    s_mov_b32 s{S_E1}, 0xf0f0f0f0
    s_mov_b32 s{S_E1+1}, 0xf0f0f0f0
    s_mov_b32 s{S_FIRST}, 1
    s_mov_b32 s{S_BASE}, 1""")
    if "trace" in OPT: a(f"v_mov_b32 v{CC}, 0\ns_mov_b32 s{ST0+2}, 0")
    if "contig" in OPT:
        a(f"""s_and_b32 s{S_Y}, s{S_W}, 3
        s_lshl_b32 s{S_Y}, s{S_Y}, 2
        s_lshr_b32 s{S_Z}, s{S_W}, 2
        s_add_u32 s{S_Y}, s{S_Y}, s{S_Z}
        s_lshl_b32 s{S_Y}, s{S_Y}, 3""")
    else: a(f"s_lshl_b32 s{S_Y}, s{S_W}, 3")
    a(f"v_mov_b32 v{T1}, s{S_Y}\nv_lshlrev_b32 v{T2}, 4, v{LANE}")
    wait(a, C_GO, 8, mask=0xf)
    a(f"""ds_read_b64 v[0:1], v{T1} offset:{BND}
    ds_read_b64 v[2:3], v{T1} offset:{BND+8}
    ds_read_b32 v5, v{CB} offset:{C_OVF}
    ds_read_b128 v[{B0}:{B0+3}], v{T2} offset:{BW}
    ds_read_b128 v[{B1}:{B1+3}], v{T2} offset:{BW+1024}
    s_waitcnt lgkmcnt(2)
    v_readfirstlane_b32 s{S_N0}, v0
    v_readfirstlane_b32 s{S_Q0}, v1
    v_readfirstlane_b32 s{S_N1}, v2
    v_readfirstlane_b32 s{S_NQ}, v3
    v_lshlrev_b32 v{PROW}, 2, v1
    v_lshl_add_u32 v{PEAD}, v1, 1, v{PEAD}
    s_sub_u32 s{S_NQ}, s{S_NQ}, s{S_Q0}
    s_lshr_b32 s{S_NQ}, s{S_NQ}, 2
    s_lshr_b32 s{S_Q0}, s{S_Q0}, 2
    s_mul_i32 s{S_FO}, s{S_N0}, {RS}
    v_readfirstlane_b32 s{S_X}, v5
    s_cmp_lg_u32 s{S_X}, 0
    s_cbranch_scc1 k_slow""")
    a(f"""k2_block:
    v_add_u32 v{T2}, s{S_Q0}, v{LANE}""")
    em(rd_ad(0))
    a(f"s_cmp_eq_u32 s{S_NQ}, 0\ns_cbranch_scc1 k2_epi")
    a(f"ds_read_u8 v{T3}, v{T2} offset:{FLG}")
    em(rd_eidx(0))
    a(f"""s_min_u32 s{S_Y}, s{S_NQ}, 64
    s_add_u32 s{S_NT}, s{S_Y}, 3
    s_lshr_b32 s{S_NT}, s{S_NT}, 2
    s_mov_b32 s{S_RO}, s{S_FO}
    v_cmp_gt_u32 vcc, s{S_Y}, v{LANE}
    s_sub_u32 s{S_Y}, s{S_Y}, 1
    s_and_b32 s{S_T}, s{S_Y}, 2
    s_waitcnt lgkmcnt(0)
    v_cmp_ne_u32 s[{S_FF}:{S_FF+1}], 0, v{T3}
    s_and_b64 s[{S_FF}:{S_FF+1}], s[{S_FF}:{S_FF+1}], vcc
    s_mov_b64 s[{S_FR}:{S_FR+1}], s[{S_FF}:{S_FF+1}]
    s_bitset0_b64 s[{S_FR}:{S_FR+1}], s{S_Y}
    s_cmp_eq_u32 s{S_FIRST}, 0
    s_cbranch_scc1 k2_g0""")
    if "gearly" in OPT: wait(a, C_GO, 0x108, mask=0xfff)
    else: wait(a, C_GO, 0x4108)
    a("k2_g0:")
    em(gathers(G[0])); em(rd_ad(1))
    a(f"s_cmp_eq_u32 s{S_FIRST}, 0\ns_cbranch_scc1 k2_nobar")
    wait(a, C_RDY, 4)
    a(f"""s_mov_b32 s{S_FIRST}, 0
    k2_nobar:
    s_setprio 3""")
    stamp(a, 10)
    a("s_waitcnt lgkmcnt(0)")
    em(rd_a()); em(rd_eidx(1)); em(rd_xa(XA[0]))
    em(gathers(G[1])); em(rd_ad(2))
    a("s_waitcnt lgkmcnt(4)")
    em(bigs(Dd[0], XA[0]))
    a(f"s_cmp_eq_u32 s{S_BASE}, 0\ns_cbranch_scc1 k2_keep\nv_and_b32 v{ACC}, 0xffff0000, v{XA[0]}\nk2_keep:\ns_lshr_b32 s{S_BASE}, s{S_FF+1}, 31")
    em(rd_a()); em(rd_eidx(2)); em(rd_xa(XA[1]))
    a("s_waitcnt vmcnt(16)")
    em(smalls(Dd[0], G[0]))
    stamp(a, 11)
    a(f"s_nop 5\ns_cmp_eq_u32 s{S_NT}, 1\ns_cbranch_scc1 k2_last0")
    if "al" in OPT: a(f".p2align {OPT['al']}")
    if "pad" in OPT: a("s_nop 0")
    a("k2_loop:")
    rc = [f"v_rcp_f32 v{DP_[k//2]+k%2}, v{DP_[k//2]+k%2}" for k in range(4)]
    for u in range(2):
        c, n = u, 1 - u
        e = [f"v_exp_f32 v{Dd[c]+j}, v{Dd[c]+j}" for j in range(16)]
        b = bigs(Dd[n], XA[n])
        if "nob2" in OPT: b[2] = "s_nop 0"
        if "noe" in OPT: e = e[:8] + ["s_nop 0"] * 8
        a("s_waitcnt lgkmcnt(4)")
        em([b[0]] + e[0:4] + [b[1]] + e[4:8] + ["s_waitcnt lgkmcnt(0)", b[2]] + e[8:12])
        if "trace" in OPT: a(f"s_mov_b32 m0, s{S_NT}\ns_nop 0\nv_writelane_b32 v{CC}, s{ST0+2}, m0")
        em(rd_a()); em(rd_eidx(3 + u)); em(e[12:16])
        em(inter(seq(Dd[c], G[c], 0), seq(Dd[c] + 8, G[c] + 8, 1)))
        if "trace" in OPT: a(f"s_memrealtime s[{ST0+2}:{ST0+3}]")
        em(check(f"k2_safe{u}"))
        a(f"k2_ok{u}:\ns_cmp_le_u32 s{S_NT}, 2\ns_cbranch_scc1 k2_noload{u}")
        em(gathers(G[c])[:oi("ng", 16)])
        em(rd_ad(3 + u))
        a(f"s_waitcnt vmcnt({oi('ng', 16)})\nk2_loaded{u}:")
        em(inter(smalls(Dd[n], G[n]), rc))
        accum(a, c, range(4), str(u))
        em(rd_xa(XA[c]))
        a(f"s_lshr_b64 s[{S_FF}:{S_FF+1}], s[{S_FF}:{S_FF+1}], 4")
        if u == 1: a(f"v_add_u32 v{PROW}, 128, v{PROW}\nv_add_u32 v{PEAD}, 64, v{PEAD}")
        nx = 'k2_mid' if u == 0 else 'k2_loop'
        if u == 0 and "ool" in OPT:
            a(f"""s_sub_u32 s{S_NT}, s{S_NT}, 1
            s_cmp_gt_u32 s{S_NT}, {PRIO[0]}
            s_cbranch_scc0 k2_pr
            k2_mid:""")
            OOL.append(f"""k2_pr:
            s_setprio 2
            s_cmp_gt_u32 s{S_NT}, {PRIO[1]}
            s_cbranch_scc1 k2_mid
            s_setprio 1
            s_cmp_gt_u32 s{S_NT}, 1
            s_cbranch_scc1 k2_mid
            s_branch k2_last1""")
            continue
        a(f"""s_sub_u32 s{S_NT}, s{S_NT}, 1
        s_cmp_gt_u32 s{S_NT}, {PRIO[0]}
        s_cbranch_scc1 {nx}
        s_setprio 2
        s_cmp_gt_u32 s{S_NT}, {PRIO[1]}
        s_cbranch_scc1 {nx}
        s_setprio 1
        s_cmp_gt_u32 s{S_NT}, 1""")
        a(f"s_cbranch_scc0 k2_last1\nk2_mid:" if u == 0 else "s_cbranch_scc1 k2_loop")
    for c in range(2):
        e = [f"v_exp_f32 v{Dd[c]+j}, v{Dd[c]+j}" for j in range(16)]
        a(f"k2_last{c}:\ns_setprio {oi('lprio', 0)}\ns_cmp_eq_u32 s{S_T}, 0\ns_cbranch_scc1 k2_half{c}")
        em(e); em(inter(seq(Dd[c], G[c], 0), seq(Dd[c] + 8, G[c] + 8, 1)))
        em(check(f"k2_safe{c+2}"))
        a(f"k2_ok{c+2}:"); em(rc)
        accum(a, c, range(4), f"l{c}")
        a(f"s_branch k2_loopend\nk2_half{c}:")
        em(e[:8]); em(seq(Dd[c], G[c], 0))
        em(check(f"k2_safe{c+4}", 1))
        a(f"k2_ok{c+4}:"); em(rc[:2]); a("s_nop 0")
        accum(a, c, range(2), f"h{c}")
        if c == 0: a("s_branch k2_loopend")
    a(f"""k2_loopend:
    v_mbcnt_lo_u32_b32 v{LANE}, -1, 0
    v_mbcnt_hi_u32_b32 v{LANE}, -1, v{LANE}
    s_cmp_le_u32 s{S_NQ}, 64
    s_cbranch_scc1 k2_epi
    s_sub_u32 s{S_NQ}, s{S_NQ}, 64
    s_add_u32 s{S_Q0}, s{S_Q0}, 64
    v_add_u32 v{PROW}, 128, v{PROW}
    v_add_u32 v{PEAD}, 64, v{PEAD}
    s_waitcnt lgkmcnt(0)
    s_branch k2_block""")
    for u in range(2): a(f"k2_noload{u}:\ns_waitcnt vmcnt(0)\ns_branch k2_loaded{u}")
    for x in OOL: a(x)
    for u in range(6):
        c = u % 2
        a(f"k2_safe{u}:")
        em(safe(Dd[c], G[c], 0))
        if u < 4: em(safe(Dd[c] + 8, G[c] + 8, 1))
        a(f"s_branch k2_ok{u}")

def epilogue(a):
    E = 0; CW = 64; C2 = 66
    OSC = {"": " sc1", "sc1": " sc1", "plain": "", "nt": " nt"}[OPT.get("outsc", "")]
    a("k2_epi:")
    stamp(a, 12)
    a(f"""v_lshrrev_b32 v{T0}, 3, v{LANE}
    v_and_b32 v{T1}, 7, v{LANE}
    v_add_u32 v{T0}, s{S_N0}, v{T0}
    v_mul_u32_u24 v{T2}, {RS}, v{T0}
    v_lshl_add_u32 v{T2}, v{T1}, 5, v{T2}
    v_lshlrev_b32 v{T3}, 9, v{T0}
    v_lshl_add_u32 v{T3}, v{T1}, 4, v{T3}
    s_mul_i32 s{S_X}, s{S_R}, {L.RN*512}
    s_lshl_b32 s{S_Y}, s{S_S}, 7
    s_add_u32 s{S_X}, s{S_X}, s{S_Y}
    s_waitcnt vmcnt(0) lgkmcnt(0)
    v_mov_b32 v{CW}, 0xb5b8aa3b
    v_mov_b32 v{CW+1}, 0xb5b8aa3b
    v_mov_b32 v{C2}, 0x49800000
    v_mov_b32 v{C2+1}, 0x49800000""")
    def silu(n):
        for i in range(n): a(f"v_pk_mul_f32 v[{E+8+2*i}:{E+9+2*i}], v[{E+2*i}:{E+2*i+1}], v[{CW}:{CW+1}]")
        for i in range(2*n): a(f"v_exp_f32 v{E+8+i}, v{E+8+i}")
        for i in range(n): a(f"v_pk_fma_f32 v[{E+8+2*i}:{E+9+2*i}], v[{E+8+2*i}:{E+9+2*i}], v[{C2}:{C2+1}], v[{C2}:{C2+1}]")
        for i in range(2*n): a(f"v_rcp_f32 v{E+8+i}, v{E+8+i}")
        for i in range(n): a(f"v_pk_mul_f32 v[{E+2*i}:{E+2*i+1}], v[{E+2*i}:{E+2*i+1}], v[{E+8+2*i}:{E+9+2*i}]")
        for i in range(n): a(f"v_cvt_pk_bf16_f32 v{E+16+i}, v{E+2*i}, v{E+2*i+1}")
    a(f"""k2_eloop:
    s_add_u32 s{S_Y}, s{S_N0}, 4
    s_cmp_ge_u32 s{S_Y}, s{S_N1}
    s_cbranch_scc1 k2_e4
    ds_read_b128 v[{E}:{E+3}], v{T2} offset:{XAU}
    ds_read_b128 v[{E+4}:{E+7}], v{T2} offset:{XAU+16}
    v_cmp_gt_u32 vcc, s{S_N1}, v{T0}
    v_add_u32 v{T0}, 8, v{T0}
    v_add_u32 v{T2}, {8*RS}, v{T2}
    s_waitcnt lgkmcnt(0)""")
    silu(4)
    a(f"""s_mov_b64 exec, vcc
    buffer_store_dwordx4 v[{E+16}:{E+19}], v{T3}, s[{R_OUT}:{R_OUT+3}], s{S_X} offen{OSC}
    s_mov_b64 exec, -1
    v_add_u32 v{T3}, 0x1000, v{T3}
    s_add_u32 s{S_N0}, s{S_N0}, 8
    s_branch k2_eloop
    k2_e4:
    s_cmp_ge_u32 s{S_N0}, s{S_N1}
    s_cbranch_scc1 k2_done
    v_lshrrev_b32 v{T0}, 4, v{LANE}
    v_and_b32 v{T1}, 15, v{LANE}
    v_add_u32 v{T0}, s{S_N0}, v{T0}
    v_mul_u32_u24 v{T2}, {RS}, v{T0}
    v_lshl_add_u32 v{T2}, v{T1}, 4, v{T2}
    ds_read_b128 v[{E}:{E+3}], v{T2} offset:{XAU}
    v_lshlrev_b32 v{T3}, 9, v{T0}
    v_lshl_add_u32 v{T3}, v{T1}, 3, v{T3}
    v_cmp_gt_u32 vcc, s{S_N1}, v{T0}
    s_waitcnt lgkmcnt(0)""")
    silu(2)
    a(f"""s_mov_b64 exec, vcc
    buffer_store_dwordx2 v[{E+16}:{E+17}], v{T3}, s[{R_OUT}:{R_OUT+3}], s{S_X} offen{OSC}
    s_mov_b64 exec, -1
    k2_done:""")

def slowpath(a):
    CF, DV, SV, L4, TT, GV, XV, AV, ZZ = 0, 16, 17, 18, 19, 20, 21, 22, 24
    MK, EAS, SD, SS, SE = 4, 8, S_T, S_BASE, S_SL
    a("k_slow:\ns_setprio 0")
    wait(a, C_GO, 0x4108)
    wait(a, C_RDY, 4)
    a(f"""s_load_dwordx2 s[{RA}:{RA+1}], s[0:1], 24
    s_load_dwordx2 s[{RB}:{RB+1}], s[0:1], 16
    s_load_dwordx2 s[{RC}:{RC+1}], s[0:1], 8
    s_load_dwordx2 s[{RD}:{RD+1}], s[0:1], 48
    v_lshlrev_b32 v{L4}, 2, v{LANE}
    v_lshlrev_b32 v{TT}, 1, v{LANE}
    s_lshl_b32 s{S_X}, s{S_W}, 10
    s_add_u32 s{S_X}, s{S_X}, {EA}
    v_lshl_add_u32 v{AV}, v{LANE}, 4, s{S_X}""")
    for k in range(4): a(f"v_mov_b32 v{ZZ+k}, 0")
    for k in range(3): a(f"ds_write_b128 v{AV}, v[{ZZ}:{ZZ+3}] offset:{16384*k}")
    a(f"""s_waitcnt lgkmcnt(0)
    s_mov_b32 s{RA+2}, {L.E*4}
    s_mov_b32 s{RA+3}, 0x20000
    s_mov_b32 s{RB+2}, {L.E*4}
    s_mov_b32 s{RB+3}, 0x20000
    s_mov_b32 s{RC+2}, {L.E*32}
    s_mov_b32 s{RC+3}, 0x20000
    s_mov_b32 s{RD+2}, {528*512}
    s_mov_b32 s{RD+3}, 0x20000
    s_lshl_b32 s{S_X}, s{S_S}, 7
    s_add_u32 s{S_X}, s{S_X}, {512*512}
    s_add_u32 s{S_Y}, s{S_X}, 4096""")
    for k in range(16): a(f"buffer_load_ushort v{CF+k}, v{TT}, s[{RD}:{RD+3}], s{S_X if k < 8 else S_Y} offen offset:{512*(k%8)}")
    a("s_waitcnt vmcnt(0)")
    for k in range(16): a(f"v_lshlrev_b32 v{CF+k}, 16, v{CF+k}\nv_mul_f32 v{CF+k}, 0xbfb8aa3b, v{CF+k}")
    a(f"""s_mul_i32 s{S_Z}, s{S_R}, {L.RN}
    s_lshl_b32 s{S_NT}, s{S_W}, 8
    s_barrier
    sl_blk:
    buffer_load_dword v{DV}, v{L4}, s[{RA}:{RA+3}], s{S_NT} offen
    buffer_load_dword v{SV}, v{L4}, s[{RB}:{RB+3}], s{S_NT} offen
    s_waitcnt vmcnt(0)
    v_subrev_u32 v{DV}, s{S_Z}, v{DV}
    v_cmp_gt_u32 s[{MK}:{MK+1}], s{S_NV}, v{DV}
    v_mul_u32_u24 v{DV}, {RS}, v{DV}
    v_and_b32 v{SV}, 0x3fff, v{SV}
    v_lshlrev_b32 v{SV}, 8, v{SV}
    sl_edge:
    s_cmp_eq_u64 s[{MK}:{MK+1}], 0
    s_cbranch_scc1 sl_next
    s_ff1_i32_b64 s{S_X}, s[{MK}:{MK+1}]
    s_bitset0_b64 s[{MK}:{MK+1}], s{S_X}
    v_readlane_b32 s{SD}, v{DV}, s{S_X}
    v_readlane_b32 s{SS}, v{SV}, s{S_X}
    s_lshl_b32 s{SE}, s{S_NT}, 3
    s_lshl_b32 s{S_X}, s{S_X}, 5
    s_add_u32 s{SE}, s{SE}, s{S_X}
    s_buffer_load_dwordx8 s[{EAS}:{EAS+7}], s[{RC}:{RC+3}], s{SE}
    v_mov_b32 v{TT}, s{SS}
    v_add_u32 v{AV}, s{SD}, v{L4}
    buffer_load_dword v{GV}, v{TT}, s[{R_TBL}:{R_TBL+3}], 0 offen{SC}
    ds_read_b32 v{XV}, v{AV} offset:{XAU}
    v_add_u32 v{AV}, {EA}, v{AV}
    s_waitcnt vmcnt(0) lgkmcnt(0)
    v_lshlrev_b32 v{XV}, 16, v{XV}
    v_lshlrev_b32 v{TT}, 16, v{GV}
    v_add_f32 v{XV}, v{XV}, v{TT}""")
    for k in range(8):
        a(f"""s_lshl_b32 s{S_X}, s{EAS+k}, 16
        s_and_b32 s{S_Y}, s{EAS+k}, 0xffff0000
        v_fmac_f32 v{XV}, s{S_X}, v{CF+2*k}
        v_fmac_f32 v{XV}, s{S_Y}, v{CF+2*k+1}""")
    a(f"""v_exp_f32 v{XV}, v{XV}
    s_nop 0
    v_add_f32 v{XV}, 1.0, v{XV}
    v_rcp_f32 v{XV}, v{XV}
    s_nop 0
    v_mul_f32 v{XV}, v{XV}, v{GV}
    ds_add_f32 v{AV}, v{XV}
    s_branch sl_edge
    sl_next:
    s_add_u32 s{S_NT}, s{S_NT}, 4096
    s_cmp_lt_u32 s{S_NT}, {L.E*4}
    s_cbranch_scc1 sl_blk
    s_waitcnt lgkmcnt(0)
    s_barrier
    s_mul_i32 s{S_N0}, s{S_W}, 10
    s_add_u32 s{S_N1}, s{S_N0}, 10
    s_min_u32 s{S_N0}, s{S_N0}, s{S_NV}
    s_min_u32 s{S_N1}, s{S_N1}, s{S_NV}
    s_mul_i32 s{S_X}, s{S_W}, {10*RS}
    v_add_u32 v{AV}, s{S_X}, v{L4}
    v_add_u32 v{TT}, {EA}, v{AV}""")
    for k in range(10):
        a(f"""ds_read_b32 v{XV}, v{AV} offset:{XAU + k*RS}
        ds_read_b32 v{GV}, v{TT} offset:{k*RS}
        s_waitcnt lgkmcnt(0)
        v_and_b32 v{XV}, 0xffff0000, v{XV}
        v_add_f32 v{XV}, v{XV}, v{GV}
        ds_write_b32 v{AV}, v{XV} offset:{XAU + k*RS}""")
    a("s_branch k2_epi")

def kernel(a):
    a(f".globl {NAME}\n.p2align 8\n.type {NAME},@function\n{NAME}:")
    a(f"""s_cmp_ge_u32 s2, 256
    s_cbranch_scc1 k_end
    s_load_dwordx16 s[4:19], s[0:1], 0
    s_load_dwordx4 s[20:23], s[0:1], 64""")
    if STAMPS: a(f"s_memrealtime s[{ST0}:{ST0+1}]")
    if "code" in OPT:
        dup = oi("code", 0) if OPT["code"] else 0
        a.c("touch a distinct part of the code (fills this die's L2)")
        a(f"""s_getpc_b64 s[{S_Q0}:{S_Q0+1}]
        k_pc:
        s_bfe_u32 s{S_X}, s2, {((5 - dup) << 16) | 3:#x}
        s_lshl_b32 s{S_X}, s{S_X}, 7
        v_lshl_add_u32 v1, v0, {12 - dup}, s{S_X}
        v_cmp_gt_u32 vcc, k_end-k_pc, v1
        s_and_b64 exec, exec, vcc
        s_cbranch_execz k_nocode
        global_load_dword v{TID}, v1, s[{S_Q0}:{S_Q0+1}]
        k_nocode:
        s_mov_b64 exec, -1""")
    a(f"v_lshrrev_b32 v1, 6, v0")
    MAP = OPT.get("map", "4")
    if MAP == "4":
        a(f"""s_and_b32 s{S_S}, s2, 3
        s_lshr_b32 s{S_R}, s2, 3
        s_bfe_u32 s{S_X}, s2, 0x10002
        s_lshl_b32 s{S_X}, s{S_X}, 5
        s_add_u32 s{S_R}, s{S_R}, s{S_X}""")
    elif MAP == "2":
        a(f"""s_and_b32 s{S_S}, s2, 1
        s_lshl_b32 s{S_S}, s{S_S}, 1
        s_bfe_u32 s{S_X}, s2, 0x10003
        s_add_u32 s{S_S}, s{S_S}, s{S_X}
        s_lshr_b32 s{S_R}, s2, 4
        s_bfe_u32 s{S_X}, s2, 0x20001
        s_lshl_b32 s{S_X}, s{S_X}, 4
        s_add_u32 s{S_R}, s{S_R}, s{S_X}""")
    else:
        a(f"""s_bfe_u32 s{S_S}, s2, 0x20003
        s_lshr_b32 s{S_R}, s2, 5
        s_and_b32 s{S_X}, s2, 7
        s_lshl_b32 s{S_X}, s{S_X}, 3
        s_add_u32 s{S_R}, s{S_R}, s{S_X}""")
    a(f"""v_readfirstlane_b32 s{S_W}, v1
    s_mul_i32 s{S_X}, s{S_R}, {L.RN}
    s_sub_u32 s{S_NV}, {L.N}, s{S_X}
    s_min_u32 s{S_NV}, s{S_NV}, {L.RN}
    v_and_b32 v{LANE}, 63, v0
    v_mov_b32 v{CB}, {CNT}
    v_mov_b32 v{ONE}, 1""")
    if STAMPS:
        for j in range(1, 16): a(f"s_mov_b64 s[{ST0+2*j}:{ST0+2*j+1}], 0")
    a(f"""s_cmp_ge_u32 s{S_W}, 8
    s_waitcnt lgkmcnt(0)
    s_cbranch_scc1 g_role""")
    s_role(a); g_role(a); mainloop(a); slowpath(a); epilogue(a)
    if STAMPS:
        a("s_waitcnt vmcnt(0)"); stamp(a, 13)
        if "xcc" in OPT: a(f"s_getreg_b32 s{ST0+28}, hwreg(HW_REG_XCC_ID)\ns_getreg_b32 s{ST0+29}, hwreg(HW_REG_HW_ID)")
        if "trace" in OPT:
            for j in range(1, 11): a(f"v_readlane_b32 s{ST0+2*j}, v{CC}, {j+1}\ns_mov_b32 s{ST0+2*j+1}, s{ST0+1}")
        stamp_flush(a)
    a("k_end:\ns_endpgm")

if __name__ == "__main__":
    a = Asm()
    kernel(a)
    hdr = open("gather_scatter__edge_featured_mpnn_egc__graph.s.ref").read().split("; Override launch")[0]
    out = hdr + f"""; @launch grid=(256,1,1) block=(1024,1,1) lds={LDSZ}
.amdgcn_target "amdgcn-amd-amdhsa--gfx950"
.text
""" + a.text() + f""".section .rodata,"a"
.p2align 6
.amdhsa_kernel {NAME}
  .amdhsa_next_free_vgpr 128
  .amdhsa_next_free_sgpr 102
  .amdhsa_accum_offset 128
  .amdhsa_group_segment_fixed_size 0
  .amdhsa_kernarg_size 80
  .amdhsa_user_sgpr_count 2
  .amdhsa_user_sgpr_kernarg_segment_ptr 1
  .amdhsa_system_sgpr_workgroup_id_x 1
  .amdhsa_float_denorm_mode_32 3
.end_amdhsa_kernel
"""
    open(sys.argv[1], "w").write(out)
```

```python
import sys
from dsl import *
import layout as L

OPT = {}
for x in sys.argv[2:]:
    if x.startswith("--"):
        k, _, val = x[2:].partition("=")
        OPT[k] = val
def oi(k, d): return int(OPT.get(k, d))
STAMPS = "stamps" in OPT
PRIO = [int(y) for y in OPT.get("prio", "4,2,1").split(",")]
NAME = "gather_scatter__edge_featured_mpnn_egc__graph_kernel"
SC = " sc1"

SLOTCAP = 3136
ROW = 0
EAD = ROW + (SLOTCAP + 64) * 4
HIST = EAD + (SLOTCAP + 64) * 2
QST = HIST + 1024
FLG = QST + 1024
BND = FLG + 1024
BW = BND + 256
XAU = BW + 2048
RS = 272; STG = 32 * RS
XP = 1056; XST = 16 * XP
XT = XAU + STG
X0 = 131072
XS = [X0] + [XT + i * XST for i in range(4)]
EA = XAU + 160 * RS
REORD = XT + 4 * XST
RINGS = [113152, 121856]
PERM = 157696
CNT = 163328; H1 = 163584
NE = 192
EA_E = CNT - 8 * NE * 32
LCAP = (EA_E - EA) // 32
MARK = 148480; MARK2 = MARK
LDSZ = 163840
assert XAU == 24576 and REORD <= RINGS[0] and RINGS[0] + STG <= RINGS[1] and RINGS[1] + STG <= X0 and X0 + XST <= MARK and MARK + 8192 <= PERM and PERM + 2560 <= CNT
assert EA % 32 == 0 and BW % 32 == 0 and EA_E >= REORD
(C_S1, C_S2, C_S3, C_S4, C_S5, C_S6, C_W, C_F, C_E, C_REC, C_OVF, C_D, C_I, C_PE, C_AE, C_R2, C_XI, C_GO, C_IDX, C_P2) = [4 * i for i in range(20)]
C_X = 80; C_TAG = 104; C_RDY = 112; C_MK = 116; CT = REORD; C_BT = 128
WS_FL = 0x1740000
WS_FE = 0x1750000
FSH = oi('fsh', 3)
NJ = 7; NK = 2 * NJ
SPIN = 0x40000

P_X, P_EA, P_SRC, P_DST, P_UW, P_VW, P_GW, P_OUT, P_DBG, P_WS = 4, 6, 8, 10, 12, 14, 16, 18, 20, 22
S_R, S_S, S_W, S_NV = 24, 25, 26, 27
R_TBL, R_OUT = 28, 32
RA, RB, RC, RD, RE = 36, 40, 44, 48, 52
S_X, S_Y, S_Z, S_T, S_BASE, S_SL, S_N0, S_N1, S_Q0, S_NQ, S_NT, S_FO, S_RO, S_FIRST = range(56, 70)
S_G = 3
S_M = [4 + 2 * j for j in range(7)]
TAG = 18
S_FF, S_FR, S_E0, S_E1 = 8, 10, 12, 14
ST0 = 70

CLK = [int(y) for y in OPT.get("clk", "11,12").split(",")]
def stamp(a, j):
    if not STAMPS: return
    if "only" in OPT and str(j) not in OPT["only"].split(","): return
    a(f"s_memrealtime s[{ST0+2*j}:{ST0+2*j+1}]")
    if j in CLK: a(f"s_memtime s[{ST0+28+2*CLK.index(j)}:{ST0+29+2*CLK.index(j)}]")
    a("s_waitcnt lgkmcnt(0)")
def stamp_flush(a):
    a(f"""s_lshl_b32 s56, s2, 4
    s_add_u32 s56, s56, s{S_W}
    s_lshl_b32 s56, s56, 7
    s_add_u32 s56, s56, {L.WS_STAMP:#x}
    s_add_u32 s58, s{P_WS}, s56
    s_addc_u32 s59, s{P_WS+1}, 0
    s_mov_b64 exec, 1
    v_mov_b32 v0, 0""")
    for j in range(16):
        a(f"v_mov_b32 v2, s{ST0+2*j}\nv_mov_b32 v3, s{ST0+2*j+1}\nglobal_store_dwordx2 v0, v[2:3], s[58:59] offset:{8*j}\ns_nop 1")

G = [0, 16]; Dd = [32, 48]; AD = 64; A0 = 80; A1 = 84; B0 = 88; B1 = 92; SEL = 96; A2 = 100
XA = [104, 108]; CC = 112; ACC = 114; EIDX = 115; EADDR = 116; PROW = 117; PEAD = 118; KHC = 119
LANE = 120; TID = 121
T0, T1, T2, T3 = 122, 123, 124, 125
CB, ONE = 126, 127
EX = 36

def slot_of_reg(j):
    g, i, ab = j // 8, (j % 8) // 2, j % 2
    return (2 * g + ab) * 4 + i

SELS = [SEL, A1]; IX1, IX2 = CC, CC + 1
def consts(a):
    a.c("lane = (kh, row), row = 8a+4h+b; tile register j = 4a+b")
    a.c("SELS[m] (sparse A): 1.0 in dword 2h+(b>>1), half b&1, iff a>>1==m and a&1==kh")
    a(f"""v_lshrrev_b32 v{T0}, 5, v{LANE}
    v_bfe_u32 v{T1}, v{LANE}, 3, 1
    v_cmp_eq_u32 vcc, v{T0}, v{T1}
    v_bfe_u32 v{T2}, v{LANE}, 1, 2
    v_bfe_u32 v{T1}, v{LANE}, 4, 1
    v_lshl_add_u32 v{T2}, v{T1}, 2, v{T2}
    v_and_b32 v{T3}, 1, v{LANE}
    v_cndmask_b32 v{T2}, 15, v{T2}, vcc
    v_lshl_add_u32 v{PEAD}, v{T1}, 1, v{T3}
    v_lshlrev_b32 v{T3}, 4, v{T3}
    v_mov_b32 v{EIDX}, 0x3f80
    v_lshlrev_b32 v{T3}, v{T3}, v{EIDX}""")
    for k in range(0, 8, 2):
        a(f"""v_cmp_eq_u32 vcc, {k}, v{T2}
        v_cmp_eq_u32 s[{S_Q0}:{S_Q0+1}], {k+1}, v{T2}
        s_nop 0
        v_cndmask_b32 v{SELS[k//4]+k%4}, 0, v{T3}, vcc
        v_cndmask_b32 v{SELS[k//4]+k%4+1}, 0, v{T3}, s[{S_Q0}:{S_Q0+1}]""")
    a.c("A2 (dense A): quad = 2*(j/8)+(j%2); 1.0 at element 2*quad iff kh==h")
    a(f"""v_bfe_u32 v{T1}, v{LANE}, 2, 1
    v_cmp_eq_u32 vcc, v{T0}, v{T1}
    v_mul_u32_u24 v{IX1}, 0xaaaa, v{T1}
    v_add_u32 v{IX1}, 0x4444, v{IX1}
    v_cndmask_b32 v{T2}, 7, v{PEAD}, vcc""")
    fill = [f"v_bfe_u32 v{T1}, v{LANE}, 3, 1", f"v_lshl_add_u32 v{PEAD}, v{PEAD}, 1, v{T1}",
            f"v_bfe_u32 v{T1}, v{LANE}, 1, 1", f"v_lshl_add_u32 v{PEAD}, v{PEAD}, 1, v{T1}",
            f"v_lshlrev_b32 v{PEAD}, 1, v{PEAD}", f"v_lshlrev_b32 v{KHC}, 4, v{T0}",
            f"v_mov_b32 v{IX2}, 0x8888", f"s_nop 0"]
    for k in range(4):
        a(f"v_cmp_eq_u32 vcc, {k}, v{T2}\n{fill[2*k]}\n{fill[2*k+1]}\nv_cndmask_b32 v{A2+k}, 0, v{EIDX}, vcc")

def ldconsts(a):
    a(f"""v_lshlrev_b32 v{T1}, 4, v{LANE}
    v_add_u32 v{T1}, {CT}, v{T1}
    ds_read_b128 v[{SEL}:{SEL+3}], v{T1}
    ds_read_b128 v[{A2}:{A2+3}], v{T1} offset:1024
    ds_read_b128 v[{EADDR}:{EADDR+3}], v{T1} offset:2048
    ds_read_b128 v[{A1}:{A1+3}], v{T1} offset:3072
    ds_read_b128 v[{CC}:{CC+3}], v{T1} offset:4096""")

_lab = [0]
def spin(a, off, tv, ts, n=8, sl=0, mask=None, first=True):
    _lab[0] += 1; k = _lab[0]
    if not first: a(f"s_branch sp{k}r")
    a(f"sp{k}:")
    if mask is not None: a(f"s_and_b32 s{ts}, s{ts}, {mask:#x}")
    a(f"s_cmp_ge_u32 s{ts}, {n}\ns_cbranch_scc1 sp{k}e")
    if sl: a(f"s_sleep {sl}")
    a(f"""sp{k}r:
    ds_read_b32 v{tv}, v{CB} offset:{off}
    s_waitcnt lgkmcnt(0)
    v_readfirstlane_b32 s{ts}, v{tv}
    s_branch sp{k}
    sp{k}e:""")
def wait(a, off, n, sl=1, mask=None): spin(a, off, T0, S_X, n, sl, mask, first=False)
def sync(a, off, wait=True, n=8, sl=0):
    a(f"""s_mov_b64 exec, 1
    ds_add_rtn_u32 v{T0}, v{CB}, v{ONE} offset:{off}
    s_mov_b64 exec, -1
    s_waitcnt lgkmcnt(0)
    v_readfirstlane_b32 s{S_X}, v{T0}
    s_add_u32 s{S_X}, s{S_X}, 1""")
    if wait: spin(a, off, T0, S_X, n, sl)
def arrive(a, off, inc=None):
    a(f"s_mov_b64 exec, 1\nds_add_u32 v{CB}, v{inc or ONE} offset:{off}\ns_mov_b64 exec, -1")

def common_srds(a):
    a(f"s_mul_i32 s{S_X}, s{S_S}, {L.TBL_SL}")
    srd(a, R_TBL, P_WS, L.WS_TBL, L.TBL_SL, stride=4, w3=0x800000, soff=S_X)
    srd(a, R_OUT, P_OUT, 0, L.N * 512)

def publish_done(a, lab, V, cnt, n, S):
    sync(a, cnt, wait=False)
    a(f"s_cmp_lg_u32 s{S_X}, {n}\ns_cbranch_scc1 {lab}")
    if S:
        a(f"""s_lshl_b32 s{S_X}, s2, {FSH}
        s_add_u32 s{S_X}, s{S_X}, {WS_FE:#x}""")
    else:
        a(f"""v_readfirstlane_b32 s{TAG}, v{V}
        v_readfirstlane_b32 s{TAG+1}, v{V+1}
        s_lshl_b32 s{S_X}, s{S_S}, 6
        s_add_u32 s{S_X}, s{S_X}, s{S_R}
        s_lshl_b32 s{S_X}, s{S_X}, {FSH}
        s_add_u32 s{S_X}, s{S_X}, {WS_FL:#x}""")
    a(f"""s_atomic_swap_x2 s[{TAG}:{TAG+1}], s[{P_WS}:{P_WS+1}], s{S_X}
    s_mov_b32 s{S_X}, 0
    {lab}:""")

def flag_poll(a, lab, AV, FV, TV, sl):
    a(f"""s_mov_b32 s{S_Y}, {SPIN}
    {lab}:
    s_waitcnt vmcnt(0)
    v_cmp_ne_u64 vcc, {TV}, v[{FV}:{FV+1}]
    s_and_b64 exec, exec, vcc
    s_cbranch_scc0 {lab}e
    s_sleep {sl}
    global_load_dwordx2 v[{FV}:{FV+1}], v{AV}, s[{P_WS}:{P_WS+1}] sc1
    s_sub_u32 s{S_Y}, s{S_Y}, 1
    s_cbranch_scc0 {lab}
    {lab}e:
    s_mov_b64 exec, -1""")

def s_role(a):
    DS, SR, RG, ID, RKK, CN, INC, GRN = 2, 4, 6, 8, 10, 12, 13, 14
    LM, GA, CA_, BWA = 16, 17, 18, 19
    EV = 20
    PV = 32
    CW, NON = 36, 38
    ZV = 40
    IOT, MQ, HD, SP = 48, 52, 56, 60
    IDV = 64
    DEL, PA, MA1, PR2, HB = 88, 89, 90, 91, 92
    M1 = 60
    a(f"""v_mov_b32 v{T2}, 0
    v_mov_b32 v{T3}, 0
    v_lshl_add_u32 v{T1}, v{LANE}, 3, v{CB}
    ds_write_b64 v{T1}, v[{T2}:{T3}]
    s_mul_i32 s{S_X}, s2, {L.CH*4}""")
    srd(a, RA, P_DST, 0, L.CH * 4, soff=S_X)
    a(f"""v_lshlrev_b32 v{T0}, 2, v0
    buffer_load_dword v{DS}, v{T0}, s[{RA}:{RA+3}], 0 offen
    buffer_load_dword v{DS+1}, v{T0}, s[{RA}:{RA+3}], 0 offen offset:2048""")
    srd(a, RB, P_SRC, 0, L.CH * 4, soff=S_X)
    a(f"""buffer_load_dword v{SR}, v{T0}, s[{RB}:{RB+3}], 0 offen
    buffer_load_dword v{SR+1}, v{T0}, s[{RB}:{RB+3}], 0 offen offset:2048""")
    EPF = OPT.get("epf", "b")
    def epf():
        a(f"s_mul_i32 s{S_X}, s2, {L.CH*32}")
        srd(a, RC, P_EA, 0, L.CH * 32, soff=S_X)
        if EPF != "n":
            a(f"""v_subrev_u32 v{T1}, {512-160}, v0
            v_lshlrev_b32 v{T1}, 7, v{T1}
            s_and_b32 s{S_X}, s2, {(oi('stag', 1) << 3) if "stag" in OPT else 0}
            s_cselect_b32 s{S_X}, 0x8000, 0
            buffer_load_dword v{EV}, v{T1}, s[{RC}:{RC+3}], s{S_X} offen""")
    if EPF == "b": epf()
    a("s_waitcnt lgkmcnt(0)\ns_barrier")
    if EPF != "b": epf()
    NP = 0 if EPF == "n" else 1
    a(f"s_mul_i32 s{S_X}, s2, {L.CHS*32}")
    srd(a, RD, P_WS, L.WS_EA, L.CH * 32, soff=S_X)
    a(f"s_mul_i32 s{S_X}, s2, {L.CHS*4}")
    srd(a, RE, P_WS, L.WS_ID, L.CHS * 4, soff=S_X)
    a(f"""v_cmp_gt_u32 vcc, {L.CH-512}, v0
    s_mov_b64 s[{M1}:{M1+1}], vcc
    v_lshlrev_b32 v{GA}, 4, v0
    v_add_u32 v{LM}, {MARK}, v{GA}
    v_lshlrev_b32 v{PR2}, 1, v0
    v_and_b32 v{PR2}, -4, v{PR2}
    v_add_u32 v{PR2}, {PERM}, v{PR2}
    v_and_b32 v{HB}, 16, v{GA}
    v_lshlrev_b32 v{ID}, 22, v0
    v_add_u32 v{ID+1}, 0x80000000, v{ID}
    v_mov_b32 v{ZV+4}, 0
    v_lshl_add_u32 v{T1}, v{LANE}, 2, v{CB}
    s_movk_i32 s{S_Y}, {-L.RN}
    s_mov_b32 s{S_Z}, {H1}
    s_waitcnt vmcnt({2+NP})""")
    stamp(a, 1)
    for k in range(2): a(f"v_mul_u32_u24 v{RG+k}, 13358, v{DS+k}")
    for k in range(2): a(f"v_lshrrev_b32 v{RG+k}, 21, v{RG+k}")
    for k in range(2): a(f"v_mad_i32_i24 v{DS+k}, v{RG+k}, s{S_Y}, v{DS+k}")
    for k in range(2): a(f"v_lshl_add_u32 v{RG+k}, v{RG+k}, 2, s{S_Z}")
    a(f"""ds_add_rtn_u32 v{RKK}, v{RG}, v{ONE}
    s_mov_b64 exec, s[{M1}:{M1+1}]
    ds_add_rtn_u32 v{RKK+1}, v{RG+1}, v{ONE}""")
    sync(a, C_S1)
    a(f"ds_read_b32 v{CN}, v{T1} offset:{H1-CNT}")
    srd(a, RA, P_GW, 0, 528 * 512)
    a(f"""v_or_b32 v{ID}, v{ID}, v{DS}
    v_or_b32 v{ID+1}, v{ID+1}, v{DS+1}
    s_waitcnt lgkmcnt(0)
    v_mov_b32 v{INC}, v{CN}""")
    scan(a, "v_add_u32", [INC])
    a(f"""v_sub_u32 v{INC}, v{INC}, v{CN}
    ds_bpermute_b32 v{T2}, v{RG}, v{INC}
    ds_bpermute_b32 v{T3}, v{RG+1}, v{INC}
    v_lshl_or_b32 v{GRN}, v{CN}, 10, v{INC}
    s_mov_b32 s{S_Y}, {PERM}
    s_waitcnt vmcnt({NP})
    v_lshl_or_b32 v{ID}, v{SR}, 8, v{ID}
    v_lshl_or_b32 v{ID+1}, v{SR+1}, 8, v{ID+1}
    s_waitcnt lgkmcnt(0)
    v_add_u32 v{RG}, v{T2}, v{RKK}
    v_add_u32 v{RG+1}, v{T3}, v{RKK+1}
    v_lshl_add_u32 v{DS}, v{RG}, 2, s{S_Y}
    v_lshl_add_u32 v{DS+1}, v{RG+1}, 2, s{S_Y}
    ds_write_b32 v{DS}, v{ID}
    s_mov_b64 exec, s[{M1}:{M1+1}]
    ds_write_b32 v{DS+1}, v{ID+1}""")
    sync(a, C_S2)
    a(f"ds_read_b128 v[{IDV}:{IDV+3}], v{LM} offset:{PERM-MARK}")
    for k in range(3): a(f"ds_read_b32 v{PV+k}, v{PR2} offset:{1024*k}")
    a(f"s_lshl_b32 s{S_X}, s2, 9")
    srd(a, RB, P_WS, L.WS_OFF, 512, soff=S_X)
    GR, LEN, PRE, INC2, MKB = 2, 4, 5, 12, 8
    consts(a)
    a(f"v_lshlrev_b32 v{T0}, 2, v{LANE}\nv_sub_u32 v{T0}, s{S_NV}, v{T0}")
    fill = [f"v_mul_u32_u24 v{IOT}, 0x80008, v{LANE}", f"v_add_u32 v{IOT}, 0x10000, v{IOT}", f"v_add_u32 v{IOT+1}, 0x20002, v{IOT}",
            f"v_add_u32 v{IOT+2}, 0x40004, v{IOT}", f"v_add_u32 v{IOT+3}, 0x60006, v{IOT}", f"v_mul_u32_u24 v{DEL}, {L.CHS}, v{LANE}",
            f"v_lshlrev_b32 v{PA}, 9, v{LANE}", f"v_mov_b32 v{GR}, 0"]
    for k in range(4): a(f"v_cmp_lt_i32 vcc, {k}, v{T0}\n{fill[2*k]}\n{fill[2*k+1]}\nv_cndmask_b32 v{MQ+k}, 0, 4, vcc")
    a(f"""s_lshr_b32 s{S_X}, s2, 3
    s_add_u32 s{S_X}, s{S_X}, {L.N}
    s_lshl_b32 s{S_X}, s{S_X}, 8""")
    for k in range(4): a(f"v_mov_b32 v{ZV+k}, s{S_X}\nv_mov_b32 v{ZV+4+k}, 0\nv_mov_b32 v{SP+k}, {(BW//32) * 0x10001:#x}")
    a(f"""ds_write_b128 v{LM}, v[{ZV+4}:{ZV+7}]
    s_lshl_b32 s{S_N0}, s{S_W}, 10
    s_add_u32 s{S_N0}, s{S_N0}, {MARK}
    v_lshl_add_u32 v{MA1}, v{LANE}, 1, s{S_N0}
    s_lshl_b32 s{S_Z}, s{S_W}, 14
    s_lshl_b32 s{S_Y}, s{S_R}, 3
    s_add_u32 s{S_Z}, s{S_Z}, s{S_Y}
    s_add_u32 s{S_Z}, s{S_Z}, {L.WS_OFF:#x}
    v_add_u32 v{PA}, s{S_Z}, v{PA}""")
    if "shold" in OPT: wait(a, C_I, 8)
    a(f"""s_waitcnt lgkmcnt(1)
    buffer_store_dwordx4 v[{IDV}:{IDV+3}], v{GA}, s[{RE}:{RE+3}], 0 offen{SC}
    global_load_dwordx2 v[{NON}:{NON+1}], v{ZV+4}, s[{P_DBG}:{P_DBG+1}] offset:32 sc1
    s_waitcnt lgkmcnt(0)""")
    EGX = "egx" in OPT
    for k in range(3):
        a(f"""v_lshrrev_b32 v{PV+k}, 22, v{PV+k}
        v_lshl_or_b32 v{PV+k}, v{PV+k}, 5, v{HB}""")
    def eag():
        for k in range(3): a(f"buffer_load_dwordx4 v[{EV+4*k}:{EV+4*k+3}], v{PV+k}, s[{RC}:{RC+3}], 0 offen")
    if not EGX: eag()
    stamp(a, 2)
    GR, LEN, PRE, INC2, MKB = 2, 4, 5, 12, 8
    a(f"""v_lshlrev_b32 v{T2}, 3, v{LANE}
    s_mov_b32 s{S_Y}, {SPIN}
    s_waitcnt vmcnt({0 if EGX else 3})
    s_nonce:
    v_readfirstlane_b32 s{S_NT+1}, v{NON+1}
    v_readfirstlane_b32 s{S_NT}, v{NON}
    s_sub_u32 s{S_Y}, s{S_Y}, 1
    s_cbranch_scc1 s_nonceok
    s_cmp_lg_u32 s{S_NT+1}, 0
    s_cbranch_scc1 s_nonceok
    global_load_dwordx2 v[{NON}:{NON+1}], v{ZV+4}, s[{P_DBG}:{P_DBG+1}] offset:32 sc1
    s_waitcnt vmcnt(0)
    s_branch s_nonce
    s_nonceok:
    s_and_b32 s{S_N1}, s{S_NT+1}, 0xfff
    v_lshl_or_b32 v{GRN}, s{S_N1}, 20, v{GRN}
    v_mov_b32 v{GRN+1}, s{S_NT}
    s_mov_b64 exec, 1
    ds_write_b64 v{CB}, v[{NON}:{NON+1}] offset:{C_TAG}""")
    sync(a, C_S3, wait=False)
    def east():
        a(f"s_movk_i32 s{S_Y}, 8192\ns_movk_i32 s{S_Z}, 16384")
        for k, so in enumerate(("0", f"s{S_Y}", f"s{S_Z}")):
            a(f"buffer_store_dwordx4 v[{EV+4*k}:{EV+4*k+3}], v{GA}, s[{RD}:{RD+3}], {so} offen{SC}")
    a(f"""s_cmp_lg_u32 s{S_X}, 8
    s_cbranch_scc1 s_nopub
    buffer_store_dwordx2 v[{GRN}:{GRN+1}], v{T2}, s[{RB}:{RB+3}], 0 offen{SC}""")
    if EGX:
        a("s_nopub:")
        wait(a, C_XI, 4)
        eag()
    else:
        a("s_waitcnt vmcnt(1)\ns_branch s_pub\ns_nopub:\ns_waitcnt vmcnt(0)\ns_pub:")
        if "esx" in OPT: wait(a, C_XI, 4)
        east()
    stamp(a, 3)
    a(f"""v_lshrrev_b32 v{T0}, 5, v{LANE}
    v_and_b32 v{T2}, 31, v{LANE}
    v_lshlrev_b32 v{T2}, 1, v{T2}
    v_lshl_add_u32 v{CA_}, v{T0}, 11, v{T2}
    s_and_b32 s{S_X}, s{S_W}, 3
    s_lshr_b32 s{S_Y}, s{S_W}, 2
    s_lshl_b32 s{S_T}, s{S_Y}, 12
    s_and_b32 s{S_Z}, s{S_W}, 2
    s_lshl_b32 s{S_Z}, s{S_Z}, 9
    s_add_u32 s{S_T}, s{S_T}, s{S_Z}
    s_and_b32 s{S_Z}, s{S_W}, 1
    s_lshl_b32 s{S_Z}, s{S_Z}, 6
    s_add_u32 s{S_T}, s{S_T}, s{S_Z}
    s_lshl_b32 s{S_Z}, s{S_S}, 7
    s_add_u32 s{S_T}, s{S_T}, s{S_Z}
    s_add_u32 s{S_T}, s{S_T}, {512*512}
    buffer_load_ushort v{CW}, v{CA_}, s[{RA}:{RA+3}], s{S_T} offen
    buffer_load_ushort v{CW+1}, v{CA_}, s[{RA}:{RA+3}], s{S_T} offen offset:512
    s_lshl_b32 s{S_X}, s{S_X}, 2
    s_lshl_b32 s{S_Y}, s{S_Y}, 10
    s_add_u32 s{S_X}, s{S_X}, s{S_Y}
    v_lshl_add_u32 v{BWA}, v{LANE}, 4, s{S_X}""")
    common_srds(a)
    a(f"s_mov_b64 s[{TAG}:{TAG+1}], s[{S_NT}:{S_NT+1}]")
    a(f"s_mul_i32 s{S_X}, s{S_W}, {32*L.CHS*4}")
    srd(a, RE, P_WS, L.WS_ID, 32 * L.CHS, stride=4, soff=S_X)
    wait(a, C_F, 8)
    a.c("LDS init of the list area")
    a(f"""ds_write_b128 v{GA}, v[{ZV}:{ZV+3}] offset:{ROW}
    v_cmp_gt_u32 vcc, {(HIST-EAD)//16}, v0
    s_mov_b64 exec, vcc
    ds_write_b128 v{GA}, v[{SP}:{SP+3}] offset:{EAD}
    v_cmp_gt_u32 vcc, {(EAD-ROW)//16-512}, v0
    s_mov_b64 exec, vcc
    ds_write_b128 v{GA}, v[{ZV}:{ZV+3}] offset:{ROW+8192}
    v_cmp_gt_u32 vcc, {(BW-HIST)//16}, v0
    s_mov_b64 exec, vcc
    ds_write_b128 v{GA}, v[{ZV+4}:{ZV+7}] offset:{HIST}
    s_mov_b64 exec, -1
    s_cmp_lg_u32 s{S_W}, 7
    s_cbranch_scc1 s_noct
    v_add_u32 v{T1}, {CT - 7*1024}, v{GA}
    ds_write_b128 v{T1}, v[{SEL}:{SEL+3}]
    ds_write_b128 v{T1}, v[{A2}:{A2+3}] offset:1024
    ds_write_b128 v{T1}, v[{EADDR}:{EADDR+3}] offset:2048
    ds_write_b128 v{T1}, v[{A1}:{A1+3}] offset:3072
    ds_write_b128 v{T1}, v[{CC}:{CC+3}] offset:4096
    s_noct:""")
    arrive(a, C_S4)
    if "pearly" in OPT:
        if oi("pearly", 0): a(f"s_sleep {oi('pearly', 0)}")
        a(f"""s_mov_b32 exec_hi, 0
        global_load_dwordx2 v[{GR}:{GR+1}], v{PA}, s[{P_WS}:{P_WS+1}] sc1
        s_mov_b64 exec, -1
        s_waitcnt vmcnt(1)""")
        publish_done(a, "s_pd", GRN, C_S6, 8, True)
    elif not EGX:
        a("s_waitcnt vmcnt(0)")
        publish_done(a, "s_pd", GRN, C_S6, 8, True)
    else: a("s_waitcnt vmcnt(0)")
    if oi("pdel", 0): a(f"s_sleep {oi('pdel', 0)}")
    if "pgate" in OPT: wait(a, C_X + 4 * oi("pgate", 0), 0x400, mask=0xf00, sl=2)
    stamp(a, 4)
    if "sprio" in OPT: a(f"s_setprio {OPT['sprio']}")
    a(f"s_mov_b32 exec_hi, 0")
    if "pearly" not in OPT: a(f"global_load_dwordx2 v[{GR}:{GR+1}], v{PA}, s[{P_WS}:{P_WS+1}] sc1")
    if EGX:
        a("s_mov_b64 exec, -1")
        east()
        a("s_mov_b32 exec_hi, 0")
    a(f"""s_mov_b32 s{S_Y}, {SPIN}
    s_waitcnt vmcnt({3 if EGX else 0})
    s_poll:
    v_lshrrev_b32 v{T0}, 20, v{GR}
    v_cmp_ne_u32 vcc, s{TAG}, v{GR+1}
    v_cmp_ne_u32 s[{S_M[0]}:{S_M[0]+1}], s{S_N1}, v{T0}
    s_or_b64 vcc, vcc, s[{S_M[0]}:{S_M[0]+1}]
    s_cbranch_scc0 s_pollok
    s_mov_b64 exec, vcc
    s_sleep {oi("psl", 2)}
    global_load_dwordx2 v[{GR}:{GR+1}], v{PA}, s[{P_WS}:{P_WS+1}] sc1
    s_sub_u32 s{S_Y}, s{S_Y}, 1
    s_waitcnt vmcnt(0)
    s_cbranch_scc0 s_poll
    v_mov_b32 v{GR}, 0
    s_pollok:
    s_mov_b64 exec, -1""")
    stamp(a, 5)
    IDX, IDW, HA, RK, QV = 64, 28, 64, 72, 20
    a(f"""v_lshlrev_b32 v{CW}, 16, v{CW}
    v_lshlrev_b32 v{CW+1}, 16, v{CW+1}
    v_mul_f32 v{CW}, 0xbfb8aa3b, v{CW}
    v_mul_f32 v{CW+1}, 0xbfb8aa3b, v{CW+1}
    v_bfe_u32 v{LEN}, v{GR}, 10, 10
    v_and_b32 v{GR}, 0x3ff, v{GR}
    v_mov_b32 v{INC2}, v{LEN}
    v_add_u32 v{DEL}, v{DEL}, v{GR}
    v_cvt_pk_bf16_f32 v{CW}, v{CW}, v{CW+1}""")
    for m in ("row_shr:1", "row_shr:2", "row_shr:4", "row_shr:8"):
        a(f"v_add_u32_dpp v{INC2}, v{INC2}, v{INC2} {m} row_mask:0xf bank_mask:0xf bound_ctrl:0\ns_nop 1")
    a(f"""v_add_u32_dpp v{INC2}, v{INC2}, v{INC2} row_bcast:15 row_mask:0xa bank_mask:0xf
    v_cmp_lt_u32 vcc, 0, v{LEN}
    v_sub_u32 v{PRE}, v{INC2}, v{LEN}
    v_readlane_b32 s{S_T}, v{INC2}, 31
    v_sub_u32 v{DEL}, v{DEL}, v{PRE}
    v_lshl_add_u32 v{T0}, v{PRE}, 1, s{S_N0}
    v_subrev_u32 v{INC2}, {NE - 31}, v{INC2}
    s_cmp_gt_u32 s{S_T}, {64*NJ}
    s_cselect_b64 exec, 0, vcc
    ds_write_b16 v{T0}, v{DEL}
    s_mov_b64 exec, -1
    ds_read_b128 v[{MKB}:{MKB+3}], v{LM}
    v_max_i32 v{INC2}, 0, v{INC2}
    v_and_b32 v{INC2}, 0xffffffe0, v{INC2}
    s_mov_b32 exec_lo, 0x80000000
    s_mov_b32 exec_hi, 0
    ds_add_rtn_u32 v{T0}, v{CB}, v{INC2} offset:{C_REC}
    s_mov_b64 exec, -1
    s_waitcnt lgkmcnt(1)""")
    for k in range(4): a(f"v_pk_max_u16 v{MKB+k}, v{MKB+k}, v{MKB+k} op_sel:[0,0] op_sel_hi:[1,0]")
    for k in range(1, 4): a(f"v_pk_max_u16 v{MKB+k}, v{MKB+k}, v{MKB+k-1} op_sel:[0,1] op_sel_hi:[1,1]")
    a(f"v_lshrrev_b32 v{INC2}, 16, v{MKB+3}")
    scan(a, "v_max_u32", [INC2])
    a(f"""v_mov_b32 v{PRE}, 0
    s_waitcnt lgkmcnt(0)
    v_mov_b32_dpp v{PRE}, v{INC2} wave_shr:1 row_mask:0xf bank_mask:0xf
    v_readlane_b32 s{S_BASE}, v{T0}, 31""")
    for k in range(4): a(f"v_pk_max_u16 v{MKB+k}, v{MKB+k}, v{PRE} op_sel:[0,0] op_sel_hi:[1,0]")
    for k in range(4): a(f"v_pk_add_u16 v{HD+k}, v{MKB+k}, v{IOT+k}")
    a(f"ds_write_b128 v{LM}, v[{HD}:{HD+3}]")
    for j in range(NJ): a(f"ds_read_u16 v{IDX+j}, v{MA1} offset:{128*j}")
    a(f"ds_read_b32 v{T1}, v{CB} offset:{C_S4}\nds_write_b128 v{LM}, v[{MKB}:{MKB+3}]")
    a.c("capacity guard")
    a(f"""s_add_u32 s{S_X}, s{S_BASE}, s{S_T}
    s_cmp_gt_u32 s{S_X}, {LCAP + NE - 32}
    s_cselect_b32 s{S_T}, {64*NJ+1}, s{S_T}
    s_cmp_gt_u32 s{S_T}, {64*NJ}
    s_cbranch_scc0 s_fits
    s_mov_b32 s{S_T}, 0
    ds_write_b32 v{CB}, v{ONE} offset:{C_OVF}
    s_fits:""")
    for j in range(NJ):
        a(f"s_sub_i32 s{S_X}, s{S_T}, {64*j}\nv_cmp_gt_i32 s[{S_M[j]}:{S_M[j]+1}], s{S_X}, v{LANE}")
    a("s_waitcnt lgkmcnt(0)")
    for j in range(NJ):
        a(f"s_mov_b64 exec, s[{S_M[j]}:{S_M[j]+1}]")
        if j >= 5: a("s_cbranch_execz s_idsdone")
        a(f"buffer_load_dword v{IDW+j}, v{IDX+j}, s[{RE}:{RE+3}], 0 idxen{SC}")
    a(f"s_idsdone:\ns_mov_b64 exec, -1\nv_readfirstlane_b32 s{S_X}, v{T1}")
    stamp(a, 6)
    a(f"""v_mov_b32 v{T2}, s{S_BASE}
    v_mov_b32 v{T3}, s{S_T}
    v_lshl_add_u32 v{GR}, s{S_W}, 3, v{CB}
    s_mov_b64 exec, 1
    ds_write_b64 v{GR}, v[{T2}:{T3}] offset:{C_BT}
    ds_add_u32 v{CB}, v{ONE} offset:{C_IDX}
    s_mov_b64 exec, -1""")
    if "sprio2" in OPT: a(f"s_setprio {OPT['sprio2']}")
    a(f"ds_write_b32 v{BWA}, v{CW} offset:{BW}")
    spin(a, C_S4, T0, S_X)
    a(f"""v_lshlrev_b32 v{T1}, 4, v{LANE}
    s_mul_i32 s{S_G}, s{S_W}, {NE}
    s_add_u32 s{S_G}, s{S_G}, {EA_E//32}
    s_waitcnt vmcnt(0)""")
    if EGX: publish_done(a, "s_pd", GRN, C_S6, 8, True)
    stamp(a, 7)
    sh = lambda j: a(f"v_lshlrev_b32_sdwa v{HA+j}, 2, v{IDW+j} dst_sel:DWORD dst_unused:UNUSED_PAD src0_sel:DWORD src1_sel:BYTE_0")
    for j in range(5): sh(j)
    for j in range(NJ):
        a(f"s_mov_b64 exec, s[{S_M[j]}:{S_M[j]+1}]")
        if j >= 5:
            a("s_cbranch_execz s_histdone"); sh(j)
        a(f"ds_add_rtn_u32 v{RK+j}, v{HA+j}, v{ONE} offset:{HIST}")
        a(f"v_and_b32 v{IDW+j}, 0x3fff00, v{IDW+j}")
    a("s_histdone:")
    sync(a, C_S5)
    a(f"""ds_read_b128 v[{HD}:{HD+3}], v{T1} offset:{HIST}
    s_add_u32 s{S_X}, s{S_BASE}, {EA//32 - NE}
    v_add_u32 v{LEN}, s{S_X}, v{LANE}
    v_add_u32 v{PRE}, s{S_G}, v{LANE}
    v_lshlrev_b32 v{T2}, 2, v0
    s_waitcnt lgkmcnt(0)""")
    for k in range(4): a(f"v_add_u32 v{HD+k}, 3, v{HD+k}")
    for k in range(4): a(f"v_and_b32 v{HD+k}, -4, v{HD+k}")
    for k in range(4): a(f"v_max_u32 v{HD+k}, v{HD+k}, v{MQ+k}")
    a(f"""v_add_u32 v{HD+1}, v{HD}, v{HD+1}
    v_add_u32 v{HD+2}, v{HD+1}, v{HD+2}
    v_add_u32 v{HD+3}, v{HD+2}, v{HD+3}
    v_mov_b32 v{INC2}, v{HD+3}""")
    scan(a, "v_add_u32", [INC2])
    a(f"""v_sub_u32 v{SP}, v{INC2}, v{HD+3}
    v_readlane_b32 s{S_SL}, v{INC2}, 63
    v_add_u32 v{SP+1}, v{SP}, v{HD}
    v_add_u32 v{SP+2}, v{SP}, v{HD+1}
    v_add_u32 v{SP+3}, v{SP}, v{HD+2}
    ds_write_b128 v{T1}, v[{SP}:{SP+3}] offset:{QST}""")
    BV = 8
    a(f"ds_read_b32 v{BV}, v{T2} offset:{QST}\nds_read_b32 v{BV+3}, v{T2} offset:{QST+4}")
    for j in range(NJ):
        if j >= 5: a(f"s_mov_b64 exec, s[{S_M[j]}:{S_M[j]+1}]\ns_cbranch_execz s_qdone")
        a(f"ds_read_b32 v{QV+j}, v{HA+j} offset:{QST}")
    stamp(a, 8)
    a(f"""s_qdone:
    s_cmp_gt_u32 s{S_SL}, {oi("slotcap", SLOTCAP)}
    s_cbranch_scc1 s_ovf
    s_waitcnt lgkmcnt(0)""")
    for j in range(NJ):
        a(f"s_mov_b64 exec, s[{S_M[j]}:{S_M[j]+1}]")
        if j >= 4: a("s_cbranch_execz s_scatdone")
        a(f"""v_add_lshl_u32 v{HA+j}, v{QV+j}, v{RK+j}, 2
        v_add_lshl_u32 v{QV+j}, v{QV+j}, v{RK+j}, 1
        v_add_u32 v{RK+j}, {64*j}, v{PRE if 64*j < NE else LEN}
        ds_write_b32 v{HA+j}, v{IDW+j} offset:{ROW}
        ds_write_b16 v{QV+j}, v{RK+j} offset:{EAD}""")
    a.c("node threads: end-of-node flags and the 16 wave boundaries")
    a(f"""s_scatdone:
    s_mov_b64 exec, -1
    s_cmp_ge_u32 s{S_W}, 3
    s_cbranch_scc1 s_fin
    v_cvt_f32_u32 v{T0}, s{S_SL}
    v_cmp_gt_u32 vcc, s{S_NV}, v0
    v_rcp_f32 v{T0}, v{T0}
    s_mov_b64 exec, vcc
    v_cvt_f32_u32 v{BV}, v{BV}
    v_cvt_f32_u32 v{BV+1}, v{BV+3}
    v_mul_f32 v{T0}, 0x41800000, v{T0}
    v_lshrrev_b32 v{T3}, 2, v{BV+3}
    v_cmp_eq_u32 vcc, s{S_SL}, v{BV+3}
    v_mul_f32 v{BV}, v{BV}, v{T0}
    v_mul_f32 v{BV+1}, v{BV+1}, v{T0}
    ds_write_b8 v{T3}, v{ONE} offset:{FLG-1}
    v_cvt_u32_f32 v{BV}, v{BV}
    v_cvt_u32_f32 v{BV+1}, v{BV+1}
    v_min_u32 v{BV}, 15, v{BV}
    v_min_u32 v{BV+1}, 15, v{BV+1}
    v_add_u32 v{BV+2}, 1, v0
    v_cndmask_b32 v{BV+1}, v{BV+1}, 16, vcc
    s_bnd:
    v_cmp_lt_u32 vcc, v{BV}, v{BV+1}
    s_and_b64 exec, exec, vcc
    s_cbranch_scc0 s_fin
    v_add_u32 v{BV}, 1, v{BV}
    v_lshlrev_b32 v{T3}, 3, v{BV}
    ds_write_b64 v{T3}, v[{BV+2}:{BV+3}] offset:{BND}
    s_branch s_bnd
    s_ovf:
    s_mov_b64 exec, 1
    ds_write_b32 v{CB}, v{ONE} offset:{C_OVF}
    s_fin:""")
    arrive(a, C_GO)
    stamp(a, 9)
    a.c("wave 0 polls the 64 table flags of its slice")
    a(f"""s_cmp_lg_u32 s{S_W}, 0
    s_cbranch_scc1 k_join
    s_lshl_b32 s{S_Y}, s{S_S}, {6+FSH}
    s_add_u32 s{S_Y}, s{S_Y}, {WS_FL:#x}
    v_lshl_add_u32 v2, v{LANE}, {FSH}, s{S_Y}
    v_mov_b32 v3, 0x100""")
    wait(a, C_D, 4)
    if oi("fdel", 8): a(f"s_sleep {oi('fdel', 8)}")
    a(f"global_load_dwordx2 v[4:5], v2, s[{P_WS}:{P_WS+1}] sc1")
    flag_poll(a, "s_fp", 2, 4, f"s[{TAG}:{TAG+1}]", oi("fsl", 4))
    arrive(a, C_GO, 3)
    a("s_branch k_join")

def g_role(a):
    R_X, R_GW, R_VW, R_UW, R_O = RA, RB, RC, RD, RE
    BF, ACC_, AR, CO = 0, 64, 96, 112
    XR, OA, CA, SA, CV, XA_ = T1, TID, [T2, T3], LANE, T0, T3
    WA0, WA1, BA, U0, U1, U2 = 96, 97, 98, 99, 100, 101
    SP0, SP1, SXL, SXB, SG8 = S_T, S_BASE, S_N0, S_N1, S_SL
    a("g_role:")
    nrow = 8 if OPT.get("map", "4") == "4" else 16
    a.c("touch a distinct part of this slice's weights (fills this die's L2): wave 8 gate rows, wave 9 v/u rows")
    a(f"""s_cmp_ge_u32 s{S_W}, 10
    s_cbranch_scc1 g_nowpf
    s_lshr_b32 s{S_Y}, s2, {3 if nrow == 8 else 4}
    s_mul_i32 s{S_Y}, s{S_Y}, {nrow*512}
    s_lshl_b32 s{S_X}, s{S_S}, 7
    s_add_u32 s{S_Y}, s{S_Y}, s{S_X}
    v_lshl_add_u32 v{U1}, v{LANE}, 9, s{S_Y}
    s_mov_b64 exec, {(1 << nrow) - 1:#x}
    s_cmp_eq_u32 s{S_W}, 8
    s_cbranch_scc0 g_wpf2
    global_load_dword v5, v{U1}, s[{P_GW}:{P_GW+1}]
    v_add_u32 v{U2}, {256*512}, v{U1}
    global_load_dword v6, v{U2}, s[{P_GW}:{P_GW+1}]
    s_branch g_wpf3
    g_wpf2:
    global_load_dword v5, v{U1}, s[{P_VW}:{P_VW+1}]
    global_load_dword v6, v{U1}, s[{P_UW}:{P_UW+1}]
    g_wpf3:
    s_mov_b64 exec, -1
    g_nowpf:""")
    a(f"s_and_b32 s{S_G}, s{S_W}, 3\ns_and_b32 s{SG8}, s{S_W}, 7")
    srd(a, R_GW, P_GW, 0, 528 * 512)
    srd(a, R_VW, P_VW, 0, 256 * 512)
    a(f"""v_lshrrev_b32 v{U0}, 3, v{LANE}
    v_and_b32 v{U1}, 2, v{U0}
    v_and_b32 v{U2}, 7, v{LANE}
    v_xor_b32 v{U1}, v{U1}, v{U2}
    v_lshlrev_b32 v{U1}, 4, v{U1}
    v_lshl_add_u32 v{WA0}, v{U0}, 9, v{U1}
    v_xor_b32 v{WA1}, 64, v{WA0}""")
    srd(a, R_UW, P_UW, 0, 256 * 512)
    srd(a, R_X, P_X, 0, L.N * 512)
    if "xp" in OPT:
        if "stag" in OPT: a(f"s_and_b32 s{S_X}, s2, {oi('stag', 1) << 3}\ns_cbranch_scc1 g_noxp")
        a(f"""s_cmp_ge_u32 s{SG8}, {oi("xp", 2)}
        s_cbranch_scc1 g_noxp
        v_lshlrev_b32 v{U1}, 7, v{LANE}
        s_mul_i32 s{S_X}, s{S_R}, {L.RN*512}
        s_lshl_b32 s{S_Y}, s{SG8}, 13
        s_add_u32 s{S_X}, s{S_X}, s{S_Y}
        buffer_load_dword v7, v{U1}, s[{R_X}:{R_X+3}], s{S_X} offen
        g_noxp:""")
    if "xq" in OPT:
        n = oi("xq", 4)
        per = 640 // n // 4
        a(f"""s_cmp_lt_u32 s{S_W}, 12
        s_cbranch_scc1 g_noxq
        v_mul_u32_u24 v{U1}, {128*n}, v{LANE}
        s_mul_i32 s{S_X}, s{S_R}, {L.RN*512}
        s_mul_i32 s{S_Y}, s{S_G}, {20480}
        s_add_u32 s{S_X}, s{S_X}, s{S_Y}
        s_and_b32 s{S_Y}, s{S_S}, {n-1}
        s_lshl_b32 s{S_Y}, s{S_Y}, 7
        s_add_u32 s{S_X}, s{S_X}, s{S_Y}""")
        for k in range(0, per, 64):
            m = min(64, per - k)
            if m < 64: a(f"s_mov_b32 exec_lo, {min(0xffffffff, (1 << min(m, 32)) - 1):#x}\ns_mov_b32 exec_hi, {((1 << max(m-32, 0)) - 1):#x}")
            a(f"buffer_load_dword v5, v{U1}, s[{R_X}:{R_X+3}], s{S_X} offen\ns_add_u32 s{S_X}, s{S_X}, {64*128*n}")
        a("s_mov_b64 exec, -1\ng_noxq:")
    a.c("launch nonce: workgroup 0 publishes the clock")
    a(f"""s_sub_u32 s{S_X}, s{S_W}, 15
    s_or_b32 s{S_X}, s2, s{S_X}
    s_cbranch_scc1 g_nononce
    s_memrealtime s[{S_Z}:{S_Z+1}]
    v_mov_b32 v4, 0
    s_waitcnt lgkmcnt(0)
    s_bitset1_b32 s{S_Z+1}, 31
    v_mov_b32 v2, s{S_Z}
    v_mov_b32 v3, s{S_Z+1}
    s_mov_b64 exec, 1
    global_store_dwordx2 v4, v[2:3], s[{P_DBG}:{P_DBG+1}] offset:32 sc1
    s_mov_b64 exec, -1
    g_nononce:
    v_lshrrev_b32 v{U0}, 5, v{LANE}
    v_xor_b32 v{U1}, v{U0}, v{LANE}
    v_lshlrev_b32 v{XA_}, 4, v{U1}
    s_lshr_b32 s{S_NT}, s2, 3
    s_and_b32 s{S_NT}, s{S_NT}, {oi("rot", 31)}
    s_xor_b32 s{S_NT}, s{S_NT}, s{SG8}
    s_lshl_b32 s{S_X}, s{S_NT}, 12
    s_lshl_b32 s{S_NT}, s{S_NT}, 10
    s_lshl_b32 s{S_Y}, s{S_S}, 7
    s_add_u32 s{S_X}, s{S_X}, s{S_Y}
    s_lshl_b32 s{S_Z}, s{SG8}, 10
    s_mul_i32 s{SXB}, s{S_R}, {L.RN*512}
    s_add_u32 s{S_Q0}, s{SXB}, s{S_Z}
    s_mul_i32 s{SXL}, s{SG8}, {XP}
    s_barrier""")
    def x0():
        for j in range(2):
            a(f"""s_add_u32 m0, s{SXL}, {X0 + j*8*XP}
            s_add_u32 s{S_Y}, s{S_Q0}, {j*8192}
            buffer_load_dwordx4 v{XA_}, s[{R_X}:{R_X+3}], s{S_Y} offen lds""")
    if "x0f" in OPT: x0()
    for m, (sr, row0) in enumerate(((R_GW, 256), (R_VW, 0), (R_GW, 0), (R_UW, 0))):
        for j in range(4):
            a(f"""s_xor_b32 m0, s{S_NT}, {m*32768 + j*8192}
            s_xor_b32 s{S_Y}, s{S_X}, {j*32768 + row0*512}
            buffer_load_dwordx4 v{WA0 + m % 2}, s[{sr}:{sr+3}], s{S_Y} offen lds""")
            if oi("ww", 0): a(f"s_waitcnt vmcnt({oi('ww', 0)-1})")
    if "x0a" in OPT:
        a(f"s_cmp_lt_u32 s{S_W}, 12\ns_cbranch_scc1 g_nox0")
        x0()
        a(f"s_sub_u32 s{SXL}, s{SXL}, {4*XP}\ns_sub_u32 s{S_Q0}, s{S_Q0}, 4096")
        x0()
        a("g_nox0:")
    elif "x0f" not in OPT: x0()
    arrive(a, C_I)
    if "touch" in OPT:
        a(f"""s_cmp_lg_u32 s{S_W}, 14
        s_cbranch_scc1 g_notouch
        s_load_dword s{S_NT}, s[{P_OUT}:{P_OUT+1}], s{SXB}
        s_mul_i32 s{S_X}, s{S_S}, {L.TBL_SL}""")
        for k in range(2): a(f"s_load_dword s{S_NT}, s[{P_WS}:{P_WS+1}], s{S_X}\ns_add_u32 s{S_X}, s{S_X}, {L.TBL_SL//2 - 64}")
        a(f"s_load_dword s{S_NT}, s[{P_WS}:{P_WS+1}], s{S_X}")
        for off in (L.WS_EA + 0x1ff000, L.WS_EA + 0x3ff000, L.WS_EA + 0x5ff000, L.WS_ID + 0xff000):
            a(f"s_mov_b32 s{S_X}, {off:#x}\ns_load_dword s{S_NT}, s[{P_WS}:{P_WS+1}], s{S_X}")
        a("g_notouch:")
    a.c("weight-fragment address: lane = (kh, m, r, c)")
    a(f"""v_bfe_u32 v{U1}, v{LANE}, 2, 2
    v_lshl_add_u32 v{U1}, v{U0}, 3, v{U1}
    v_lshlrev_b32 v{BA}, 7, v{U1}
    v_bfe_u32 v{U1}, v{LANE}, 3, 2
    v_xor_b32 v{U1}, s{S_G}, v{U1}
    v_lshl_add_u32 v{BA}, v{U1}, 5, v{BA}
    v_and_b32 v{U1}, 1, v{LANE}
    v_lshl_add_u32 v{BA}, v{U1}, 4, v{BA}
    v_bfe_u32 v{U2}, v{LANE}, 1, 1
    v_lshl_add_u32 v{BA}, v{U2}, 3, v{BA}
    v_bfe_u32 v{U2}, v{LANE}, 4, 1
    v_lshl_add_u32 v{BA}, v{U2}, 15, v{BA}
    s_cmp_ge_u32 s{S_W}, 12
    s_cselect_b32 s{S_Y}, 0x10000, 0
    v_add_u32 v{BA}, s{S_Y}, v{BA}
    s_mov_b32 s{S_Y}, {RINGS[0]}
    s_cselect_b32 s{S_Y}, {XAU}, s{S_Y}
    s_lshl_b32 s{S_X}, s{S_G}, 6
    s_add_u32 s{S_Y}, s{S_Y}, s{S_X}
    v_xor_b32 v{U2}, v{U0}, v{U1}
    v_lshlrev_b32 v{U2}, 4, v{U2}
    v_lshl_add_u32 v{XR}, v{U1}, 9, v{U2}
    v_bfe_u32 v{U1}, v{LANE}, 1, 4
    v_mul_u32_u24 v{U1}, {XP}, v{U1}
    v_add_u32 v{XR}, v{XR}, v{U1}
    v_add_u32 v{XR}, {X0}, v{XR}
    v_and_b32 v{U1}, 31, v{LANE}
    v_mul_u32_u24 v{U1}, {RS}, v{U1}
    v_lshl_add_u32 v{U1}, v{U0}, 5, v{U1}
    v_add_u32 v{OA}, s{S_Y}, v{U1}
    s_lshl_b32 s{S_Z}, s{S_G}, 10
    s_add_u32 s{SXB}, s{SXB}, s{S_Z}
    s_mul_i32 s{SXL}, s{S_G}, {XP}
    v_lshl_add_u32 v{SA}, v{LANE}, 4, s{S_Z}
    v_lshrrev_b32 v{U1}, 8, v{SA}
    v_lshl_add_u32 v{U1}, v{U1}, 4, v{SA}
    v_add_u32 v{CA[0]}, {RINGS[0]}, v{U1}
    s_mul_i32 s{S_X}, s{S_S}, {L.TBL_SL}
    s_mul_i32 s{S_Y}, s{S_R}, {L.RN*256}
    s_add_u32 s{S_X}, s{S_X}, s{S_Y}""")
    srd(a, R_O, P_WS, L.WS_TBL, L.RN * 256, soff=S_X)
    common_srds(a)
    a(f"s_mov_b32 s{SP0}, 0x07060100\ns_mov_b32 s{SP1}, 0x07060302\n" + ("s_waitcnt vmcnt(4)\ns_cmp_ge_u32 s%d, 12\ns_cbranch_scc1 g_ww\ns_waitcnt vmcnt(0)\ng_ww:" % S_W if "x0a" in OPT else f"s_waitcnt vmcnt({0 if 'x0f' in OPT else 2})"))
    stamp(a, 1)
    if "xpf" in OPT:
        half = OPT.get("map", "4") == "2"
        a(f"s_cmp_ge_u32 s{S_W}, 12\ns_cbranch_scc1 g_noxpf")
        wait(a, C_I, 8)
        a(f"""v_mbcnt_lo_u32_b32 v{U1}, -1, 0
        v_mbcnt_hi_u32_b32 v{U1}, -1, v{U1}
        v_lshlrev_b32 v{U1}, 7, v{U1}
        s_mul_i32 s{S_X}, s{S_R}, {L.RN*512}
        s_lshl_b32 s{S_Y}, s{S_G}, 14
        s_add_u32 s{S_X}, s{S_X}, s{S_Y}
        s_add_u32 s{S_X}, s{S_X}, 16384""")
        if half:
            a(f"""s_and_b32 s{S_Y}, s{S_S}, 1
            s_lshl_b32 s{S_Y}, s{S_Y}, 13
            s_add_u32 s{S_X}, s{S_X}, s{S_Y}
            buffer_load_dword v{CO}, v{U1}, s[{R_X}:{R_X+3}], s{S_X} offen""")
        else:
            a(f"""buffer_load_dword v{CO}, v{U1}, s[{R_X}:{R_X+3}], s{S_X} offen
            s_add_u32 s{S_X}, s{S_X}, 8192
            buffer_load_dword v{CO}, v{U1}, s[{R_X}:{R_X+3}], s{S_X} offen""")
        a("g_noxpf:")
    sync(a, C_W)
    for ks in range(16):
        for hf in range(2):
            r = BF + ks*4 + hf*2
            a(f"ds_read_b64_tr_b16 v[{r}:{r+1}], v{BA} offset:{ks*2048 + hf*512}")
    if "xpf" in OPT: a(f"s_cmp_lt_u32 s{S_W}, 12\ns_cbranch_scc1 g_nw\ns_waitcnt vmcnt(0)\ng_nw:")
    elif "fx0" not in OPT: a("s_waitcnt vmcnt(0)")
    sync(a, C_F)
    stamp(a, 2)
    K = 0x8000 + (L.HVEXP << 23)
    ARAT, RDAT = oi("arat", 4), oi("rdat", 8)

    XW = oi("xw", 4)
    SIG = [int(y) for y in OPT.get("sig", "3,6,9,12").split(",")]
    HOLD = oi("hold", 30)
    def xst(st):
        for j in range(4):
            a(f"""s_add_u32 m0, s{SXL}, {XS[st] + j*4*XP}
            s_add_u32 s{S_Y}, s{SXB}, {st*16384 + j*4096}
            buffer_load_dwordx4 v{XA_}, s[{R_X}:{R_X+3}], s{S_Y} offen lds""")
    NR_, LA_ = 6, 5
    def stream(P):
        ds = []
        def dsop(tag, ins): a(ins); ds.append(tag)
        def dswait(tag):
            i = max(k for k, t in enumerate(ds) if t == tag)
            a(f"s_waitcnt lgkmcnt({min(15, len(ds) - 1 - i)})")
        def rdA(n):
            st, ks = divmod(n, 16)
            if n == 16: a(f"v_add_u32 v{XR}, {(XT - X0) & 0xffffffff:#x}, v{XR}")
            r = AR + (n % NR_) * 4
            dsop(("A", n), f"ds_read_b128 v[{r}:{r+3}], v{XR} offset:{max(st-1, 0)*XST + ks*32}")
        def pack(st):
            x = ACC_ + (st % 2) * 16; h = x + 8
            o = [f"v_mul_f32 v{x+r}, 0xbfb8aa3b, v{x+r}" for r in range(8)]
            if not P:
                o += [f"v_mul_f32 v{h+r}, 0x49800000, v{h+r}" for r in range(8)]
                return o + [f"v_cvt_pk_bf16_f32 v{h+r}, v{x+r}, v{h+r}" for r in range(8)]
            o += [f"v_add_u32 v{h+r}, {K:#x}, v{h+r}" for r in range(8)]
            o += [f"v_cvt_pk_bf16_f32 v{x+r}, v{x+r}, v{x+r+1}" for r in range(0, 8, 2)]
            o += [f"v_sub_u32_sdwa v{h+r}, v{h+r}, v{x+(r&6)} dst_sel:DWORD dst_unused:UNUSED_PAD src0_sel:DWORD src1_sel:WORD_{r&1}" for r in range(8)]
            o += [f"v_perm_b32 v{h+r}, v{h+r}, v{x+(r&6)}, s{SP1 if r&1 else SP0}" for r in range(8)]
            return o
        def wr(st):
            h = ACC_ + (st % 2) * 16 + 8
            for q in range(2): dsop(("W", st), f"ds_write_b128 v{OA}, v[{h+4*q}:{h+4*q+3}] offset:{16*q}")
            d = (RINGS[(st+1) % 2] - RINGS[st % 2]) if P else STG
            if st < 4: a(f"v_add_u32 v{OA}, {d & 0xffffffff:#x}, v{OA}")
        def copy_rd(st, r=CO):
            for q in range(2): dsop(("C", st), f"ds_read_b128 v[{r+4*q}:{r+4*q+3}], v{CA[st%2]} offset:{q*16*RS}")
        def copy_st(st, r=CO):
            dswait(("C", st))
            for q in range(2):
                a(f"s_mov_b32 s{S_X}, {st*8192 + q*4096}\nbuffer_store_dwordx4 v[{r+4*q}:{r+4*q+3}], v{SA}, s[{R_O}:{R_O+3}], s{S_X} offen{SC}")
        def darr(tag, off):
            a("s_mov_b64 exec, 1")
            dsop(tag, f"ds_add_u32 v{CB}, v{ONE} offset:{off}")
            a("s_mov_b64 exec, -1")
        for n in range(LA_): rdA(n)
        pend = []
        for n in range(80):
            st, ks = divmod(n, 16)
            c_off = C_X + 4 * st
            if not P:
                for k_, at in enumerate(SIG):
                    if at == n:
                        xs = k_ + 1
                        a(f"s_waitcnt vmcnt({4 * (min(4, xs + XW - 1) - xs)})\ns_mov_b64 exec, 1")
                        dsop(("X", xs), f"ds_add_u32 v{CB}, v{T2} offset:{C_X + 4*k_}")
                        a("s_mov_b64 exec, -1")
                        if xs + XW <= 4: xst(xs + XW)
                if n == HOLD + 1: spin(a, C_S4, LANE, S_X, n=8, sl=1, first=False)
                if n == HOLD: spin(a, (C_X + 4 * oi("as", 5)) if oi("as", 5) < 5 else C_R2, LANE, S_X, n=4, sl=1, mask=0xf, first=False)
            if ks == ARAT: darr(("S", st), c_off)
            if ks == RDAT: dsop(("R", st), f"ds_read_b32 v{CV}, v{CB} offset:{c_off}")
            if ks == 16 - LA_:
                dswait(("R", st))
                a(f"v_readfirstlane_b32 s{S_X}, v{CV}")
                if P: spin(a, c_off, CV, S_X, n=(0x404 if st < 4 else 4), sl=1, mask=0xf0f)
                elif st < 2: spin(a, c_off, CV, S_X, n=0x400, sl=1, mask=0xf00)
                else: spin(a, c_off, CV, S_X, n=(0x444 if st < 4 else 0x44), sl=1, mask=0xfff)
                if st == 1: stamp(a, 4)
                if st == 3: stamp(a, 5)
            cr = ACC_ + ((st + 1) % 2) * 16
            if ks == 14 and P:
                if st == 2 and "xpf" in OPT: a("s_waitcnt vmcnt(0)")
                if st >= 2: copy_rd(st - 2, cr)
                if st == 4: darr("R2", C_R2)
            if n + LA_ < 80: rdA(n + LA_)
            if n % 2 == 0: dswait(("A", n + 1))
            r = AR + (n % NR_) * 4
            c = ACC_ + (st % 2) * 16
            a(f"v_mfma_f32_32x32x16_bf16 v[{c}:{c+15}], v[{BF+ks*4}:{BF+ks*4+3}], v[{r}:{r+3}], " + ("0" if ks == 0 else f"v[{c}:{c+15}]"))
            if ks == 2 and pend: a("s_nop 5")
            if ks >= 2:
                for _ in range(3 if P else 2):
                    if pend: a(pend.pop(0))
            if ks == 14 and st >= 1:
                assert not pend
                wr(st - 1)
            if P and ks == 15 and st >= 2: copy_st(st - 2, cr)
            if ks == 15: pend = pack(st)
        if P: a(f"ds_read_b32 v{CV}, v{CB} offset:{C_R2}\ns_nop 10")
        else: a("s_nop 11")
        for x in pend: a(x)
        if P:
            a(f"s_waitcnt lgkmcnt(0)\nv_readfirstlane_b32 s{S_X}, v{CV}")
            spin(a, C_R2, CV, S_X, n=4)
        wr(4)
        stamp(a, 6)
        if P:
            sync(a, C_E, n=4)
            copy_rd(3, AR + 8); copy_rd(4, AR)
            copy_st(3, AR + 8); copy_st(4, AR)
            arrive(a, C_PE)

    a(f"s_cmp_ge_u32 s{S_W}, 12\ns_cbranch_scc1 a_role")
    a(f"v_add_u32 v{CA[1]}, {(RINGS[1]-RINGS[0]) & 0xffffffff:#x}, v{CA[0]}")
    if "fx0" in OPT: wait(a, C_MK, 4, sl=0)
    if "pprio" in OPT: a(f"s_setprio {OPT['pprio']}")
    stamp(a, 3)
    stream(True)
    a(f"s_setprio {oi('ptail', 3)}")
    stamp(a, 7)
    a(f"""v_mbcnt_lo_u32_b32 v{LANE}, -1, 0
    v_mbcnt_hi_u32_b32 v{LANE}, -1, v{LANE}
    s_lshl_b32 s{S_Y}, s{S_G}, {6+FSH}
    s_add_u32 s{S_Y}, s{S_Y}, {WS_FE:#x}
    v_lshl_add_u32 v2, v{LANE}, {FSH}, s{S_Y}
    global_load_dwordx2 v[4:5], v2, s[{P_WS}:{P_WS+1}] sc1
    ds_read_b32 v13, v{CB} offset:{C_IDX}
    s_mul_i32 s{S_X}, s{S_G}, {64*L.CHS*32}""")
    srd(a, RD, P_WS, L.WS_EA, 64 * L.CHS * 32, soff=S_X)
    a(f"""v_and_b32 v3, 62, v{LANE}
    s_lshl_b32 s{S_X}, s{S_G}, 11
    s_add_u32 s{S_X}, s{S_X}, {MARK2}
    v_add_u32 v3, s{S_X}, v3
    v_lshl_add_u32 v6, s{S_G}, 4, v{CB}
    v_lshlrev_b32 v7, 4, v{LANE}
    v_add_u32 v12, {32*L.CHS*32}, v7
    s_waitcnt lgkmcnt(0)
    v_readfirstlane_b32 s{S_NT}, v13
    s_cmp_ge_u32 s{S_NT}, 8
    s_cbranch_scc1 p_idx""")
    a.c("indices not ready yet: publish the table first")
    wait(a, C_S3, 1)
    a(f"ds_read_b64 v[0:1], v{CB} offset:{C_TAG}\ns_waitcnt vmcnt(0)")
    publish_done(a, "p_pd0", 0, C_D, 4, False)
    wait(a, C_IDX, 8)
    PX = 16
    a(f"p_idx:\nds_read_b64 v[0:1], v{CB} offset:{C_TAG}\nds_read_b128 v[8:11], v6 offset:{C_BT}")
    for h in range(2):
        for k in range(NK): a(f"ds_read_u16 v{PX+NK*h+k}, v3 offset:{1024*h + 64*k}")
    arrive(a, C_P2)
    a("s_waitcnt lgkmcnt(0)")
    SB, ST = [S_BASE, S_N0], [S_T, S_N1]
    for h in range(2): a(f"v_readfirstlane_b32 s{SB[h]}, v{8+2*h}\nv_readfirstlane_b32 s{ST[h]}, v{9+2*h}")
    k0 = NE // 32
    for h in range(2):
        for k in range(k0): a(f"v_lshl_add_u32 v{PX+NK*h+k}, v{PX+NK*h+k}, 5, v{12 if h else 7}")
    wait(a, C_P2, 4, sl=0)
    wait(a, C_X + 4, 0x40, mask=0xf0, sl=0)
    a(f"s_cmp_lt_u32 s{S_NT}, 8\ns_cbranch_scc1 p_pd1\ns_waitcnt vmcnt(1)")
    publish_done(a, "p_pd1", 0, C_D, 4, False)
    flag_poll(a, "p_fp", 2, 4, "v[0:1]", oi("psl", 2))
    EW = oi("ew", 8)
    a(f"s_mul_i32 s{S_Z}, s{S_G}, {2*NE*32}\ns_movk_i32 s{S_Y}, 4096")
    for h in range(2):
        for k in range(k0):
            if k % 4 == 0: a(f"s_add_u32 m0, s{S_Z}, {EA_E + h*NE*32 + 1024*k}")
            a(f"s_waitcnt vmcnt({EW-1})\nbuffer_load_dwordx4 v{PX+NK*h+k}, s[{RD}:{RD+3}], {'0' if k < 4 else 's%d' % S_Y} offen offset:{1024*(k%4)}{SC} lds")
        if h == 0:
            for hh in range(2):
                for k in range(k0, 10): a(f"v_lshl_add_u32 v{PX+NK*hh+k}, v{PX+NK*hh+k}, 5, v{12 if hh else 7}")
    stamp(a, 9)
    a("s_setprio 0")
    ldconsts(a)
    arrive(a, C_AE)
    wait(a, C_AE, 8, sl=2)
    a("s_setprio 3")
    for h in range(2):
        a(f"s_lshl_b32 s{S_Z}, s{SB[h]}, 5")
        for k in range(k0, NK):
            if (k - k0) % 4 == 0: a(f"s_add_u32 m0, s{S_Z}, {EA + 1024*(k-k0)}\ns_movk_i32 s{S_X}, {1024*k}")
            a(f"""s_cmp_gt_u32 s{ST[h]}, {32*k}
            s_cbranch_scc0 p_ld{h}
            {"v_lshl_add_u32 v%d, v%d, 5, v%d" % (PX+NK*h+k, PX+NK*h+k, 12 if h else 7) if k >= 10 else ""}
            s_waitcnt vmcnt({EW-1})
            buffer_load_dwordx4 v{PX+NK*h+k}, s[{RD}:{RD+3}], s{S_X} offen offset:{1024*((k-k0)%4)}{SC} lds""")
        a(f"p_ld{h}:")
    a(f"v_mov_b32 v3, 0x1000")
    arrive(a, C_GO, 3)
    a("s_waitcnt vmcnt(0)")
    arrive(a, C_RDY)
    a("s_branch k_join")
    a("a_role:")
    a(f"v_mov_b32 v{T2}, 0x100")
    if "fx0" in OPT:
        xst(1)
        a("s_waitcnt vmcnt(4)")
        arrive(a, C_MK)
        for st in range(2, 1 + XW): xst(st)
        arrive(a, C_XI)
        wait(a, C_MK, 4, sl=0)
    else:
        for st in range(1, 1 + XW): xst(st)
        arrive(a, C_XI)
    a(f"v_mov_b32 v{ONE}, 16")
    if "aprio" in OPT: a(f"s_setprio {OPT['aprio']}")
    stamp(a, 3)
    stream(False)
    a(f"v_mov_b32 v{ONE}, 1")
    a(f"v_mbcnt_lo_u32_b32 v{LANE}, -1, 0\nv_mbcnt_hi_u32_b32 v{LANE}, -1, v{LANE}")
    ldconsts(a)
    arrive(a, C_AE)
    a("s_setprio 0")
    stamp(a, 7)

def rd_ad(t): return [f"ds_read_b128 v[{AD+4*q}:{AD+4*q+3}], v{PROW} offset:{ROW + 64*t + 16*q}" for q in range(4)]
def gathers(g): return [f"buffer_load_dword v{g+j}, v{AD+slot_of_reg(j)}, s[{R_TBL}:{R_TBL+3}], 0 offen{'' if 'gplain' in OPT else ' nt' if 'gnt' in OPT else SC}" for j in range(16)]
def rd_eidx(t): return [f"ds_read_u16 v{EIDX}, v{PEAD} offset:{EAD + 32*t}"]
def rd_a():
    return [f"v_lshl_add_u32 v{EADDR}, v{EIDX}, 5, v{KHC}", f"ds_read_b128 v[{A0}:{A0+3}], v{EADDR}"]
def rd_xa(x):
    o = [f"s_mov_b32 m0, s{S_RO}"]
    for k in range(4):
        o += [f"s_bitcmp1_b32 s{S_FR}, {k}", f"ds_read_addtid_b32 v{x+k} offset:{XAU}", f"s_cselect_b32 s{S_X}, {RS}, 0"]
        o += [f"s_add_u32 m0, m0, s{S_X}" if k < 3 else f"s_add_u32 s{S_RO}, m0, s{S_X}"]
    o += [f"s_lshr_b64 s[{S_FR}:{S_FR+1}], s[{S_FR}:{S_FR+1}], 4"]
    return o
def bigs(d, x):
    D = f"v[{d}:{d+15}]"
    return [f"v_mfma_f32_32x32x16_bf16 {D}, v[{A2}:{A2+3}], v[{x}:{x+3}], 0",
            f"v_smfmac_f32_32x32x32_bf16 {D}, v[{A0}:{A0+3}], v[{B0}:{B0+7}], v{IX1}"]
def smalls(d, g):
    return [f"v_smfmac_f32_32x32x32_bf16 v[{d}:{d+15}], v[{SELS[m]}:{SELS[m]+3}], v[{g+8*m}:{g+8*m+7}], v{IX2}" for m in range(2)]
def pk(d, h, cc):
    X = lambda i: f"v[{d+2*i}:{d+2*i+1}]"; H = lambda i: f"v[{h+2*i}:{h+2*i+1}]"; C = f"v[{cc}:{cc+1}]"
    return [f"v_pk_fma_f32 {X(i)}, {X(i)}, {C}, {C} clamp" for i in range(4)] + [
        f"v_pk_mul_f32 {H(0)}, {H(0)}, {X(1)}", f"v_pk_mul_f32 {H(2)}, {H(2)}, {X(3)}",
        f"v_pk_fma_f32 {H(0)}, {H(1)}, {X(0)}, {H(0)}", f"v_pk_fma_f32 {H(2)}, {H(3)}, {X(2)}, {H(2)}",
        f"v_pk_mul_f32 {X(0)}, {X(0)}, {X(1)}", f"v_pk_mul_f32 {X(2)}, {X(2)}, {X(3)}",
        f"v_pk_mul_f32 {X(1)}, {X(0)}, {X(2)}", f"v_pk_mul_f32 {X(3)}, {H(0)}, {X(2)}",
        f"v_pk_fma_f32 {X(3)}, {H(2)}, {X(0)}, {X(3)}"]

NP_ = [120, 124]; DP_ = [122, 126]
def P2(r): return f"v[{r}:{r+1}]"
def seq(d, h, g):
    X = lambda i: P2(d + 2*i); H = lambda i: P2(h + 2*i); N = P2(NP_[g]); D = P2(DP_[g])
    o = [f"v_pk_add_f32 {D}, {X(0)}, 1.0 op_sel_hi:[1,0]", f"v_pk_fma_f32 {N}, {H(0)}, {X(1)}, {H(0)}",
         f"v_pk_fma_f32 {N}, {H(1)}, {D}, {N}", f"v_pk_fma_f32 {D}, {D}, {X(1)}, {D}"]
    for i in (2, 3):
        o += [f"v_pk_fma_f32 {N}, {N}, {X(i)}, {N}", f"v_pk_fma_f32 {N}, {H(i)}, {D}, {N}", f"v_pk_fma_f32 {D}, {D}, {X(i)}, {D}"]
    return o
def safe(d, h, g):
    return [f"v_mov_b32 v{NP_[g]}, 0x30800000", f"v_mov_b32 v{NP_[g]+1}, 0x30800000"] + pk(d, h, NP_[g]) + [f"v_mov_b32 v{d}, 0x4e800000", f"v_mov_b32 v{NP_[g]}, v{d+6}", f"v_mov_b32 v{NP_[g]+1}, v{d+7}",
                       f"v_mul_f32 v{DP_[g]}, v{d}, v{d+2}", f"v_mul_f32 v{DP_[g]+1}, v{d}, v{d+3}"]
def check(lab, ng=2):
    if ng == 2: o = [f"v_fma_f32 v{EADDR}, v{DP_[0]}, v{DP_[0]+1}, v{DP_[1]}", f"v_add_f32 v{EADDR}, v{EADDR}, v{DP_[1]+1}"]
    else: o = [f"v_add_f32 v{EADDR}, v{DP_[0]}, v{DP_[0]+1}"]
    return o + [f"v_cmp_ngt_f32 vcc, 0x57800000, v{EADDR}", f"s_cbranch_vccnz {lab}"]
OOL = []
def accum(a, c, ks, tag):
    for k in ks:
        nx = XA[c] + k + 1 if k < 3 else XA[1 - c]
        body = f"""s_mov_b32 m0, s{S_FO}
        s_add_u32 s{S_FO}, s{S_FO}, {RS}
        ds_write_addtid_b32 v{ACC} offset:{XAU}
        v_and_b32 v{ACC}, 0xffff0000, v{nx}"""
        if "ool" in OPT:
            a(f"""s_bitcmp1_b32 s{S_FF}, {k}
            v_fmac_f32 v{ACC}, v{NP_[k//2]+k%2}, v{DP_[k//2]+k%2}
            s_cbranch_scc1 k2_fl{tag}_{k}
            k2_nofl{tag}_{k}:""")
            OOL.append(f"k2_fl{tag}_{k}:\n{body}\ns_branch k2_nofl{tag}_{k}")
        else:
            a(f"""v_fmac_f32 v{ACC}, v{NP_[k//2]+k%2}, v{DP_[k//2]+k%2}
            s_bitcmp1_b32 s{S_FF}, {k}
            s_cbranch_scc0 k2_nofl{tag}_{k}
            {body}
            k2_nofl{tag}_{k}:""")

def mainloop(a):
    em = lambda ls: [a(x) for x in ls]
    a(f"""k_join:
    s_mov_b32 s{S_FIRST}, 1
    s_mov_b32 s{S_BASE}, 1""")
    if "trace" in OPT: a(f"v_mov_b32 v{CC}, 0\ns_mov_b32 s{ST0+2}, 0")
    if "contig" in OPT:
        a(f"""s_and_b32 s{S_Y}, s{S_W}, 3
        s_lshl_b32 s{S_Y}, s{S_Y}, 2
        s_lshr_b32 s{S_Z}, s{S_W}, 2
        s_add_u32 s{S_Y}, s{S_Y}, s{S_Z}
        s_lshl_b32 s{S_Y}, s{S_Y}, 3""")
    else: a(f"s_lshl_b32 s{S_Y}, s{S_W}, 3")
    a(f"v_mov_b32 v{T1}, s{S_Y}\nv_lshlrev_b32 v{T2}, 4, v{LANE}")
    wait(a, C_GO, 8, mask=0xf)
    a(f"""ds_read_b64 v[0:1], v{T1} offset:{BND}
    ds_read_b64 v[2:3], v{T1} offset:{BND+8}
    ds_read_b32 v5, v{CB} offset:{C_OVF}
    ds_read_b128 v[{B0}:{B0+3}], v{T2} offset:{BW}
    ds_read_b128 v[{B1}:{B1+3}], v{T2} offset:{BW+1024}
    s_waitcnt lgkmcnt(2)
    v_readfirstlane_b32 s{S_N0}, v0
    v_readfirstlane_b32 s{S_Q0}, v1
    v_readfirstlane_b32 s{S_N1}, v2
    v_readfirstlane_b32 s{S_NQ}, v3
    v_lshlrev_b32 v{PROW}, 2, v1
    v_lshl_add_u32 v{PEAD}, v1, 1, v{PEAD}
    s_sub_u32 s{S_NQ}, s{S_NQ}, s{S_Q0}
    s_lshr_b32 s{S_NQ}, s{S_NQ}, 2
    s_lshr_b32 s{S_Q0}, s{S_Q0}, 2
    s_mul_i32 s{S_FO}, s{S_N0}, {RS}
    v_readfirstlane_b32 s{S_X}, v5
    s_cmp_lg_u32 s{S_X}, 0
    s_cbranch_scc1 k_slow""")
    a(f"""k2_block:
    v_add_u32 v{T2}, s{S_Q0}, v{LANE}""")
    em(rd_ad(0))
    a(f"s_cmp_eq_u32 s{S_NQ}, 0\ns_cbranch_scc1 k2_epi")
    a(f"ds_read_u8 v{T3}, v{T2} offset:{FLG}")
    em(rd_eidx(0))
    a(f"""s_min_u32 s{S_Y}, s{S_NQ}, 64
    s_add_u32 s{S_NT}, s{S_Y}, 3
    s_lshr_b32 s{S_NT}, s{S_NT}, 2
    s_mov_b32 s{S_RO}, s{S_FO}
    v_cmp_gt_u32 vcc, s{S_Y}, v{LANE}
    s_sub_u32 s{S_Y}, s{S_Y}, 1
    s_and_b32 s{S_T}, s{S_Y}, 2
    s_waitcnt lgkmcnt(0)
    v_cmp_ne_u32 s[{S_FF}:{S_FF+1}], 0, v{T3}
    s_and_b64 s[{S_FF}:{S_FF+1}], s[{S_FF}:{S_FF+1}], vcc
    s_mov_b64 s[{S_FR}:{S_FR+1}], s[{S_FF}:{S_FF+1}]
    s_bitset0_b64 s[{S_FR}:{S_FR+1}], s{S_Y}
    s_cmp_eq_u32 s{S_FIRST}, 0
    s_cbranch_scc1 k2_g0""")
    if "gearly" in OPT: wait(a, C_GO, 0x108, mask=0xfff)
    else: wait(a, C_GO, 0x4108)
    a("k2_g0:")
    em(gathers(G[0])); em(rd_ad(1))
    a(f"s_cmp_eq_u32 s{S_FIRST}, 0\ns_cbranch_scc1 k2_nobar")
    wait(a, C_RDY, 4)
    a(f"""s_mov_b32 s{S_FIRST}, 0
    k2_nobar:
    s_setprio 3""")
    stamp(a, 10)
    a("s_waitcnt lgkmcnt(0)")
    em(rd_a()); em(rd_eidx(1)); em(rd_xa(XA[0]))
    em(gathers(G[1])); em(rd_ad(2))
    a("s_waitcnt lgkmcnt(4)")
    em(bigs(Dd[0], XA[0]))
    a(f"s_cmp_eq_u32 s{S_BASE}, 0\ns_cbranch_scc1 k2_keep\nv_and_b32 v{ACC}, 0xffff0000, v{XA[0]}\nk2_keep:\ns_lshr_b32 s{S_BASE}, s{S_FF+1}, 31")
    em(rd_a()); em(rd_eidx(2)); em(rd_xa(XA[1]))
    a("s_waitcnt vmcnt(16)")
    em(smalls(Dd[0], G[0]))
    stamp(a, 11)
    a(f"s_nop 9\ns_cmp_eq_u32 s{S_NT}, 1\ns_cbranch_scc1 k2_last0")
    if "al" in OPT: a(f".p2align {OPT['al']}")
    if "pad" in OPT: a("s_nop 0")
    a("k2_loop:")
    rc = [f"v_rcp_f32 v{DP_[k//2]+k%2}, v{DP_[k//2]+k%2}" for k in range(4)]
    for u in range(2):
        c, n = u, 1 - u
        e = [f"v_exp_f32 v{Dd[c]+j}, v{Dd[c]+j}" for j in range(16)]
        b = bigs(Dd[n], XA[n])
        E0 = oi("e0", 4)
        em(e[0:E0] + ["s_waitcnt lgkmcnt(0)", b[0]] + e[E0:E0+4] + [b[1]] + e[E0+4:12])
        if "trace" in OPT: a(f"s_mov_b32 m0, s{S_NT}\ns_nop 0\nv_writelane_b32 v{AD+15}, s{ST0+2}, m0")
        em(rd_a()); em(rd_eidx(3 + u)); em(e[12:16])
        em(inter(seq(Dd[c], G[c], 0), seq(Dd[c] + 8, G[c] + 8, 1)))
        if "trace" in OPT: a(f"s_memrealtime s[{ST0+2}:{ST0+3}]")
        if "nochk" not in OPT: em(check(f"k2_safe{u}"))
        a(f"k2_ok{u}:\ns_cmp_le_u32 s{S_NT}, 2\ns_cbranch_scc1 k2_noload{u}")
        if "wfirst" in OPT: a("s_waitcnt vmcnt(0)")
        em(gathers(G[c])[:oi("ng", 16)])
        em(rd_ad(3 + u))
        a(f"s_waitcnt vmcnt({oi('ng', 16)})\nk2_loaded{u}:")
        sm = smalls(Dd[n], G[n])
        em([sm[0]] + rc[:3] + [sm[1]] + rc[3:])
        accum(a, c, range(4), str(u))
        em(rd_xa(XA[c]))
        a(f"s_lshr_b64 s[{S_FF}:{S_FF+1}], s[{S_FF}:{S_FF+1}], 4")
        if u == 1: a(f"v_add_u32 v{PROW}, 128, v{PROW}\nv_add_u32 v{PEAD}, 64, v{PEAD}")
        nx = 'k2_mid' if u == 0 else 'k2_loop'
        if u == 0 and "ool" in OPT:
            a(f"""s_sub_u32 s{S_NT}, s{S_NT}, 1
            s_cmp_gt_u32 s{S_NT}, {PRIO[0]}
            s_cbranch_scc0 k2_pr
            k2_mid:""")
            OOL.append(f"""k2_pr:
            s_setprio 2
            s_cmp_gt_u32 s{S_NT}, {PRIO[1]}
            s_cbranch_scc1 k2_mid
            s_setprio 1
            s_cmp_gt_u32 s{S_NT}, 1
            s_cbranch_scc1 k2_mid
            s_branch k2_last1""")
            continue
        a(f"""s_sub_u32 s{S_NT}, s{S_NT}, 1
        s_cmp_gt_u32 s{S_NT}, {PRIO[0]}
        s_cbranch_scc1 {nx}
        s_setprio 2
        s_cmp_gt_u32 s{S_NT}, {PRIO[1]}
        s_cbranch_scc1 {nx}
        s_setprio 1
        s_cmp_gt_u32 s{S_NT}, 1""")
        a(f"s_cbranch_scc0 k2_last1\nk2_mid:" if u == 0 else "s_cbranch_scc1 k2_loop")
    for c in range(2):
        e = [f"v_exp_f32 v{Dd[c]+j}, v{Dd[c]+j}" for j in range(16)]
        a(f"k2_last{c}:\ns_setprio {oi('lprio', 0)}\ns_cmp_eq_u32 s{S_T}, 0\ns_cbranch_scc1 k2_half{c}")
        em(e); em(inter(seq(Dd[c], G[c], 0), seq(Dd[c] + 8, G[c] + 8, 1)))
        em(check(f"k2_safe{c+2}"))
        a(f"k2_ok{c+2}:"); em(rc)
        accum(a, c, range(4), f"l{c}")
        a(f"s_branch k2_loopend\nk2_half{c}:")
        em(e[:8]); em(seq(Dd[c], G[c], 0))
        em(check(f"k2_safe{c+4}", 1))
        a(f"k2_ok{c+4}:"); em(rc[:2]); a("s_nop 0")
        accum(a, c, range(2), f"h{c}")
        if c == 0: a("s_branch k2_loopend")
    a(f"""k2_loopend:
    v_mbcnt_lo_u32_b32 v{LANE}, -1, 0
    v_mbcnt_hi_u32_b32 v{LANE}, -1, v{LANE}
    s_cmp_le_u32 s{S_NQ}, 64
    s_cbranch_scc1 k2_epi
    s_sub_u32 s{S_NQ}, s{S_NQ}, 64
    s_add_u32 s{S_Q0}, s{S_Q0}, 64
    v_add_u32 v{PROW}, 128, v{PROW}
    v_add_u32 v{PEAD}, 64, v{PEAD}
    s_waitcnt lgkmcnt(0)
    s_branch k2_block""")
    for u in range(2): a(f"k2_noload{u}:\ns_waitcnt vmcnt(0)\ns_branch k2_loaded{u}")
    for x in OOL: a(x)
    for u in range(6):
        c = u % 2
        a(f"k2_safe{u}:")
        em(safe(Dd[c], G[c], 0))
        if u < 4: em(safe(Dd[c] + 8, G[c] + 8, 1))
        a(f"s_branch k2_ok{u}")

def epilogue(a):
    E, E2 = 0, 24
    CW, C2 = 4, 6
    OSC = {"": " sc1", "sc1": " sc1", "plain": "", "nt": " nt"}[OPT.get("outsc", "")]
    a("k2_epi:")
    stamp(a, 12)
    a.c("rounds of 8 nodes (8 features per lane), then one round of <= 4 nodes (4 features per lane)")
    a(f"""s_sub_u32 s{S_N1}, s{S_N1}, s{S_N0}
    s_add_u32 s{S_Y}, s{S_N1}, 3
    s_and_b32 s{S_Y}, s{S_Y}, -8
    s_add_u32 s{S_Y}, s{S_Y}, s{S_N0}
    s_mul_i32 s{S_Y}, s{S_Y}, {RS}
    s_mul_i32 s{S_Z}, s{S_N0}, {RS}
    v_lshrrev_b32 v{T0}, 3, v{LANE}
    v_lshrrev_b32 v{T1}, 4, v{LANE}
    v_lshl_add_u32 v{T2}, v{T0}, 4, s{S_Z}
    v_add_u32 v{CB}, v{T1}, v{LANE}
    v_lshl_add_u32 v{T2}, v{LANE}, 5, v{T2}
    v_lshl_add_u32 v{CB}, v{CB}, 4, s{S_Y}
    s_waitcnt vmcnt(0)
    ds_read_b128 v[{E}:{E+3}], v{T2} offset:{XAU}
    ds_read_b128 v[{E+4}:{E+7}], v{T2} offset:{XAU+16}
    ds_read_b128 v[{E2}:{E2+3}], v{CB} offset:{XAU}
    s_mul_i32 s{S_X}, s{S_R}, {L.RN}
    s_add_u32 s{S_X}, s{S_X}, s{S_N0}
    s_lshl_b32 s{S_X}, s{S_X}, 2
    s_add_u32 s{S_X}, s{S_X}, s{S_S}
    s_lshl_b32 s{S_X}, s{S_X}, 7
    v_mad_u32_u24 v{T3}, v{T0}, 24, v{LANE}
    v_mad_u32_u24 v{T1}, v{T1}, 48, v{LANE}
    v_lshlrev_b32 v{T3}, 4, v{T3}
    v_lshlrev_b32 v{T1}, 3, v{T1}
    s_mov_b32 s{CW}, 0xb5b8aa3b
    s_mov_b32 s{CW+1}, 0xb5b8aa3b
    s_mov_b32 s{C2}, 0x49800000
    s_mov_b32 s{C2+1}, 0x49800000""")
    def silu(E, n):
        for i in range(n): a(f"v_pk_mul_f32 v[{E+8+2*i}:{E+9+2*i}], v[{E+2*i}:{E+2*i+1}], s[{CW}:{CW+1}]")
        for i in range(2*n): a(f"v_exp_f32 v{E+8+i}, v{E+8+i}")
        for i in range(n): a(f"v_pk_fma_f32 v[{E+8+2*i}:{E+9+2*i}], v[{E+8+2*i}:{E+9+2*i}], s[{C2}:{C2+1}], s[{C2}:{C2+1}]")
        for i in range(2*n): a(f"v_rcp_f32 v{E+8+i}, v{E+8+i}")
        for i in range(n): a(f"v_pk_mul_f32 v[{E+2*i}:{E+2*i+1}], v[{E+2*i}:{E+2*i+1}], v[{E+8+2*i}:{E+9+2*i}]")
        for i in range(n): a(f"v_cvt_pk_bf16_f32 v{E+16+i}, v{E+2*i}, v{E+2*i+1}")
    a(f"""s_cmp_le_i32 s{S_N1}, 4
    s_cbranch_scc1 k2_e4
    k2_eloop:
    s_lshl_b32 s{S_Y}, s{S_N1}, 3
    s_bfm_b64 vcc, s{S_Y}, 0
    s_cmp_ge_u32 s{S_N1}, 8
    s_cselect_b64 vcc, -1, vcc
    s_waitcnt lgkmcnt(0)""")
    silu(E, 4)
    a(f"""s_mov_b64 exec, vcc
    buffer_store_dwordx4 v[{E+16}:{E+19}], v{T3}, s[{R_OUT}:{R_OUT+3}], s{S_X} offen{OSC}
    s_mov_b64 exec, -1
    s_add_u32 s{S_X}, s{S_X}, 0x1000
    s_sub_i32 s{S_N1}, s{S_N1}, 8
    s_cmp_le_i32 s{S_N1}, 4
    s_cbranch_scc1 k2_e4
    v_add_u32 v{T2}, {8*RS}, v{T2}
    ds_read_b128 v[{E}:{E+3}], v{T2} offset:{XAU}
    ds_read_b128 v[{E+4}:{E+7}], v{T2} offset:{XAU+16}
    s_branch k2_eloop
    k2_e4:
    s_cmp_le_i32 s{S_N1}, 0
    s_cbranch_scc1 k2_done
    s_lshl_b32 s{S_Y}, s{S_N1}, 4
    s_bfm_b64 vcc, s{S_Y}, 0
    s_cmp_ge_u32 s{S_N1}, 4
    s_cselect_b64 vcc, -1, vcc
    s_waitcnt lgkmcnt(0)""")
    silu(E2, 2)
    a(f"""s_mov_b64 exec, vcc
    buffer_store_dwordx2 v[{E2+16}:{E2+17}], v{T1}, s[{R_OUT}:{R_OUT+3}], s{S_X} offen{OSC}
    s_mov_b64 exec, -1
    k2_done:""")

def slowpath(a):
    CF, DV, SV, L4, TT, GV, XV, AV, ZZ = 0, 16, 17, 18, 19, 20, 21, 22, 24
    MK, EAS, SD, SS, SE = 4, 8, S_T, S_BASE, S_SL
    a("k_slow:\ns_setprio 0")
    wait(a, C_GO, 0x4108)
    wait(a, C_RDY, 4)
    a(f"""s_load_dwordx2 s[{RA}:{RA+1}], s[0:1], 24
    s_load_dwordx2 s[{RB}:{RB+1}], s[0:1], 16
    s_load_dwordx2 s[{RC}:{RC+1}], s[0:1], 8
    s_load_dwordx2 s[{RD}:{RD+1}], s[0:1], 48
    v_lshlrev_b32 v{L4}, 2, v{LANE}
    v_lshlrev_b32 v{TT}, 1, v{LANE}
    s_lshl_b32 s{S_X}, s{S_W}, 10
    s_add_u32 s{S_X}, s{S_X}, {EA}
    v_lshl_add_u32 v{AV}, v{LANE}, 4, s{S_X}""")
    for k in range(4): a(f"v_mov_b32 v{ZZ+k}, 0")
    for k in range(3): a(f"ds_write_b128 v{AV}, v[{ZZ}:{ZZ+3}] offset:{16384*k}")
    a(f"""s_waitcnt lgkmcnt(0)
    s_mov_b32 s{RA+2}, {L.E*4}
    s_mov_b32 s{RA+3}, 0x20000
    s_mov_b32 s{RB+2}, {L.E*4}
    s_mov_b32 s{RB+3}, 0x20000
    s_mov_b32 s{RC+2}, {L.E*32}
    s_mov_b32 s{RC+3}, 0x20000
    s_mov_b32 s{RD+2}, {528*512}
    s_mov_b32 s{RD+3}, 0x20000
    s_lshl_b32 s{S_X}, s{S_S}, 7
    s_add_u32 s{S_X}, s{S_X}, {512*512}
    s_add_u32 s{S_Y}, s{S_X}, 4096""")
    for k in range(16): a(f"buffer_load_ushort v{CF+k}, v{TT}, s[{RD}:{RD+3}], s{S_X if k < 8 else S_Y} offen offset:{512*(k%8)}")
    a("s_waitcnt vmcnt(0)")
    for k in range(16): a(f"v_lshlrev_b32 v{CF+k}, 16, v{CF+k}\nv_mul_f32 v{CF+k}, 0xbfb8aa3b, v{CF+k}")
    a(f"""s_mul_i32 s{S_Z}, s{S_R}, {L.RN}
    s_lshl_b32 s{S_NT}, s{S_W}, 8
    s_barrier
    sl_blk:
    buffer_load_dword v{DV}, v{L4}, s[{RA}:{RA+3}], s{S_NT} offen
    buffer_load_dword v{SV}, v{L4}, s[{RB}:{RB+3}], s{S_NT} offen
    s_waitcnt vmcnt(0)
    v_subrev_u32 v{DV}, s{S_Z}, v{DV}
    v_cmp_gt_u32 s[{MK}:{MK+1}], s{S_NV}, v{DV}
    v_mul_u32_u24 v{DV}, {RS}, v{DV}
    v_and_b32 v{SV}, 0x3fff, v{SV}
    v_lshlrev_b32 v{SV}, 8, v{SV}
    sl_edge:
    s_cmp_eq_u64 s[{MK}:{MK+1}], 0
    s_cbranch_scc1 sl_next
    s_ff1_i32_b64 s{S_X}, s[{MK}:{MK+1}]
    s_bitset0_b64 s[{MK}:{MK+1}], s{S_X}
    v_readlane_b32 s{SD}, v{DV}, s{S_X}
    v_readlane_b32 s{SS}, v{SV}, s{S_X}
    s_lshl_b32 s{SE}, s{S_NT}, 3
    s_lshl_b32 s{S_X}, s{S_X}, 5
    s_add_u32 s{SE}, s{SE}, s{S_X}
    s_buffer_load_dwordx8 s[{EAS}:{EAS+7}], s[{RC}:{RC+3}], s{SE}
    v_mov_b32 v{TT}, s{SS}
    v_add_u32 v{AV}, s{SD}, v{L4}
    buffer_load_dword v{GV}, v{TT}, s[{R_TBL}:{R_TBL+3}], 0 offen{SC}
    ds_read_b32 v{XV}, v{AV} offset:{XAU}
    v_add_u32 v{AV}, {EA}, v{AV}
    s_waitcnt vmcnt(0) lgkmcnt(0)
    v_lshlrev_b32 v{XV}, 16, v{XV}
    v_lshlrev_b32 v{TT}, 16, v{GV}
    v_add_f32 v{XV}, v{XV}, v{TT}""")
    for k in range(8):
        a(f"""s_lshl_b32 s{S_X}, s{EAS+k}, 16
        s_and_b32 s{S_Y}, s{EAS+k}, 0xffff0000
        v_fmac_f32 v{XV}, s{S_X}, v{CF+2*k}
        v_fmac_f32 v{XV}, s{S_Y}, v{CF+2*k+1}""")
    a(f"""v_exp_f32 v{XV}, v{XV}
    s_nop 0
    v_add_f32 v{XV}, 1.0, v{XV}
    v_rcp_f32 v{XV}, v{XV}
    s_nop 0
    v_mul_f32 v{XV}, v{XV}, v{GV}
    ds_add_f32 v{AV}, v{XV}
    s_branch sl_edge
    sl_next:
    s_add_u32 s{S_NT}, s{S_NT}, 4096
    s_cmp_lt_u32 s{S_NT}, {L.E*4}
    s_cbranch_scc1 sl_blk
    s_waitcnt lgkmcnt(0)
    s_barrier
    s_mul_i32 s{S_N0}, s{S_W}, 10
    s_add_u32 s{S_N1}, s{S_N0}, 10
    s_min_u32 s{S_N0}, s{S_N0}, s{S_NV}
    s_min_u32 s{S_N1}, s{S_N1}, s{S_NV}
    s_mul_i32 s{S_X}, s{S_W}, {10*RS}
    v_add_u32 v{AV}, s{S_X}, v{L4}
    v_add_u32 v{TT}, {EA}, v{AV}""")
    for k in range(10):
        a(f"""ds_read_b32 v{XV}, v{AV} offset:{XAU + k*RS}
        ds_read_b32 v{GV}, v{TT} offset:{k*RS}
        s_waitcnt lgkmcnt(0)
        v_and_b32 v{XV}, 0xffff0000, v{XV}
        v_add_f32 v{XV}, v{XV}, v{GV}
        ds_write_b32 v{AV}, v{XV} offset:{XAU + k*RS}""")
    a("s_branch k2_epi")

def kernel(a):
    a(f".globl {NAME}\n.p2align 8\n.type {NAME},@function\n{NAME}:")
    a(f"""s_cmp_ge_u32 s2, 256
    s_cbranch_scc1 k_end
    s_load_dwordx16 s[4:19], s[0:1], 0
    s_load_dwordx4 s[20:23], s[0:1], 64""")
    if STAMPS: a(f"s_memrealtime s[{ST0}:{ST0+1}]")
    if "code" in OPT:
        dup = oi("code", 0) if OPT["code"] else 0
        a.c("touch a distinct part of the code (fills this die's L2)")
        a(f"""s_getpc_b64 s[{S_Q0}:{S_Q0+1}]
        k_pc:
        s_bfe_u32 s{S_X}, s2, {((5 - dup) << 16) | 3:#x}
        s_lshl_b32 s{S_X}, s{S_X}, 7
        v_lshl_add_u32 v1, v0, {12 - dup}, s{S_X}
        v_cmp_gt_u32 vcc, k_end-k_pc, v1
        s_and_b64 exec, exec, vcc
        s_cbranch_execz k_nocode
        global_load_dword v{TID}, v1, s[{S_Q0}:{S_Q0+1}]
        k_nocode:
        s_mov_b64 exec, -1""")
    a(f"v_lshrrev_b32 v1, 6, v0")
    MAP = OPT.get("map", "4")
    if MAP == "4":
        a(f"""s_and_b32 s{S_S}, s2, 3
        s_lshr_b32 s{S_R}, s2, 3
        s_bfe_u32 s{S_X}, s2, 0x10002
        s_lshl_b32 s{S_X}, s{S_X}, 5
        s_add_u32 s{S_R}, s{S_R}, s{S_X}""")
    elif MAP == "2":
        a(f"""s_and_b32 s{S_S}, s2, 1
        s_lshl_b32 s{S_S}, s{S_S}, 1
        s_bfe_u32 s{S_X}, s2, 0x10003
        s_add_u32 s{S_S}, s{S_S}, s{S_X}
        s_lshr_b32 s{S_R}, s2, 4
        s_bfe_u32 s{S_X}, s2, 0x20001
        s_lshl_b32 s{S_X}, s{S_X}, 4
        s_add_u32 s{S_R}, s{S_R}, s{S_X}""")
    else:
        a(f"""s_bfe_u32 s{S_S}, s2, 0x20003
        s_lshr_b32 s{S_R}, s2, 5
        s_and_b32 s{S_X}, s2, 7
        s_lshl_b32 s{S_X}, s{S_X}, 3
        s_add_u32 s{S_R}, s{S_R}, s{S_X}""")
    a(f"""v_readfirstlane_b32 s{S_W}, v1
    s_mul_i32 s{S_X}, s{S_R}, {L.RN}
    s_sub_u32 s{S_NV}, {L.N}, s{S_X}
    s_min_u32 s{S_NV}, s{S_NV}, {L.RN}
    v_and_b32 v{LANE}, 63, v0
    v_mov_b32 v{CB}, {CNT}
    v_mov_b32 v{ONE}, 1""")
    if STAMPS:
        for j in range(1, 16): a(f"s_mov_b64 s[{ST0+2*j}:{ST0+2*j+1}], 0")
    a(f"""s_cmp_ge_u32 s{S_W}, 8
    s_waitcnt lgkmcnt(0)
    s_cbranch_scc1 g_role""")
    s_role(a); g_role(a); mainloop(a); slowpath(a); epilogue(a)
    if STAMPS:
        a("s_waitcnt vmcnt(0)"); stamp(a, 13)
        if "xcc" in OPT: a(f"s_getreg_b32 s{ST0+28}, hwreg(HW_REG_XCC_ID)\ns_getreg_b32 s{ST0+29}, hwreg(HW_REG_HW_ID)")
        if "trace" in OPT:
            for j in range(1, 11): a(f"v_readlane_b32 s{ST0+2*j}, v{CC}, {j+1}\ns_mov_b32 s{ST0+2*j+1}, s{ST0+1}")
        stamp_flush(a)
    a("k_end:\ns_endpgm")

if __name__ == "__main__":
    a = Asm()
    kernel(a)
    hdr = open("gather_scatter__edge_featured_mpnn_egc__graph.s.ref").read().split("; Override launch")[0]
    out = hdr + f"""; @launch grid=(256,1,1) block=(1024,1,1) lds={LDSZ}
.amdgcn_target "amdgcn-amd-amdhsa--gfx950"
.text
""" + a.text() + f""".section .rodata,"a"
.p2align 6
.amdhsa_kernel {NAME}
  .amdhsa_next_free_vgpr 128
  .amdhsa_next_free_sgpr 102
  .amdhsa_accum_offset 128
  .amdhsa_group_segment_fixed_size 0
  .amdhsa_kernarg_size 80
  .amdhsa_user_sgpr_count 2
  .amdhsa_user_sgpr_kernarg_segment_ptr 1
  .amdhsa_system_sgpr_workgroup_id_x 1
  .amdhsa_float_denorm_mode_32 3
.end_amdhsa_kernel
"""
    open(sys.argv[1], "w").write(out)
```

```python
import sys
from dsl import *
import layout as L

OPT = {}
for x in sys.argv[2:]:
    if x.startswith("--"):
        k, _, val = x[2:].partition("=")
        OPT[k] = val
def oi(k, d): return int(OPT.get(k, d))
STAMPS = "stamps" in OPT
PRIO = [int(y) for y in OPT.get("prio", "4,2,1").split(",")]
NAME = "gather_scatter__edge_featured_mpnn_egc__graph_kernel"
SC = " sc1"

SLOTCAP = 3136
ROW = 0
EAD = ROW + (SLOTCAP + 64) * 4
HIST = EAD + (SLOTCAP + 64) * 2
QST = HIST + 1024
FLG = QST + 1024
BND = FLG + 1024
BW = BND + 256
XAU = BW + 2048
RS = 272; STG = 32 * RS
XP = 1056; XST = 16 * XP
XT = XAU + STG
X0 = 131072
XS = [X0] + [XT + i * XST for i in range(4)]
EA = XAU + 160 * RS
REORD = XT + 4 * XST
RINGS = [113152, 121856]
PERM = 157696
CNT = 163328; H1 = 163584
NE = 192
EA_E = CNT - 8 * NE * 32
LCAP = (EA_E - EA) // 32
MARK = 148480; MARK2 = MARK
LDSZ = 163840
assert XAU == 24576 and REORD <= RINGS[0] and RINGS[0] + STG <= RINGS[1] and RINGS[1] + STG <= X0 and X0 + XST <= MARK and MARK + 8192 <= PERM and PERM + 2560 <= CNT
assert EA % 32 == 0 and BW % 32 == 0 and EA_E >= REORD
(C_S1, C_S2, C_S3, C_S4, C_S5, C_S6, C_W, C_F, C_E, C_REC, C_OVF, C_D, C_I, C_PE, C_AE, C_R2, C_XI, C_GO, C_IDX, C_P2) = [4 * i for i in range(20)]
C_X = 80; C_TAG = 104; C_RDY = 112; C_MK = 116; CT = REORD; C_BT = 128
WS_FL = 0x1740000
WS_FE = 0x1750000
FSH = oi('fsh', 3)
NJ = 7; NK = 2 * NJ
W_TS = 4 << 20
W_ID = 0x1400000; LST = 49152
W_EA = 0x3000000
W_PR = 0x6000000
C_PR = 120; C_PB = 124
assert all((c * 43) >> 8 == c // 6 for c in range(32))
SPIN = 0x40000

P_X, P_EA, P_SRC, P_DST, P_UW, P_VW, P_GW, P_OUT, P_DBG, P_WS = 4, 6, 8, 10, 12, 14, 16, 18, 20, 22
S_R, S_S, S_W, S_NV = 24, 25, 26, 27
R_TBL, R_OUT = 28, 32
RA, RB, RC, RD, RE = 36, 40, 44, 48, 52
S_X, S_Y, S_Z, S_T, S_BASE, S_SL, S_N0, S_N1, S_Q0, S_NQ, S_NT, S_FO, S_RO, S_FIRST = range(56, 70)
S_G = 3
S_M = [4 + 2 * j for j in range(7)]
TAG = 18
S_FF, S_FR, S_E0, S_E1 = 8, 10, 12, 14
ST0 = 70

CLK = [int(y) for y in OPT.get("clk", "11,12").split(",")]
def stamp(a, j):
    if not STAMPS: return
    if "only" in OPT and str(j) not in OPT["only"].split(","): return
    a(f"s_memrealtime s[{ST0+2*j}:{ST0+2*j+1}]")
    if j in CLK: a(f"s_memtime s[{ST0+28+2*CLK.index(j)}:{ST0+29+2*CLK.index(j)}]")
    a("s_waitcnt lgkmcnt(0)")
def stamp_flush(a):
    a(f"""s_lshl_b32 s56, s2, 4
    s_add_u32 s56, s56, s{S_W}
    s_lshl_b32 s56, s56, 7
    s_add_u32 s56, s56, {L.WS_STAMP:#x}
    s_add_u32 s58, s{P_WS}, s56
    s_addc_u32 s59, s{P_WS+1}, 0
    s_mov_b64 exec, 1
    v_mov_b32 v0, 0""")
    for j in range(16):
        a(f"v_mov_b32 v2, s{ST0+2*j}\nv_mov_b32 v3, s{ST0+2*j+1}\nglobal_store_dwordx2 v0, v[2:3], s[58:59] offset:{8*j}\ns_nop 1")

G = [0, 16]; Dd = [32, 48]; AD = 64; A0 = 80; A1 = 84; B0 = 88; B1 = 92; SEL = 96; A2 = 100
XA = [104, 108]; CC = 112; ACC = 114; EIDX = 115; EADDR = 116; PROW = 117; PEAD = 118; KHC = 119
LANE = 120; TID = 121
T0, T1, T2, T3 = 122, 123, 124, 125
CB, ONE = 126, 127
EX = 36

def slot_of_reg(j):
    g, i, ab = j // 8, (j % 8) // 2, j % 2
    return (2 * g + ab) * 4 + i

SELS = [SEL, A1]; IX1, IX2 = CC, CC + 1
def consts(a):
    a.c("lane = (kh, row), row = 8a+4h+b; tile register j = 4a+b")
    a.c("SELS[m] (sparse A): 1.0 in dword 2h+(b>>1), half b&1, iff a>>1==m and a&1==kh")
    a(f"""v_lshrrev_b32 v{T0}, 5, v{LANE}
    v_bfe_u32 v{T1}, v{LANE}, 3, 1
    v_cmp_eq_u32 vcc, v{T0}, v{T1}
    v_bfe_u32 v{T2}, v{LANE}, 1, 2
    v_bfe_u32 v{T1}, v{LANE}, 4, 1
    v_lshl_add_u32 v{T2}, v{T1}, 2, v{T2}
    v_and_b32 v{T3}, 1, v{LANE}
    v_cndmask_b32 v{T2}, 15, v{T2}, vcc
    v_lshl_add_u32 v{PEAD}, v{T1}, 1, v{T3}
    v_lshlrev_b32 v{T3}, 4, v{T3}
    v_mov_b32 v{EIDX}, 0x3f80
    v_lshlrev_b32 v{T3}, v{T3}, v{EIDX}""")
    for k in range(0, 8, 2):
        a(f"""v_cmp_eq_u32 vcc, {k}, v{T2}
        v_cmp_eq_u32 s[{S_Q0}:{S_Q0+1}], {k+1}, v{T2}
        s_nop 0
        v_cndmask_b32 v{SELS[k//4]+k%4}, 0, v{T3}, vcc
        v_cndmask_b32 v{SELS[k//4]+k%4+1}, 0, v{T3}, s[{S_Q0}:{S_Q0+1}]""")
    a.c("A2 (dense A): quad = 2*(j/8)+(j%2); 1.0 at element 2*quad iff kh==h")
    a(f"""v_bfe_u32 v{T1}, v{LANE}, 2, 1
    v_cmp_eq_u32 vcc, v{T0}, v{T1}
    v_mul_u32_u24 v{IX1}, 0xaaaa, v{T1}
    v_add_u32 v{IX1}, 0x4444, v{IX1}
    v_cndmask_b32 v{T2}, 7, v{PEAD}, vcc""")
    fill = [f"v_bfe_u32 v{T1}, v{LANE}, 3, 1", f"v_lshl_add_u32 v{PEAD}, v{PEAD}, 1, v{T1}",
            f"v_bfe_u32 v{T1}, v{LANE}, 1, 1", f"v_lshl_add_u32 v{PEAD}, v{PEAD}, 1, v{T1}",
            f"v_lshlrev_b32 v{PEAD}, 1, v{PEAD}", f"v_lshlrev_b32 v{KHC}, 4, v{T0}",
            f"v_mov_b32 v{IX2}, 0x8888", f"s_nop 0"]
    for k in range(4):
        a(f"v_cmp_eq_u32 vcc, {k}, v{T2}\n{fill[2*k]}\n{fill[2*k+1]}\nv_cndmask_b32 v{A2+k}, 0, v{EIDX}, vcc")

def ldconsts(a):
    a(f"""v_lshlrev_b32 v{T1}, 4, v{LANE}
    v_add_u32 v{T1}, {CT}, v{T1}
    ds_read_b128 v[{SEL}:{SEL+3}], v{T1}
    ds_read_b128 v[{A2}:{A2+3}], v{T1} offset:1024
    ds_read_b128 v[{EADDR}:{EADDR+3}], v{T1} offset:2048
    ds_read_b128 v[{A1}:{A1+3}], v{T1} offset:3072
    ds_read_b128 v[{CC}:{CC+3}], v{T1} offset:4096""")

_lab = [0]
def spin(a, off, tv, ts, n=8, sl=0, mask=None, first=True):
    _lab[0] += 1; k = _lab[0]
    if not first: a(f"s_branch sp{k}r")
    a(f"sp{k}:")
    if mask is not None: a(f"s_and_b32 s{ts}, s{ts}, {mask:#x}")
    a(f"s_cmp_ge_u32 s{ts}, {n}\ns_cbranch_scc1 sp{k}e")
    if sl: a(f"s_sleep {sl}")
    a(f"""sp{k}r:
    ds_read_b32 v{tv}, v{CB} offset:{off}
    s_waitcnt lgkmcnt(0)
    v_readfirstlane_b32 s{ts}, v{tv}
    s_branch sp{k}
    sp{k}e:""")
def wait(a, off, n, sl=1, mask=None): spin(a, off, T0, S_X, n, sl, mask, first=False)
def sync(a, off, wait=True, n=8, sl=0):
    a(f"""s_mov_b64 exec, 1
    ds_add_rtn_u32 v{T0}, v{CB}, v{ONE} offset:{off}
    s_mov_b64 exec, -1
    s_waitcnt lgkmcnt(0)
    v_readfirstlane_b32 s{S_X}, v{T0}
    s_add_u32 s{S_X}, s{S_X}, 1""")
    if wait: spin(a, off, T0, S_X, n, sl)
def arrive(a, off, inc=None):
    a(f"s_mov_b64 exec, 1\nds_add_u32 v{CB}, v{inc or ONE} offset:{off}\ns_mov_b64 exec, -1")

def common_srds(a):
    a(f"s_lshl_b32 s{S_X}, s{S_S}, 22")
    srd(a, R_TBL, P_WS, 0, W_TS, stride=4, w3=0x800000, soff=S_X)
    srd(a, R_OUT, P_OUT, 0, L.N * 512)

def rowcode(a, dst, src, t1, t2):
    for d, x in zip(dst, src): a(f"v_mul_u32_u24 v{d}, 13358, v{x}")
    for d in dst: a(f"v_lshrrev_b32 v{d}, 21, v{d}")
    for d, x in zip(dst, src): a(f"v_mad_u32_u24 v{d}, v{d}, 3, v{x}")
    for d, u, w in zip(dst, t1, t2):
        a(f"""v_subrev_u32 v{u}, 4096, v{d}
        v_cmp_gt_u32 vcc, 5120, v{u}
        v_subrev_u32 v{u}, 5120, v{d}
        v_min_u32 v{d}, v{d}, v{u}
        v_cndmask_b32 v{w}, 32, 0, vcc
        v_and_b32 v{u}, 0xffffffe0, v{d}
        v_add3_u32 v{d}, v{d}, v{u}, v{w}""")

def publish_done(a, lab, V, cnt, n, S):
    sync(a, cnt, wait=False)
    a(f"s_cmp_lg_u32 s{S_X}, {n}\ns_cbranch_scc1 {lab}")
    if S:
        a(f"""s_lshl_b32 s{S_X}, s2, {FSH}
        s_add_u32 s{S_X}, s{S_X}, {WS_FE:#x}""")
    else:
        a(f"""v_readfirstlane_b32 s{TAG}, v{V}
        v_readfirstlane_b32 s{TAG+1}, v{V+1}
        s_lshl_b32 s{S_X}, s{S_S}, 6
        s_add_u32 s{S_X}, s{S_X}, s{S_R}
        s_lshl_b32 s{S_X}, s{S_X}, {FSH}
        s_add_u32 s{S_X}, s{S_X}, {WS_FL:#x}""")
    a(f"""s_atomic_swap_x2 s[{TAG}:{TAG+1}], s[{P_WS}:{P_WS+1}], s{S_X}
    s_mov_b32 s{S_X}, 0
    {lab}:""")

def flag_poll(a, lab, AV, FV, TV, sl):
    a(f"""s_mov_b32 s{S_Y}, {SPIN}
    {lab}:
    s_waitcnt vmcnt(0)
    v_cmp_ne_u64 vcc, {TV}, v[{FV}:{FV+1}]
    s_and_b64 exec, exec, vcc
    s_cbranch_scc0 {lab}e
    s_sleep {sl}
    global_load_dwordx2 v[{FV}:{FV+1}], v{AV}, s[{P_WS}:{P_WS+1}] sc1
    s_sub_u32 s{S_Y}, s{S_Y}, 1
    s_cbranch_scc0 {lab}
    {lab}e:
    s_mov_b64 exec, -1""")

def s_role(a):
    DS, SR, RG, ID, RKK, CN, INC, GRN = 2, 4, 6, 8, 10, 12, 13, 14
    LM, GA, CA_, BWA = 16, 17, 18, 19
    EV = 20
    PV = 32
    CW, NON = 36, 38
    ZV = 40
    IOT, MQ, HD, SP = 48, 52, 56, 60
    IDV = 64
    DEL, PA, MA1, PR2, HB = 88, 89, 90, 91, 92
    M1 = 60
    a(f"""v_mov_b32 v{T2}, 0
    v_mov_b32 v{T3}, 0
    v_lshl_add_u32 v{T1}, v{LANE}, 3, v{CB}
    ds_write_b64 v{T1}, v[{T2}:{T3}]
    s_mul_i32 s{S_X}, s2, {L.CH*4}""")
    srd(a, RA, P_DST, 0, L.CH * 4, soff=S_X)
    a(f"""v_lshlrev_b32 v{T0}, 2, v0
    buffer_load_dword v{DS}, v{T0}, s[{RA}:{RA+3}], 0 offen
    buffer_load_dword v{DS+1}, v{T0}, s[{RA}:{RA+3}], 0 offen offset:2048""")
    srd(a, RB, P_SRC, 0, L.CH * 4, soff=S_X)
    a(f"""buffer_load_dword v{SR}, v{T0}, s[{RB}:{RB+3}], 0 offen
    buffer_load_dword v{SR+1}, v{T0}, s[{RB}:{RB+3}], 0 offen offset:2048""")
    EPF = OPT.get("epf", "b")
    def epf():
        a(f"s_mul_i32 s{S_X}, s2, {L.CH*32}")
        srd(a, RC, P_EA, 0, L.CH * 32, soff=S_X)
        if EPF != "n":
            a(f"""v_subrev_u32 v{T1}, {512-160}, v0
            v_lshlrev_b32 v{T1}, 7, v{T1}
            s_and_b32 s{S_X}, s2, {(oi('stag', 1) << 3) if "stag" in OPT else 0}
            s_cselect_b32 s{S_X}, 0x8000, 0
            buffer_load_dword v{EV}, v{T1}, s[{RC}:{RC+3}], s{S_X} offen""")
    if EPF == "b": epf()
    a("s_waitcnt lgkmcnt(0)\ns_barrier")
    if EPF != "b": epf()
    NP = 0 if EPF == "n" else 1
    a(f"""s_and_b32 s{S_X}, s2, 31
    s_mul_i32 s{S_Y}, s{S_X}, 43
    s_lshr_b32 s{S_Y}, s{S_Y}, 8
    s_mul_i32 s{S_Y}, s{S_Y}, 4352
    s_mul_i32 s{S_X}, s{S_X}, 640
    s_add_u32 s{S_Y}, s{S_Y}, s{S_X}
    s_lshr_b32 s{S_Z}, s2, 5
    s_lshl_b32 s{S_X}, s{S_Z}, 1
    s_add_u32 s{S_X}, s{S_X}, s{S_Y}
    s_lshl_b32 s{S_X}, s{S_X}, 9""")
    srd(a, RD, P_WS, W_EA, 20 * 16384 - 7 * 1024, soff=S_X)
    a(f"""s_mul_i32 s{S_X}, s{S_Z}, {LST}
    s_add_u32 s{S_X}, s{S_X}, s{S_Y}
    s_lshl_b32 s{S_X}, s{S_X}, 2""")
    srd(a, RE, P_WS, W_ID, L.CHS * 4, soff=S_X)
    a(f"""v_cmp_gt_u32 vcc, {L.CH-512}, v0
    s_mov_b64 s[{M1}:{M1+1}], vcc
    v_lshlrev_b32 v{GA}, 4, v0
    v_add_u32 v{LM}, {MARK}, v{GA}
    v_lshlrev_b32 v{PR2}, 1, v0
    v_and_b32 v{PR2}, -4, v{PR2}
    v_add_u32 v{PR2}, {PERM}, v{PR2}
    v_and_b32 v{HB}, 16, v{GA}
    v_lshlrev_b32 v{ID}, 22, v0
    v_add_u32 v{ID+1}, 0x80000000, v{ID}
    v_mov_b32 v{ZV+4}, 0
    v_lshl_add_u32 v{T1}, v{LANE}, 2, v{CB}
    s_movk_i32 s{S_Y}, {-L.RN}
    s_mov_b32 s{S_Z}, {H1}
    s_waitcnt vmcnt({2+NP})""")
    stamp(a, 1)
    for k in range(2): a(f"v_mul_u32_u24 v{RG+k}, 13358, v{DS+k}")
    for k in range(2): a(f"v_lshrrev_b32 v{RG+k}, 21, v{RG+k}")
    for k in range(2): a(f"v_mad_i32_i24 v{DS+k}, v{RG+k}, s{S_Y}, v{DS+k}")
    for k in range(2): a(f"v_lshl_add_u32 v{RG+k}, v{RG+k}, 2, s{S_Z}")
    a(f"""ds_add_rtn_u32 v{RKK}, v{RG}, v{ONE}
    s_mov_b64 exec, s[{M1}:{M1+1}]
    ds_add_rtn_u32 v{RKK+1}, v{RG+1}, v{ONE}
    s_mov_b64 exec, 1
    ds_add_u32 v{CB}, v{ONE} offset:{C_S1}
    s_mov_b64 exec, -1
    s_waitcnt vmcnt({NP})""")
    rowcode(a, [PV, PV + 1], [SR, SR + 1], [T2, T2], [T3, T3])
    wait(a, C_S1, 8, sl=0)
    a(f"ds_read_b32 v{CN}, v{T1} offset:{H1-CNT}")
    srd(a, RA, P_GW, 0, 528 * 512)
    a(f"""v_or_b32 v{ID}, v{ID}, v{DS}
    v_or_b32 v{ID+1}, v{ID+1}, v{DS+1}
    s_waitcnt lgkmcnt(0)
    v_mov_b32 v{INC}, v{CN}""")
    scan(a, "v_add_u32", [INC])
    a(f"""v_sub_u32 v{INC}, v{INC}, v{CN}
    ds_bpermute_b32 v{T2}, v{RG}, v{INC}
    ds_bpermute_b32 v{T3}, v{RG+1}, v{INC}
    v_lshl_or_b32 v{GRN}, v{CN}, 10, v{INC}
    s_mov_b32 s{S_Y}, {PERM}
    v_readlane_b32 s{S_RO}, v{INC}, 32
    v_lshl_or_b32 v{ID}, v{PV}, 8, v{ID}
    v_lshl_or_b32 v{ID+1}, v{PV+1}, 8, v{ID+1}
    s_waitcnt lgkmcnt(0)
    v_add_u32 v{RG}, v{T2}, v{RKK}
    v_add_u32 v{RG+1}, v{T3}, v{RKK+1}
    v_lshl_add_u32 v{DS}, v{RG}, 2, s{S_Y}
    v_lshl_add_u32 v{DS+1}, v{RG+1}, 2, s{S_Y}
    ds_write_b32 v{DS}, v{ID}
    s_mov_b64 exec, s[{M1}:{M1+1}]
    ds_write_b32 v{DS+1}, v{ID+1}""")
    sync(a, C_S2)
    a(f"ds_read_b128 v[{IDV}:{IDV+3}], v{LM} offset:{PERM-MARK}")
    for k in range(3): a(f"ds_read_b32 v{PV+k}, v{PR2} offset:{1024*k}")
    a(f"s_lshl_b32 s{S_X}, s2, 9")
    srd(a, RB, P_WS, L.WS_OFF, 512, soff=S_X)
    GR, LEN, PRE, INC2, MKB = 2, 4, 5, 12, 8
    consts(a)
    a(f"v_lshlrev_b32 v{T0}, 2, v{LANE}\nv_sub_u32 v{T0}, s{S_NV}, v{T0}")
    fill = [f"v_mul_u32_u24 v{IOT}, 0x80008, v{LANE}", f"v_add_u32 v{IOT}, 0x10000, v{IOT}", f"v_add_u32 v{IOT+1}, 0x20002, v{IOT}",
            f"v_add_u32 v{IOT+2}, 0x40004, v{IOT}", f"v_add_u32 v{IOT+3}, 0x60006, v{IOT}", f"v_mul_u32_u24 v{DEL}, 43, v{LANE}",
            f"v_lshlrev_b32 v{PA}, 9, v{LANE}", f"v_mov_b32 v{GR}, 0"]
    for k in range(4): a(f"v_cmp_lt_i32 vcc, {k}, v{T0}\n{fill[2*k]}\n{fill[2*k+1]}\nv_cndmask_b32 v{MQ+k}, 0, 4, vcc")
    SE = 93
    a(f"""v_lshrrev_b32 v{DEL}, 8, v{DEL}
    v_mul_u32_u24 v{DEL}, 4352, v{DEL}
    v_mul_u32_u24 v{T0}, {L.CHS}, v{LANE}
    v_add_u32 v{DEL}, v{DEL}, v{T0}
    s_lshl_b32 s{S_X}, s{S_W}, 14
    v_lshl_add_u32 v{T0}, v{LANE}, 4, s{S_X}
    v_add_u32 v{T1}, 0x2000, v{T0}
    s_lshl_b32 s{S_RO}, s{S_RO}, 1""")
    for k in range(3):
        a(f"v_cmp_gt_i32 vcc, s{S_RO}, v0\ns_sub_i32 s{S_RO}, s{S_RO}, 512\ns_nop 0\nv_cndmask_b32 v{SE+k}, v{T0}, v{T1}, vcc")
    a(f"""s_lshr_b32 s{S_X}, s2, 3
    s_add_u32 s{S_X}, s{S_X}, {L.N + 3*63 - 5120}
    s_and_b32 s{S_Y}, s{S_X}, -32
    s_add_u32 s{S_X}, s{S_X}, s{S_Y}
    s_add_u32 s{S_X}, s{S_X}, 32
    s_lshl_b32 s{S_X}, s{S_X}, 8""")
    for k in range(4): a(f"v_mov_b32 v{ZV+k}, s{S_X}\nv_mov_b32 v{ZV+4+k}, 0\nv_mov_b32 v{SP+k}, {(BW//32) * 0x10001:#x}")
    a(f"""ds_write_b128 v{LM}, v[{ZV+4}:{ZV+7}]
    s_lshl_b32 s{S_N0}, s{S_W}, 10
    s_add_u32 s{S_N0}, s{S_N0}, {MARK}
    v_lshl_add_u32 v{MA1}, v{LANE}, 1, s{S_N0}
    s_lshl_b32 s{S_Z}, s{S_W}, 14
    s_lshl_b32 s{S_Y}, s{S_R}, 3
    s_add_u32 s{S_Z}, s{S_Z}, s{S_Y}
    s_add_u32 s{S_Z}, s{S_Z}, {L.WS_OFF:#x}
    v_add_u32 v{PA}, s{S_Z}, v{PA}""")
    if "shold" in OPT: wait(a, C_I, 8)
    a(f"""s_waitcnt lgkmcnt(1)
    buffer_store_dwordx4 v[{IDV}:{IDV+3}], v{GA}, s[{RE}:{RE+3}], 0 offen{SC}
    global_load_dwordx2 v[{NON}:{NON+1}], v{ZV+4}, s[{P_DBG}:{P_DBG+1}] offset:32 sc1
    s_waitcnt lgkmcnt(0)""")
    EGX = "egx" in OPT
    for k in range(3):
        a(f"""v_lshrrev_b32 v{PV+k}, 22, v{PV+k}
        v_lshl_or_b32 v{PV+k}, v{PV+k}, 5, v{HB}""")
    def eag():
        for k in range(3): a(f"buffer_load_dwordx4 v[{EV+4*k}:{EV+4*k+3}], v{PV+k}, s[{RC}:{RC+3}], 0 offen")
    if not EGX: eag()
    stamp(a, 2)
    GR, LEN, PRE, INC2, MKB = 2, 4, 5, 12, 8
    a(f"""v_lshlrev_b32 v{T2}, 3, v{LANE}
    s_mov_b32 s{S_Y}, {SPIN}
    s_waitcnt vmcnt({0 if EGX else 3})
    s_nonce:
    v_readfirstlane_b32 s{S_NT+1}, v{NON+1}
    v_readfirstlane_b32 s{S_NT}, v{NON}
    s_sub_u32 s{S_Y}, s{S_Y}, 1
    s_cbranch_scc1 s_nonceok
    s_cmp_lg_u32 s{S_NT+1}, 0
    s_cbranch_scc1 s_nonceok
    global_load_dwordx2 v[{NON}:{NON+1}], v{ZV+4}, s[{P_DBG}:{P_DBG+1}] offset:32 sc1
    s_waitcnt vmcnt(0)
    s_branch s_nonce
    s_nonceok:
    s_and_b32 s{S_N1}, s{S_NT+1}, 0xfff
    v_lshl_or_b32 v{GRN}, s{S_N1}, 20, v{GRN}
    v_mov_b32 v{GRN+1}, s{S_NT}
    s_mov_b64 exec, 1
    ds_write_b64 v{CB}, v[{NON}:{NON+1}] offset:{C_TAG}""")
    sync(a, C_S3, wait=False)
    def east():
        a(f"""s_bfe_u32 s{S_Y}, s{S_NT+1}, 0x1001e
        s_lshl_b32 s{S_Y}, s{S_Y}, 21
        s_add_u32 s{RD}, s{RD}, s{S_Y}
        s_addc_u32 s{RD+1}, s{RD+1}, 0
        s_mov_b32 s{S_Y}, 0x20000
        s_mov_b32 s{S_Z}, 0x40000""")
        for k, so in enumerate(("0", f"s{S_Y}", f"s{S_Z}")):
            a(f"buffer_store_dwordx4 v[{EV+4*k}:{EV+4*k+3}], v{SE+k}, s[{RD}:{RD+3}], {so} offen{SC}")
    a(f"""s_cmp_lg_u32 s{S_X}, 8
    s_cbranch_scc1 s_nopub
    buffer_store_dwordx2 v[{GRN}:{GRN+1}], v{T2}, s[{RB}:{RB+3}], 0 offen{SC}""")
    if EGX:
        a("s_nopub:")
        wait(a, C_XI, 4)
        eag()
    else:
        a("s_waitcnt vmcnt(1)\ns_branch s_pub\ns_nopub:\ns_waitcnt vmcnt(0)\ns_pub:")
        if "esx" in OPT: wait(a, C_XI, 4)
        east()
    stamp(a, 3)
    a(f"""v_lshrrev_b32 v{T0}, 5, v{LANE}
    v_and_b32 v{T2}, 31, v{LANE}
    v_lshlrev_b32 v{T2}, 1, v{T2}
    v_lshl_add_u32 v{CA_}, v{T0}, 11, v{T2}
    s_and_b32 s{S_X}, s{S_W}, 3
    s_lshr_b32 s{S_Y}, s{S_W}, 2
    s_lshl_b32 s{S_T}, s{S_Y}, 12
    s_and_b32 s{S_Z}, s{S_W}, 2
    s_lshl_b32 s{S_Z}, s{S_Z}, 9
    s_add_u32 s{S_T}, s{S_T}, s{S_Z}
    s_and_b32 s{S_Z}, s{S_W}, 1
    s_lshl_b32 s{S_Z}, s{S_Z}, 6
    s_add_u32 s{S_T}, s{S_T}, s{S_Z}
    s_lshl_b32 s{S_Z}, s{S_S}, 7
    s_add_u32 s{S_T}, s{S_T}, s{S_Z}
    s_add_u32 s{S_T}, s{S_T}, {512*512}
    buffer_load_ushort v{CW}, v{CA_}, s[{RA}:{RA+3}], s{S_T} offen
    buffer_load_ushort v{CW+1}, v{CA_}, s[{RA}:{RA+3}], s{S_T} offen offset:512
    s_lshl_b32 s{S_X}, s{S_X}, 2
    s_lshl_b32 s{S_Y}, s{S_Y}, 10
    s_add_u32 s{S_X}, s{S_X}, s{S_Y}
    v_lshl_add_u32 v{BWA}, v{LANE}, 4, s{S_X}""")
    common_srds(a)
    a(f"s_mov_b64 s[{TAG}:{TAG+1}], s[{S_NT}:{S_NT+1}]")
    a(f"s_mul_i32 s{S_X}, s{S_W}, {LST*4}")
    srd(a, RE, P_WS, W_ID, LST, stride=4, soff=S_X)
    wait(a, C_F, 8)
    a.c("LDS init of the list area")
    a(f"""ds_write_b128 v{GA}, v[{ZV}:{ZV+3}] offset:{ROW}
    v_cmp_gt_u32 vcc, {(HIST-EAD)//16}, v0
    s_mov_b64 exec, vcc
    ds_write_b128 v{GA}, v[{SP}:{SP+3}] offset:{EAD}
    v_cmp_gt_u32 vcc, {(EAD-ROW)//16-512}, v0
    s_mov_b64 exec, vcc
    ds_write_b128 v{GA}, v[{ZV}:{ZV+3}] offset:{ROW+8192}
    v_cmp_gt_u32 vcc, {(BW-HIST)//16}, v0
    s_mov_b64 exec, vcc
    ds_write_b128 v{GA}, v[{ZV+4}:{ZV+7}] offset:{HIST}
    s_mov_b64 exec, -1
    s_cmp_lg_u32 s{S_W}, 7
    s_cbranch_scc1 s_noct
    v_add_u32 v{T1}, {CT - 7*1024}, v{GA}
    ds_write_b128 v{T1}, v[{SEL}:{SEL+3}]
    ds_write_b128 v{T1}, v[{A2}:{A2+3}] offset:1024
    ds_write_b128 v{T1}, v[{EADDR}:{EADDR+3}] offset:2048
    ds_write_b128 v{T1}, v[{A1}:{A1+3}] offset:3072
    ds_write_b128 v{T1}, v[{CC}:{CC+3}] offset:4096
    s_noct:""")
    arrive(a, C_S4)
    if "pearly" in OPT:
        if oi("pearly", 0): a(f"s_sleep {oi('pearly', 0)}")
        a(f"""s_mov_b32 exec_hi, 0
        global_load_dwordx2 v[{GR}:{GR+1}], v{PA}, s[{P_WS}:{P_WS+1}] sc1
        s_mov_b64 exec, -1
        s_waitcnt vmcnt(1)""")
        publish_done(a, "s_pd", GRN, C_S6, 8, True)
    elif not EGX:
        a("s_waitcnt vmcnt(0)")
        publish_done(a, "s_pd", GRN, C_S6, 8, True)
    else: a("s_waitcnt vmcnt(0)")
    if oi("pdel", 0): a(f"s_sleep {oi('pdel', 0)}")
    if "pgate" in OPT: wait(a, C_X + 4 * oi("pgate", 0), 0x400, mask=0xf00, sl=2)
    stamp(a, 4)
    if "sprio" in OPT: a(f"s_setprio {OPT['sprio']}")
    a(f"s_mov_b32 exec_hi, 0")
    if "pearly" not in OPT: a(f"global_load_dwordx2 v[{GR}:{GR+1}], v{PA}, s[{P_WS}:{P_WS+1}] sc1")
    if EGX:
        a("s_mov_b64 exec, -1")
        east()
        a("s_mov_b32 exec_hi, 0")
    a(f"""s_mov_b32 s{S_Y}, {SPIN}
    s_waitcnt vmcnt({3 if EGX else 0})
    s_poll:
    v_lshrrev_b32 v{T0}, 20, v{GR}
    v_cmp_ne_u32 vcc, s{TAG}, v{GR+1}
    v_cmp_ne_u32 s[{S_M[0]}:{S_M[0]+1}], s{S_N1}, v{T0}
    s_or_b64 vcc, vcc, s[{S_M[0]}:{S_M[0]+1}]
    s_cbranch_scc0 s_pollok
    s_mov_b64 exec, vcc
    s_sleep {oi("psl", 2)}
    global_load_dwordx2 v[{GR}:{GR+1}], v{PA}, s[{P_WS}:{P_WS+1}] sc1
    s_sub_u32 s{S_Y}, s{S_Y}, 1
    s_waitcnt vmcnt(0)
    s_cbranch_scc0 s_poll
    v_mov_b32 v{GR}, 0
    s_pollok:
    s_mov_b64 exec, -1""")
    stamp(a, 5)
    IDX, IDW, HA, RK, QV = 64, 28, 64, 72, 20
    a(f"""v_lshlrev_b32 v{CW}, 16, v{CW}
    v_lshlrev_b32 v{CW+1}, 16, v{CW+1}
    v_mul_f32 v{CW}, 0xbfb8aa3b, v{CW}
    v_mul_f32 v{CW+1}, 0xbfb8aa3b, v{CW+1}
    v_bfe_u32 v{LEN}, v{GR}, 10, 10
    v_and_b32 v{GR}, 0x3ff, v{GR}
    v_mov_b32 v{INC2}, v{LEN}
    v_add_u32 v{DEL}, v{DEL}, v{GR}
    v_cvt_pk_bf16_f32 v{CW}, v{CW}, v{CW+1}""")
    for m in ("row_shr:1", "row_shr:2", "row_shr:4", "row_shr:8"):
        a(f"v_add_u32_dpp v{INC2}, v{INC2}, v{INC2} {m} row_mask:0xf bank_mask:0xf bound_ctrl:0\ns_nop 1")
    a(f"""v_add_u32_dpp v{INC2}, v{INC2}, v{INC2} row_bcast:15 row_mask:0xa bank_mask:0xf
    v_cmp_lt_u32 vcc, 0, v{LEN}
    v_sub_u32 v{PRE}, v{INC2}, v{LEN}
    v_readlane_b32 s{S_T}, v{INC2}, 31
    v_sub_u32 v{DEL}, v{DEL}, v{PRE}
    v_lshl_add_u32 v{T0}, v{PRE}, 1, s{S_N0}
    v_subrev_u32 v{INC2}, {NE - 31}, v{INC2}
    s_cmp_gt_u32 s{S_T}, {64*NJ}
    s_cselect_b64 exec, 0, vcc
    ds_write_b16 v{T0}, v{DEL}
    s_mov_b64 exec, -1
    ds_read_b128 v[{MKB}:{MKB+3}], v{LM}
    v_max_i32 v{INC2}, 0, v{INC2}
    v_and_b32 v{INC2}, 0xffffffe0, v{INC2}
    s_mov_b32 exec_lo, 0x80000000
    s_mov_b32 exec_hi, 0
    ds_add_rtn_u32 v{T0}, v{CB}, v{INC2} offset:{C_REC}
    s_mov_b64 exec, -1
    s_waitcnt lgkmcnt(1)""")
    for k in range(4): a(f"v_pk_max_u16 v{MKB+k}, v{MKB+k}, v{MKB+k} op_sel:[0,0] op_sel_hi:[1,0]")
    for k in range(1, 4): a(f"v_pk_max_u16 v{MKB+k}, v{MKB+k}, v{MKB+k-1} op_sel:[0,1] op_sel_hi:[1,1]")
    a(f"v_lshrrev_b32 v{INC2}, 16, v{MKB+3}")
    scan(a, "v_max_u32", [INC2])
    a(f"""v_mov_b32 v{PRE}, 0
    s_waitcnt lgkmcnt(0)
    v_mov_b32_dpp v{PRE}, v{INC2} wave_shr:1 row_mask:0xf bank_mask:0xf
    v_readlane_b32 s{S_BASE}, v{T0}, 31""")
    for k in range(4): a(f"v_pk_max_u16 v{MKB+k}, v{MKB+k}, v{PRE} op_sel:[0,0] op_sel_hi:[1,0]")
    for k in range(4): a(f"v_pk_add_u16 v{HD+k}, v{MKB+k}, v{IOT+k}")
    a(f"ds_write_b128 v{LM}, v[{HD}:{HD+3}]")
    for j in range(NJ): a(f"ds_read_u16 v{IDX+j}, v{MA1} offset:{128*j}")
    a(f"ds_read_b32 v{T1}, v{CB} offset:{C_S4}\nds_write_b128 v{LM}, v[{MKB}:{MKB+3}]")
    a.c("capacity guard")
    a(f"""s_add_u32 s{S_X}, s{S_BASE}, s{S_T}
    s_cmp_gt_u32 s{S_X}, {LCAP + NE - 32}
    s_cselect_b32 s{S_T}, {64*NJ+1}, s{S_T}
    s_cmp_gt_u32 s{S_T}, {64*NJ}
    s_cbranch_scc0 s_fits
    s_mov_b32 s{S_T}, 0
    ds_write_b32 v{CB}, v{ONE} offset:{C_OVF}
    s_fits:""")
    for j in range(NJ):
        a(f"s_sub_i32 s{S_X}, s{S_T}, {64*j}\nv_cmp_gt_i32 s[{S_M[j]}:{S_M[j]+1}], s{S_X}, v{LANE}")
    a("s_waitcnt lgkmcnt(0)")
    for j in range(NJ):
        a(f"s_mov_b64 exec, s[{S_M[j]}:{S_M[j]+1}]")
        if j >= 5: a("s_cbranch_execz s_idsdone")
        a(f"buffer_load_dword v{IDW+j}, v{IDX+j}, s[{RE}:{RE+3}], 0 idxen{SC}")
    a(f"s_idsdone:\ns_mov_b64 exec, -1\nv_readfirstlane_b32 s{S_X}, v{T1}")
    stamp(a, 6)
    a(f"""v_mov_b32 v{T2}, s{S_BASE}
    v_mov_b32 v{T3}, s{S_T}
    v_lshl_add_u32 v{GR}, s{S_W}, 3, v{CB}
    s_mov_b64 exec, 1
    ds_write_b64 v{GR}, v[{T2}:{T3}] offset:{C_BT}
    ds_add_u32 v{CB}, v{ONE} offset:{C_IDX}
    s_mov_b64 exec, -1""")
    if "sprio2" in OPT: a(f"s_setprio {OPT['sprio2']}")
    a(f"ds_write_b32 v{BWA}, v{CW} offset:{BW}")
    spin(a, C_S4, T0, S_X)
    a(f"""v_lshlrev_b32 v{T1}, 4, v{LANE}
    s_mul_i32 s{S_G}, s{S_W}, {NE}
    s_add_u32 s{S_G}, s{S_G}, {EA_E//32}
    s_waitcnt vmcnt(0)""")
    if EGX: publish_done(a, "s_pd", GRN, C_S6, 8, True)
    stamp(a, 7)
    sh = lambda j: a(f"v_lshlrev_b32_sdwa v{HA+j}, 2, v{IDW+j} dst_sel:DWORD dst_unused:UNUSED_PAD src0_sel:DWORD src1_sel:BYTE_0")
    for j in range(5): sh(j)
    for j in range(NJ):
        a(f"s_mov_b64 exec, s[{S_M[j]}:{S_M[j]+1}]")
        if j >= 5:
            a("s_cbranch_execz s_histdone"); sh(j)
        a(f"ds_add_rtn_u32 v{RK+j}, v{HA+j}, v{ONE} offset:{HIST}")
        a(f"v_and_b32 v{IDW+j}, 0x3fff00, v{IDW+j}")
    a("s_histdone:")
    sync(a, C_S5)
    a(f"""ds_read_b128 v[{HD}:{HD+3}], v{T1} offset:{HIST}
    s_add_u32 s{S_X}, s{S_BASE}, {EA//32 - NE}
    v_add_u32 v{LEN}, s{S_X}, v{LANE}
    v_add_u32 v{PRE}, s{S_G}, v{LANE}
    v_lshlrev_b32 v{T2}, 2, v0
    s_waitcnt lgkmcnt(0)""")
    for k in range(4): a(f"v_add_u32 v{HD+k}, 3, v{HD+k}")
    for k in range(4): a(f"v_and_b32 v{HD+k}, -4, v{HD+k}")
    for k in range(4): a(f"v_max_u32 v{HD+k}, v{HD+k}, v{MQ+k}")
    a(f"""v_add_u32 v{HD+1}, v{HD}, v{HD+1}
    v_add_u32 v{HD+2}, v{HD+1}, v{HD+2}
    v_add_u32 v{HD+3}, v{HD+2}, v{HD+3}
    v_mov_b32 v{INC2}, v{HD+3}""")
    scan(a, "v_add_u32", [INC2])
    a(f"""v_sub_u32 v{SP}, v{INC2}, v{HD+3}
    v_readlane_b32 s{S_SL}, v{INC2}, 63
    v_add_u32 v{SP+1}, v{SP}, v{HD}
    v_add_u32 v{SP+2}, v{SP}, v{HD+1}
    v_add_u32 v{SP+3}, v{SP}, v{HD+2}
    ds_write_b128 v{T1}, v[{SP}:{SP+3}] offset:{QST}""")
    BV = 8
    a(f"ds_read_b32 v{BV}, v{T2} offset:{QST}\nds_read_b32 v{BV+3}, v{T2} offset:{QST+4}")
    for j in range(NJ):
        if j >= 5: a(f"s_mov_b64 exec, s[{S_M[j]}:{S_M[j]+1}]\ns_cbranch_execz s_qdone")
        a(f"ds_read_b32 v{QV+j}, v{HA+j} offset:{QST}")
    stamp(a, 8)
    a(f"""s_qdone:
    s_cmp_gt_u32 s{S_SL}, {oi("slotcap", SLOTCAP)}
    s_cbranch_scc1 s_ovf
    s_waitcnt lgkmcnt(0)""")
    for j in range(NJ):
        a(f"s_mov_b64 exec, s[{S_M[j]}:{S_M[j]+1}]")
        if j >= 4: a("s_cbranch_execz s_scatdone")
        a(f"""v_add_lshl_u32 v{HA+j}, v{QV+j}, v{RK+j}, 2
        v_add_lshl_u32 v{QV+j}, v{QV+j}, v{RK+j}, 1
        v_add_u32 v{RK+j}, {64*j}, v{PRE if 64*j < NE else LEN}
        ds_write_b32 v{HA+j}, v{IDW+j} offset:{ROW}
        ds_write_b16 v{QV+j}, v{RK+j} offset:{EAD}""")
    a.c("node threads: end-of-node flags and the 16 wave boundaries")
    a(f"""s_scatdone:
    s_mov_b64 exec, -1
    s_cmp_ge_u32 s{S_W}, 3
    s_cbranch_scc1 s_fin
    v_cvt_f32_u32 v{T0}, s{S_SL}
    v_cmp_gt_u32 vcc, s{S_NV}, v0
    v_rcp_f32 v{T0}, v{T0}
    s_mov_b64 exec, vcc
    v_cvt_f32_u32 v{BV}, v{BV}
    v_cvt_f32_u32 v{BV+1}, v{BV+3}
    v_mul_f32 v{T0}, 0x41800000, v{T0}
    v_lshrrev_b32 v{T3}, 2, v{BV+3}
    v_cmp_eq_u32 vcc, s{S_SL}, v{BV+3}
    v_mul_f32 v{BV}, v{BV}, v{T0}
    v_mul_f32 v{BV+1}, v{BV+1}, v{T0}
    ds_write_b8 v{T3}, v{ONE} offset:{FLG-1}
    v_cvt_u32_f32 v{BV}, v{BV}
    v_cvt_u32_f32 v{BV+1}, v{BV+1}
    v_min_u32 v{BV}, 15, v{BV}
    v_min_u32 v{BV+1}, 15, v{BV+1}
    v_add_u32 v{BV+2}, 1, v0
    v_cndmask_b32 v{BV+1}, v{BV+1}, 16, vcc
    s_bnd:
    v_cmp_lt_u32 vcc, v{BV}, v{BV+1}
    s_and_b64 exec, exec, vcc
    s_cbranch_scc0 s_fin
    v_add_u32 v{BV}, 1, v{BV}
    v_lshlrev_b32 v{T3}, 3, v{BV}
    ds_write_b64 v{T3}, v[{BV+2}:{BV+3}] offset:{BND}
    s_branch s_bnd
    s_ovf:
    s_mov_b64 exec, 1
    ds_write_b32 v{CB}, v{ONE} offset:{C_OVF}
    s_fin:""")
    arrive(a, C_GO)
    stamp(a, 9)
    a.c("wave 0 polls the 64 table flags of its slice")
    a(f"""s_cmp_lg_u32 s{S_W}, 0
    s_cbranch_scc1 k_join
    s_lshl_b32 s{S_Y}, s{S_S}, {6+FSH}
    s_add_u32 s{S_Y}, s{S_Y}, {WS_FL:#x}
    v_lshl_add_u32 v2, v{LANE}, {FSH}, s{S_Y}
    v_mov_b32 v3, 0x100""")
    wait(a, C_D, 4)
    if oi("fdel", 8): a(f"s_sleep {oi('fdel', 8)}")
    a(f"global_load_dwordx2 v[4:5], v2, s[{P_WS}:{P_WS+1}] sc1")
    flag_poll(a, "s_fp", 2, 4, f"s[{TAG}:{TAG+1}]", oi("fsl", 4))
    arrive(a, C_GO, 3)
    a("s_branch k_join")

def g_role(a):
    R_X, R_GW, R_VW, R_UW, R_O = RA, RB, RC, RD, RE
    BF, ACC_, AR, CO = 0, 64, 96, 112
    XR, OA, CA, SA, CV, XA_ = T1, TID, [T2, T3], LANE, T0, T3
    WA0, WA1, BA, U0, U1, U2 = 96, 97, 98, 99, 100, 101
    SP0, SP1, SXL, SXB, SG8 = S_T, S_BASE, S_N0, S_N1, S_SL
    a("g_role:")
    a.c("workgroup 0, wave 15: first touch of the two probe lines")
    a(f"""s_sub_u32 s{S_X}, s{S_W}, 15
    s_or_b32 s{S_FIRST}, s{S_X}, s2
    s_cbranch_scc1 g_nopr0
    s_mov_b32 s{S_X}, {W_PR:#x}
    s_mov_b32 s{S_Y}, {W_PR + 0x2000:#x}
    s_load_dword s{S_FO}, s[{P_WS}:{P_WS+1}], s{S_X} glc
    s_load_dword s{S_FO}, s[{P_WS}:{P_WS+1}], s{S_Y} glc
    g_nopr0:""")
    nrow = 8 if OPT.get("map", "4") == "4" else 16
    a.c("touch a distinct part of this slice's weights (fills this die's L2): wave 8 gate rows, wave 9 v/u rows")
    a(f"""s_cmp_ge_u32 s{S_W}, 10
    s_cbranch_scc1 g_nowpf
    s_lshr_b32 s{S_Y}, s2, {3 if nrow == 8 else 4}
    s_mul_i32 s{S_Y}, s{S_Y}, {nrow*512}
    s_lshl_b32 s{S_X}, s{S_S}, 7
    s_add_u32 s{S_Y}, s{S_Y}, s{S_X}
    v_lshl_add_u32 v{U1}, v{LANE}, 9, s{S_Y}
    s_mov_b64 exec, {(1 << nrow) - 1:#x}
    s_cmp_eq_u32 s{S_W}, 8
    s_cbranch_scc0 g_wpf2
    global_load_dword v5, v{U1}, s[{P_GW}:{P_GW+1}]
    v_add_u32 v{U2}, {256*512}, v{U1}
    global_load_dword v6, v{U2}, s[{P_GW}:{P_GW+1}]
    s_branch g_wpf3
    g_wpf2:
    global_load_dword v5, v{U1}, s[{P_VW}:{P_VW+1}]
    global_load_dword v6, v{U1}, s[{P_UW}:{P_UW+1}]
    g_wpf3:
    s_mov_b64 exec, -1
    g_nowpf:""")
    a(f"s_and_b32 s{S_G}, s{S_W}, 3\ns_and_b32 s{SG8}, s{S_W}, 7")
    srd(a, R_GW, P_GW, 0, 528 * 512)
    srd(a, R_VW, P_VW, 0, 256 * 512)
    a(f"""v_lshrrev_b32 v{U0}, 3, v{LANE}
    v_and_b32 v{U1}, 2, v{U0}
    v_and_b32 v{U2}, 7, v{LANE}
    v_xor_b32 v{U1}, v{U1}, v{U2}
    v_lshlrev_b32 v{U1}, 4, v{U1}
    v_lshl_add_u32 v{WA0}, v{U0}, 9, v{U1}
    v_xor_b32 v{WA1}, 64, v{WA0}""")
    srd(a, R_UW, P_UW, 0, 256 * 512)
    srd(a, R_X, P_X, 0, L.N * 512)
    if "xp" in OPT:
        if "stag" in OPT: a(f"s_and_b32 s{S_X}, s2, {oi('stag', 1) << 3}\ns_cbranch_scc1 g_noxp")
        a(f"""s_cmp_ge_u32 s{SG8}, {oi("xp", 2)}
        s_cbranch_scc1 g_noxp
        v_lshlrev_b32 v{U1}, 7, v{LANE}
        s_mul_i32 s{S_X}, s{S_R}, {L.RN*512}
        s_lshl_b32 s{S_Y}, s{SG8}, 13
        s_add_u32 s{S_X}, s{S_X}, s{S_Y}
        buffer_load_dword v7, v{U1}, s[{R_X}:{R_X+3}], s{S_X} offen
        g_noxp:""")
    if "xq" in OPT:
        n = oi("xq", 4)
        per = 640 // n // 4
        a(f"""s_cmp_lt_u32 s{S_W}, 12
        s_cbranch_scc1 g_noxq
        v_mul_u32_u24 v{U1}, {128*n}, v{LANE}
        s_mul_i32 s{S_X}, s{S_R}, {L.RN*512}
        s_mul_i32 s{S_Y}, s{S_G}, {20480}
        s_add_u32 s{S_X}, s{S_X}, s{S_Y}
        s_and_b32 s{S_Y}, s{S_S}, {n-1}
        s_lshl_b32 s{S_Y}, s{S_Y}, 7
        s_add_u32 s{S_X}, s{S_X}, s{S_Y}""")
        for k in range(0, per, 64):
            m = min(64, per - k)
            if m < 64: a(f"s_mov_b32 exec_lo, {min(0xffffffff, (1 << min(m, 32)) - 1):#x}\ns_mov_b32 exec_hi, {((1 << max(m-32, 0)) - 1):#x}")
            a(f"buffer_load_dword v5, v{U1}, s[{R_X}:{R_X+3}], s{S_X} offen\ns_add_u32 s{S_X}, s{S_X}, {64*128*n}")
        a("s_mov_b64 exec, -1\ng_noxq:")
    a(f"""
    v_lshrrev_b32 v{U0}, 5, v{LANE}
    v_xor_b32 v{U1}, v{U0}, v{LANE}
    v_lshlrev_b32 v{XA_}, 4, v{U1}
    s_lshr_b32 s{S_NT}, s2, 3
    s_and_b32 s{S_NT}, s{S_NT}, {oi("rot", 31)}
    s_xor_b32 s{S_NT}, s{S_NT}, s{SG8}
    s_lshl_b32 s{S_X}, s{S_NT}, 12
    s_lshl_b32 s{S_NT}, s{S_NT}, 10
    s_lshl_b32 s{S_Y}, s{S_S}, 7
    s_add_u32 s{S_X}, s{S_X}, s{S_Y}
    s_lshl_b32 s{S_Z}, s{SG8}, 10
    s_mul_i32 s{SXB}, s{S_R}, {L.RN*512}
    s_add_u32 s{S_Q0}, s{SXB}, s{S_Z}
    s_mul_i32 s{SXL}, s{SG8}, {XP}
    s_barrier""")
    a.c("which 8 KB parity of the workspace is near this half of the chip; published with the launch nonce")
    a(f"""s_cmp_lg_u32 s{S_FIRST}, 0
    s_cbranch_scc1 g_nopr
    s_mov_b32 s{S_BASE}, -1
    s_mov_b32 s{S_RO}, -1
    s_waitcnt lgkmcnt(0)
    s_memtime s[96:97]
    s_waitcnt lgkmcnt(0)""")
    for r in range(oi("npr", 2)):
        for o, acc, t0, t1 in ((0, S_BASE, 96, 98), (0x2000, S_RO, 98, 96)):
            a(f"""s_mov_b32 s{S_Y}, {W_PR + o:#x}
            s_load_dword s{S_FO}, s[{P_WS}:{P_WS+1}], s{S_Y} glc
            s_waitcnt lgkmcnt(0)
            s_memtime s[{t1}:{t1+1}]
            s_waitcnt lgkmcnt(0)
            s_sub_u32 s{S_Y}, s{t1}, s{t0}
            s_min_u32 s{acc}, s{acc}, s{S_Y}""")
    if "prdbg" in OPT: a(f"s_mov_b32 s98, s{S_BASE}\ns_mov_b32 s99, s{S_RO}\ns_atomic_swap_x2 s[98:99], s[{P_DBG}:{P_DBG+1}], 0x80")
    a(f"""s_memrealtime s[96:97]
    s_cmp_lt_u32 s{S_BASE}, s{S_RO}
    s_cselect_b32 s{S_Y}, 1, 0
    s_waitcnt lgkmcnt(0)""")
    if "pol" in OPT: a(f"s_xor_b32 s{S_Y}, s{S_Y}, {oi('pol', 0)}")
    a(f"""s_and_b32 s{S_Y}, s{S_Y}, 1
    s_or_b32 s{S_Y}, s{S_Y}, 2
    s_lshl_b32 s{S_Y}, s{S_Y}, 30
    s_and_b32 s97, s97, 0x3fffffff
    s_or_b32 s97, s97, s{S_Y}
    s_atomic_swap_x2 s[96:97], s[{P_DBG}:{P_DBG+1}], 0x20
    g_nopr:""")
    def x0():
        for j in range(2):
            a(f"""s_add_u32 m0, s{SXL}, {X0 + j*8*XP}
            s_add_u32 s{S_Y}, s{S_Q0}, {j*8192}
            buffer_load_dwordx4 v{XA_}, s[{R_X}:{R_X+3}], s{S_Y} offen lds""")
    if "x0f" in OPT: x0()
    for m, (sr, row0) in enumerate(((R_GW, 256), (R_VW, 0), (R_GW, 0), (R_UW, 0))):
        for j in range(4):
            a(f"""s_xor_b32 m0, s{S_NT}, {m*32768 + j*8192}
            s_xor_b32 s{S_Y}, s{S_X}, {j*32768 + row0*512}
            buffer_load_dwordx4 v{WA0 + m % 2}, s[{sr}:{sr+3}], s{S_Y} offen lds""")
            if oi("ww", 0): a(f"s_waitcnt vmcnt({oi('ww', 0)-1})")
    if "x0a" in OPT:
        a(f"s_cmp_lt_u32 s{S_W}, 12\ns_cbranch_scc1 g_nox0")
        x0()
        a(f"s_sub_u32 s{SXL}, s{SXL}, {4*XP}\ns_sub_u32 s{S_Q0}, s{S_Q0}, 4096")
        x0()
        a("g_nox0:")
    elif "x0f" not in OPT: x0()
    arrive(a, C_I)
    if "touch" in OPT:
        a(f"""s_cmp_lg_u32 s{S_W}, 14
        s_cbranch_scc1 g_notouch
        s_load_dword s{S_NT}, s[{P_OUT}:{P_OUT+1}], s{SXB}
        s_mul_i32 s{S_X}, s{S_S}, {L.TBL_SL}""")
        for k in range(2): a(f"s_load_dword s{S_NT}, s[{P_WS}:{P_WS+1}], s{S_X}\ns_add_u32 s{S_X}, s{S_X}, {L.TBL_SL//2 - 64}")
        a(f"s_load_dword s{S_NT}, s[{P_WS}:{P_WS+1}], s{S_X}")
        for off in (L.WS_EA + 0x1ff000, L.WS_EA + 0x3ff000, L.WS_EA + 0x5ff000, L.WS_ID + 0xff000):
            a(f"s_mov_b32 s{S_X}, {off:#x}\ns_load_dword s{S_NT}, s[{P_WS}:{P_WS+1}], s{S_X}")
        a("g_notouch:")
    a.c("weight-fragment address: lane = (kh, m, r, c)")
    a(f"""v_bfe_u32 v{U1}, v{LANE}, 2, 2
    v_lshl_add_u32 v{U1}, v{U0}, 3, v{U1}
    v_lshlrev_b32 v{BA}, 7, v{U1}
    v_bfe_u32 v{U1}, v{LANE}, 3, 2
    v_xor_b32 v{U1}, s{S_G}, v{U1}
    v_lshl_add_u32 v{BA}, v{U1}, 5, v{BA}
    v_and_b32 v{U1}, 1, v{LANE}
    v_lshl_add_u32 v{BA}, v{U1}, 4, v{BA}
    v_bfe_u32 v{U2}, v{LANE}, 1, 1
    v_lshl_add_u32 v{BA}, v{U2}, 3, v{BA}
    v_bfe_u32 v{U2}, v{LANE}, 4, 1
    v_lshl_add_u32 v{BA}, v{U2}, 15, v{BA}
    s_cmp_ge_u32 s{S_W}, 12
    s_cselect_b32 s{S_Y}, 0x10000, 0
    v_add_u32 v{BA}, s{S_Y}, v{BA}
    s_mov_b32 s{S_Y}, {RINGS[0]}
    s_cselect_b32 s{S_Y}, {XAU}, s{S_Y}
    s_lshl_b32 s{S_X}, s{S_G}, 6
    s_add_u32 s{S_Y}, s{S_Y}, s{S_X}
    v_xor_b32 v{U2}, v{U0}, v{U1}
    v_lshlrev_b32 v{U2}, 4, v{U2}
    v_lshl_add_u32 v{XR}, v{U1}, 9, v{U2}
    v_bfe_u32 v{U1}, v{LANE}, 1, 4
    v_mul_u32_u24 v{U1}, {XP}, v{U1}
    v_add_u32 v{XR}, v{XR}, v{U1}
    v_add_u32 v{XR}, {X0}, v{XR}
    v_and_b32 v{U1}, 31, v{LANE}
    v_mul_u32_u24 v{U1}, {RS}, v{U1}
    v_lshl_add_u32 v{U1}, v{U0}, 5, v{U1}
    v_add_u32 v{OA}, s{S_Y}, v{U1}
    s_lshl_b32 s{S_Z}, s{S_G}, 10
    s_add_u32 s{SXB}, s{SXB}, s{S_Z}
    s_mul_i32 s{SXL}, s{S_G}, {XP}
    v_lshl_add_u32 v{SA}, v{LANE}, 4, s{S_Z}
    v_lshrrev_b32 v{U1}, 8, v{SA}
    v_lshl_add_u32 v{U1}, v{U1}, 4, v{SA}
    v_add_u32 v{CA[0]}, {RINGS[0]}, v{U1}
    s_and_b32 s{S_Y}, s{S_R}, 31
    s_mul_i32 s{S_NQ}, s{S_Y}, {5*16384}
    s_cmp_lt_u32 s{S_R}, 32
    s_cselect_b32 s{S_FO}, 0x2000, 0
    s_add_u32 s{S_NQ}, s{S_NQ}, s{S_FO}
    s_lshl_b32 s{S_X}, s{S_S}, 22""")
    srd(a, R_O, P_WS, 0, 160 * 16384, soff=S_X)
    common_srds(a)
    a(f"s_mov_b32 s{SP0}, 0x07060100\ns_mov_b32 s{SP1}, 0x07060302\n" + ("s_waitcnt vmcnt(4)\ns_cmp_ge_u32 s%d, 12\ns_cbranch_scc1 g_ww\ns_waitcnt vmcnt(0)\ng_ww:" % S_W if "x0a" in OPT else f"s_waitcnt vmcnt({0 if 'x0f' in OPT else 2})"))
    stamp(a, 1)
    if "xpf" in OPT:
        half = OPT.get("map", "4") == "2"
        a(f"s_cmp_ge_u32 s{S_W}, 12\ns_cbranch_scc1 g_noxpf")
        wait(a, C_I, 8)
        a(f"""v_mbcnt_lo_u32_b32 v{U1}, -1, 0
        v_mbcnt_hi_u32_b32 v{U1}, -1, v{U1}
        v_lshlrev_b32 v{U1}, 7, v{U1}
        s_mul_i32 s{S_X}, s{S_R}, {L.RN*512}
        s_lshl_b32 s{S_Y}, s{S_G}, 14
        s_add_u32 s{S_X}, s{S_X}, s{S_Y}
        s_add_u32 s{S_X}, s{S_X}, 16384""")
        if half:
            a(f"""s_and_b32 s{S_Y}, s{S_S}, 1
            s_lshl_b32 s{S_Y}, s{S_Y}, 13
            s_add_u32 s{S_X}, s{S_X}, s{S_Y}
            buffer_load_dword v{CO}, v{U1}, s[{R_X}:{R_X+3}], s{S_X} offen""")
        else:
            a(f"""buffer_load_dword v{CO}, v{U1}, s[{R_X}:{R_X+3}], s{S_X} offen
            s_add_u32 s{S_X}, s{S_X}, 8192
            buffer_load_dword v{CO}, v{U1}, s[{R_X}:{R_X+3}], s{S_X} offen""")
        a("g_noxpf:")
    sync(a, C_W)
    for ks in range(16):
        for hf in range(2):
            r = BF + ks*4 + hf*2
            a(f"ds_read_b64_tr_b16 v[{r}:{r+1}], v{BA} offset:{ks*2048 + hf*512}")
    if "xpf" in OPT: a(f"s_cmp_lt_u32 s{S_W}, 12\ns_cbranch_scc1 g_nw\ns_waitcnt vmcnt(0)\ng_nw:")
    elif "fx0" not in OPT: a("s_waitcnt vmcnt(0)")
    sync(a, C_F)
    stamp(a, 2)
    K = 0x8000 + (L.HVEXP << 23)
    ARAT, RDAT = oi("arat", 4), oi("rdat", 8)

    XW = oi("xw", 4)
    SIG = [int(y) for y in OPT.get("sig", "3,6,9,12").split(",")]
    HOLD = oi("hold", 30)
    def xst(st):
        for j in range(4):
            a(f"""s_add_u32 m0, s{SXL}, {XS[st] + j*4*XP}
            s_add_u32 s{S_Y}, s{SXB}, {st*16384 + j*4096}
            buffer_load_dwordx4 v{XA_}, s[{R_X}:{R_X+3}], s{S_Y} offen lds""")
    NR_, LA_ = 6, 5
    def stream(P):
        ds = []
        def dsop(tag, ins): a(ins); ds.append(tag)
        def dswait(tag):
            i = max(k for k, t in enumerate(ds) if t == tag)
            a(f"s_waitcnt lgkmcnt({min(15, len(ds) - 1 - i)})")
        def rdA(n):
            st, ks = divmod(n, 16)
            if n == 16: a(f"v_add_u32 v{XR}, {(XT - X0) & 0xffffffff:#x}, v{XR}")
            r = AR + (n % NR_) * 4
            dsop(("A", n), f"ds_read_b128 v[{r}:{r+3}], v{XR} offset:{max(st-1, 0)*XST + ks*32}")
        def pack(st):
            x = ACC_ + (st % 2) * 16; h = x + 8
            o = [f"v_mul_f32 v{x+r}, 0xbfb8aa3b, v{x+r}" for r in range(8)]
            if not P:
                o += [f"v_mul_f32 v{h+r}, 0x49800000, v{h+r}" for r in range(8)]
                return o + [f"v_cvt_pk_bf16_f32 v{h+r}, v{x+r}, v{h+r}" for r in range(8)]
            o += [f"v_add_u32 v{h+r}, {K:#x}, v{h+r}" for r in range(8)]
            o += [f"v_cvt_pk_bf16_f32 v{x+r}, v{x+r}, v{x+r+1}" for r in range(0, 8, 2)]
            o += [f"v_sub_u32_sdwa v{h+r}, v{h+r}, v{x+(r&6)} dst_sel:DWORD dst_unused:UNUSED_PAD src0_sel:DWORD src1_sel:WORD_{r&1}" for r in range(8)]
            o += [f"v_perm_b32 v{h+r}, v{h+r}, v{x+(r&6)}, s{SP1 if r&1 else SP0}" for r in range(8)]
            return o
        def wr(st):
            h = ACC_ + (st % 2) * 16 + 8
            for q in range(2): dsop(("W", st), f"ds_write_b128 v{OA}, v[{h+4*q}:{h+4*q+3}] offset:{16*q}")
            d = (RINGS[(st+1) % 2] - RINGS[st % 2]) if P else STG
            if st < 4: a(f"v_add_u32 v{OA}, {d & 0xffffffff:#x}, v{OA}")
        def copy_rd(st, r=CO):
            for q in range(2): dsop(("C", st), f"ds_read_b128 v[{r+4*q}:{r+4*q+3}], v{CA[st%2]} offset:{q*16*RS}")
        def copy_st(st, r=CO):
            a(f"""s_add_u32 s{S_X}, s{S_NQ}, {st*16384}
            s_lshr_b32 s{S_Y}, s{S_X}, 8
            s_and_b32 s{S_Y}, s{S_Y}, 0x2000
            s_xor_b32 s{S_X}, s{S_X}, s{S_Y}
            s_add_u32 s{S_Y}, s{S_X}, 4096""")
            dswait(("C", st))
            for q in range(2):
                a(f"buffer_store_dwordx4 v[{r+4*q}:{r+4*q+3}], v{SA}, s[{R_O}:{R_O+3}], s{S_X if q == 0 else S_Y} offen{SC}")
        def darr(tag, off):
            a("s_mov_b64 exec, 1")
            dsop(tag, f"ds_add_u32 v{CB}, v{ONE} offset:{off}")
            a("s_mov_b64 exec, -1")
        for n in range(LA_): rdA(n)
        pend = []
        for n in range(80):
            st, ks = divmod(n, 16)
            c_off = C_X + 4 * st
            if not P:
                for k_, at in enumerate(SIG):
                    if at == n:
                        xs = k_ + 1
                        a(f"s_waitcnt vmcnt({4 * (min(4, xs + XW - 1) - xs)})\ns_mov_b64 exec, 1")
                        dsop(("X", xs), f"ds_add_u32 v{CB}, v{T2} offset:{C_X + 4*k_}")
                        a("s_mov_b64 exec, -1")
                        if xs + XW <= 4: xst(xs + XW)
                        if "gap" in OPT and xs < 4: spin(a, C_PB, LANE, S_X, n=4 * (xs + 1), sl=1, first=False)
                if n == HOLD + 1: spin(a, C_S4, LANE, S_X, n=8, sl=1, first=False)
                if n == HOLD: spin(a, (C_X + 4 * oi("as", 5)) if oi("as", 5) < 5 else C_R2, LANE, S_X, n=4, sl=1, mask=0xf, first=False)
            if P and n == 33:
                wait(a, C_S3, 1, sl=1)
                a(f"""ds_read_b32 v{CV}, v{CB} offset:{C_TAG+4}
                s_waitcnt lgkmcnt(0)
                v_readfirstlane_b32 s{S_RO}, v{CV}
                s_bfe_u32 s{S_RO}, s{S_RO}, 0x1001e
                s_lshl_b32 s{S_RO}, s{S_RO}, 21
                s_add_u32 s{R_O}, s{R_O}, s{S_RO}
                s_addc_u32 s{R_O+1}, s{R_O+1}, 0""")
            if P and "gap" in OPT and ks == oi("gap", 9) and st < 4: darr(("B", st), C_PB)
            if not P and "gap" in OPT and n == 0: spin(a, C_PB, LANE, S_X, n=4, sl=1, first=False)
            if ks == ARAT: darr(("S", st), c_off)
            if ks == RDAT: dsop(("R", st), f"ds_read_b32 v{CV}, v{CB} offset:{c_off}")
            if ks == 16 - LA_:
                dswait(("R", st))
                a(f"v_readfirstlane_b32 s{S_X}, v{CV}")
                if P: spin(a, c_off, CV, S_X, n=(0x404 if st < 4 else 4), sl=1, mask=0xf0f)
                elif st < 2: spin(a, c_off, CV, S_X, n=0x400, sl=1, mask=0xf00)
                else: spin(a, c_off, CV, S_X, n=(0x444 if st < 4 else 0x44), sl=1, mask=0xfff)
                if st == 1: stamp(a, 4)
                if st == 3: stamp(a, 5)
            cr = ACC_ + ((st + 1) % 2) * 16
            if ks == 14 and P:
                if st == 2 and "xpf" in OPT: a("s_waitcnt vmcnt(0)")
                if st >= 2: copy_rd(st - 2, cr)
                if st == 4: darr("R2", C_R2)
            if n + LA_ < 80: rdA(n + LA_)
            if n % 2 == 0: dswait(("A", n + 1))
            r = AR + (n % NR_) * 4
            c = ACC_ + (st % 2) * 16
            a(f"v_mfma_f32_32x32x16_bf16 v[{c}:{c+15}], v[{BF+ks*4}:{BF+ks*4+3}], v[{r}:{r+3}], " + ("0" if ks == 0 else f"v[{c}:{c+15}]"))
            if ks == 2 and pend: a("s_nop 5")
            if ks >= 2:
                for _ in range(3 if P else 2):
                    if pend: a(pend.pop(0))
            if ks == 14 and st >= 1:
                assert not pend
                wr(st - 1)
            if P and ks == 15 and st >= 2: copy_st(st - 2, cr)
            if ks == 15: pend = pack(st)
        if P: a(f"ds_read_b32 v{CV}, v{CB} offset:{C_R2}\ns_nop 10")
        else: a("s_nop 11")
        for x in pend: a(x)
        if P:
            a(f"s_waitcnt lgkmcnt(0)\nv_readfirstlane_b32 s{S_X}, v{CV}")
            spin(a, C_R2, CV, S_X, n=4)
        wr(4)
        stamp(a, 6)
        if P:
            sync(a, C_E, n=4)
            copy_rd(3, AR + 8); copy_rd(4, AR)
            copy_st(3, AR + 8); copy_st(4, AR)
            arrive(a, C_PE)

    a(f"s_cmp_ge_u32 s{S_W}, 12\ns_cbranch_scc1 a_role")
    a(f"v_add_u32 v{CA[1]}, {(RINGS[1]-RINGS[0]) & 0xffffffff:#x}, v{CA[0]}")
    if "fx0" in OPT: wait(a, C_MK, 4, sl=0)
    if "pprio" in OPT: a(f"s_setprio {OPT['pprio']}")
    stamp(a, 3)
    stream(True)
    a(f"s_setprio {oi('ptail', 3)}")
    stamp(a, 7)
    a(f"""v_mbcnt_lo_u32_b32 v{LANE}, -1, 0
    v_mbcnt_hi_u32_b32 v{LANE}, -1, v{LANE}
    s_lshl_b32 s{S_Y}, s{S_G}, {6+FSH}
    s_add_u32 s{S_Y}, s{S_Y}, {WS_FE:#x}
    v_lshl_add_u32 v2, v{LANE}, {FSH}, s{S_Y}
    global_load_dwordx2 v[4:5], v2, s[{P_WS}:{P_WS+1}] sc1
    ds_read_b32 v13, v{CB} offset:{C_IDX}
    s_lshl_b32 s{S_X}, s{S_G}, 11
    s_add_u32 s{S_X}, s{S_X}, s{S_RO}
    s_add_u32 s{S_X}, s{S_X}, s{S_FO}""")
    srd(a, RD, P_WS, W_EA, (23 << 20) // 16, stride=16, soff=S_X)
    a(f"""v_and_b32 v3, 62, v{LANE}
    s_lshl_b32 s{S_X}, s{S_G}, 11
    s_add_u32 s{S_X}, s{S_X}, {MARK2}
    v_add_u32 v3, s{S_X}, v3
    v_lshl_add_u32 v6, s{S_G}, 4, v{CB}
    s_waitcnt lgkmcnt(0)
    v_readfirstlane_b32 s{S_NT}, v13
    s_cmp_ge_u32 s{S_NT}, 8
    s_cbranch_scc1 p_idx""")
    a.c("indices not ready yet: publish the table first")
    wait(a, C_S3, 1)
    a(f"ds_read_b64 v[0:1], v{CB} offset:{C_TAG}\ns_waitcnt vmcnt(0)")
    publish_done(a, "p_pd0", 0, C_D, 4, False)
    wait(a, C_IDX, 8)
    PX = 16
    a(f"p_idx:\nds_read_b64 v[0:1], v{CB} offset:{C_TAG}\nds_read_b128 v[8:11], v6 offset:{C_BT}")
    for h in range(2):
        for k in range(NK): a(f"ds_read_u16 v{PX+NK*h+k}, v3 offset:{1024*h + 64*k}")
    arrive(a, C_P2)
    a("s_waitcnt lgkmcnt(0)")
    SB, ST = [S_BASE, S_N0], [S_T, S_N1]
    for h in range(2): a(f"v_readfirstlane_b32 s{SB[h]}, v{8+2*h}\nv_readfirstlane_b32 s{ST[h]}, v{9+2*h}")
    k0 = NE // 32
    def cvt(r): return f"v_lshl_add_u32 v{r}, v{r}, 1, v{LANE}\nv_and_b32 v7, 0xffffffc0, v{r}\nv_mad_u32_u24 v{r}, v7, 15, v{r}"
    for k in range(k0): a(cvt(PX+k))
    wait(a, C_P2, 4, sl=0)
    wait(a, C_X + 4, 0x40, mask=0xf0, sl=0)
    a(f"s_cmp_lt_u32 s{S_NT}, 8\ns_cbranch_scc1 p_pd1\ns_waitcnt vmcnt(1)")
    publish_done(a, "p_pd1", 0, C_D, 4, False)
    flag_poll(a, "p_fp", 2, 4, "v[0:1]", oi("psl", 2))
    EW = oi("ew", 12)
    a(f"s_mul_i32 s{S_Z}, s{S_G}, {2*NE*32}")
    for h in range(2):
        for k in range(k0):
            if h: a(cvt(PX+NK+k))
            a(f"""s_add_u32 m0, s{S_Z}, {EA_E + h*NE*32 + 1024*k}
            s_mov_b32 s{S_Y}, {16384*k + 1024*h}
            s_waitcnt vmcnt({EW-1})
            buffer_load_dwordx4 v{PX+NK*h+k}, s[{RD}:{RD+3}], s{S_Y} idxen{SC} lds""")
    for hh in range(2):
        for k in range(k0, 10): a(cvt(PX+NK*hh+k))
    stamp(a, 9)
    a("s_setprio 0")
    ldconsts(a)
    arrive(a, C_AE)
    wait(a, C_AE, 8, sl=2)
    a("s_setprio 3")
    for h in range(2):
        a(f"s_lshl_b32 s{S_Z}, s{SB[h]}, 5")
        for k in range(k0, NK):
            a(f"""s_cmp_gt_u32 s{ST[h]}, {32*k}
            s_cbranch_scc0 p_ld{h}
            {cvt(PX+NK*h+k) if k >= 10 else ""}
            s_add_u32 m0, s{S_Z}, {EA + 1024*(k-k0)}
            s_mov_b32 s{S_X}, {16384*k + 1024*h}
            s_waitcnt vmcnt({EW-1})
            buffer_load_dwordx4 v{PX+NK*h+k}, s[{RD}:{RD+3}], s{S_X} idxen{SC} lds""")
        a(f"p_ld{h}:")
    a(f"v_mov_b32 v3, 0x1000")
    arrive(a, C_GO, 3)
    a("s_waitcnt vmcnt(0)")
    arrive(a, C_RDY)
    a("s_branch k_join")
    a("a_role:")
    a(f"v_mov_b32 v{T2}, 0x100")
    if "fx0" in OPT:
        xst(1)
        a("s_waitcnt vmcnt(4)")
        arrive(a, C_MK)
        for st in range(2, 1 + XW): xst(st)
        arrive(a, C_XI)
        wait(a, C_MK, 4, sl=0)
    else:
        for st in range(1, 1 + XW): xst(st)
        arrive(a, C_XI)
    a(f"v_mov_b32 v{ONE}, 16")
    if "aprio" in OPT: a(f"s_setprio {OPT['aprio']}")
    stamp(a, 3)
    stream(False)
    a(f"v_mov_b32 v{ONE}, 1")
    a(f"v_mbcnt_lo_u32_b32 v{LANE}, -1, 0\nv_mbcnt_hi_u32_b32 v{LANE}, -1, v{LANE}")
    ldconsts(a)
    arrive(a, C_AE)
    a("s_setprio 0")
    stamp(a, 7)

def rd_ad(t): return [f"ds_read_b128 v[{AD+4*q}:{AD+4*q+3}], v{PROW} offset:{ROW + 64*t + 16*q}" for q in range(4)]
def gathers(g): return [f"buffer_load_dword v{g+j}, v{AD+slot_of_reg(j)}, s[{R_TBL}:{R_TBL+3}], 0 offen{'' if 'gplain' in OPT else ' nt' if 'gnt' in OPT else SC}" for j in range(16)]
def rd_eidx(t): return [f"ds_read_u16 v{EIDX}, v{PEAD} offset:{EAD + 32*t}"]
def rd_a():
    return [f"v_lshl_add_u32 v{EADDR}, v{EIDX}, 5, v{KHC}", f"ds_read_b128 v[{A0}:{A0+3}], v{EADDR}"]
def rd_xa(x):
    o = [f"s_mov_b32 m0, s{S_RO}"]
    for k in range(4):
        o += [f"s_bitcmp1_b32 s{S_FR}, {k}", f"ds_read_addtid_b32 v{x+k} offset:{XAU}", f"s_cselect_b32 s{S_X}, {RS}, 0"]
        o += [f"s_add_u32 m0, m0, s{S_X}" if k < 3 else f"s_add_u32 s{S_RO}, m0, s{S_X}"]
    o += [f"s_lshr_b64 s[{S_FR}:{S_FR+1}], s[{S_FR}:{S_FR+1}], 4"]
    return o
def bigs(d, x):
    D = f"v[{d}:{d+15}]"
    return [f"v_mfma_f32_32x32x16_bf16 {D}, v[{A2}:{A2+3}], v[{x}:{x+3}], 0",
            f"v_smfmac_f32_32x32x32_bf16 {D}, v[{A0}:{A0+3}], v[{B0}:{B0+7}], v{IX1}"]
def smalls(d, g):
    return [f"v_smfmac_f32_32x32x32_bf16 v[{d}:{d+15}], v[{SELS[m]}:{SELS[m]+3}], v[{g+8*m}:{g+8*m+7}], v{IX2}" for m in range(2)]
def pk(d, h, cc):
    X = lambda i: f"v[{d+2*i}:{d+2*i+1}]"; H = lambda i: f"v[{h+2*i}:{h+2*i+1}]"; C = f"v[{cc}:{cc+1}]"
    return [f"v_pk_fma_f32 {X(i)}, {X(i)}, {C}, {C} clamp" for i in range(4)] + [
        f"v_pk_mul_f32 {H(0)}, {H(0)}, {X(1)}", f"v_pk_mul_f32 {H(2)}, {H(2)}, {X(3)}",
        f"v_pk_fma_f32 {H(0)}, {H(1)}, {X(0)}, {H(0)}", f"v_pk_fma_f32 {H(2)}, {H(3)}, {X(2)}, {H(2)}",
        f"v_pk_mul_f32 {X(0)}, {X(0)}, {X(1)}", f"v_pk_mul_f32 {X(2)}, {X(2)}, {X(3)}",
        f"v_pk_mul_f32 {X(1)}, {X(0)}, {X(2)}", f"v_pk_mul_f32 {X(3)}, {H(0)}, {X(2)}",
        f"v_pk_fma_f32 {X(3)}, {H(2)}, {X(0)}, {X(3)}"]

NP_ = [120, 124]; DP_ = [122, 126]
def P2(r): return f"v[{r}:{r+1}]"
def seq(d, h, g):
    X = lambda i: P2(d + 2*i); H = lambda i: P2(h + 2*i); N = P2(NP_[g]); D = P2(DP_[g])
    o = [f"v_pk_add_f32 {D}, {X(0)}, 1.0 op_sel_hi:[1,0]", f"v_pk_fma_f32 {N}, {H(0)}, {X(1)}, {H(0)}",
         f"v_pk_fma_f32 {N}, {H(1)}, {D}, {N}", f"v_pk_fma_f32 {D}, {D}, {X(1)}, {D}"]
    for i in (2, 3):
        o += [f"v_pk_fma_f32 {N}, {N}, {X(i)}, {N}", f"v_pk_fma_f32 {N}, {H(i)}, {D}, {N}", f"v_pk_fma_f32 {D}, {D}, {X(i)}, {D}"]
    return o
def safe(d, h, g):
    return [f"v_mov_b32 v{NP_[g]}, 0x30800000", f"v_mov_b32 v{NP_[g]+1}, 0x30800000"] + pk(d, h, NP_[g]) + [f"v_mov_b32 v{d}, 0x4e800000", f"v_mov_b32 v{NP_[g]}, v{d+6}", f"v_mov_b32 v{NP_[g]+1}, v{d+7}",
                       f"v_mul_f32 v{DP_[g]}, v{d}, v{d+2}", f"v_mul_f32 v{DP_[g]+1}, v{d}, v{d+3}"]
def check(lab, ng=2):
    if ng == 2: o = [f"v_fma_f32 v{EADDR}, v{DP_[0]}, v{DP_[0]+1}, v{DP_[1]}", f"v_add_f32 v{EADDR}, v{EADDR}, v{DP_[1]+1}"]
    else: o = [f"v_add_f32 v{EADDR}, v{DP_[0]}, v{DP_[0]+1}"]
    return o + [f"v_cmp_ngt_f32 vcc, 0x57800000, v{EADDR}", f"s_cbranch_vccnz {lab}"]
OOL = []
def accum(a, c, ks, tag):
    for k in ks:
        nx = XA[c] + k + 1 if k < 3 else XA[1 - c]
        body = f"""s_mov_b32 m0, s{S_FO}
        s_add_u32 s{S_FO}, s{S_FO}, {RS}
        ds_write_addtid_b32 v{ACC} offset:{XAU}
        v_and_b32 v{ACC}, 0xffff0000, v{nx}"""
        if "ool" in OPT:
            a(f"""s_bitcmp1_b32 s{S_FF}, {k}
            v_fmac_f32 v{ACC}, v{NP_[k//2]+k%2}, v{DP_[k//2]+k%2}
            s_cbranch_scc1 k2_fl{tag}_{k}
            k2_nofl{tag}_{k}:""")
            OOL.append(f"k2_fl{tag}_{k}:\n{body}\ns_branch k2_nofl{tag}_{k}")
        else:
            a(f"""v_fmac_f32 v{ACC}, v{NP_[k//2]+k%2}, v{DP_[k//2]+k%2}
            s_bitcmp1_b32 s{S_FF}, {k}
            s_cbranch_scc0 k2_nofl{tag}_{k}
            {body}
            k2_nofl{tag}_{k}:""")

def mainloop(a):
    em = lambda ls: [a(x) for x in ls]
    a(f"""k_join:
    s_mov_b32 s{S_FIRST}, 1
    s_mov_b32 s{S_BASE}, 1""")
    if "trace" in OPT: a(f"v_mov_b32 v{CC}, 0\ns_mov_b32 s{ST0+2}, 0")
    if "contig" in OPT:
        a(f"""s_and_b32 s{S_Y}, s{S_W}, 3
        s_lshl_b32 s{S_Y}, s{S_Y}, 2
        s_lshr_b32 s{S_Z}, s{S_W}, 2
        s_add_u32 s{S_Y}, s{S_Y}, s{S_Z}
        s_lshl_b32 s{S_Y}, s{S_Y}, 3""")
    else: a(f"s_lshl_b32 s{S_Y}, s{S_W}, 3")
    a(f"v_mov_b32 v{T1}, s{S_Y}\nv_lshlrev_b32 v{T2}, 4, v{LANE}")
    wait(a, C_GO, 8, mask=0xf)
    a(f"""ds_read_b64 v[0:1], v{T1} offset:{BND}
    ds_read_b64 v[2:3], v{T1} offset:{BND+8}
    ds_read_b32 v5, v{CB} offset:{C_OVF}
    ds_read_b32 v4, v{CB} offset:{C_TAG+4}
    ds_read_b128 v[{B0}:{B0+3}], v{T2} offset:{BW}
    ds_read_b128 v[{B1}:{B1+3}], v{T2} offset:{BW+1024}
    s_waitcnt lgkmcnt(2)
    v_readfirstlane_b32 s{S_N0}, v0
    v_readfirstlane_b32 s{S_Q0}, v1
    v_readfirstlane_b32 s{S_N1}, v2
    v_readfirstlane_b32 s{S_NQ}, v3
    v_lshlrev_b32 v{PROW}, 2, v1
    v_lshl_add_u32 v{PEAD}, v1, 1, v{PEAD}
    s_sub_u32 s{S_NQ}, s{S_NQ}, s{S_Q0}
    s_lshr_b32 s{S_NQ}, s{S_NQ}, 2
    s_lshr_b32 s{S_Q0}, s{S_Q0}, 2
    s_mul_i32 s{S_FO}, s{S_N0}, {RS}
    v_readfirstlane_b32 s{S_Y}, v4
    v_readfirstlane_b32 s{S_X}, v5
    s_bfe_u32 s{S_Y}, s{S_Y}, 0x1001e
    s_lshl_b32 s{S_Y}, s{S_Y}, 21
    s_add_u32 s{R_TBL}, s{R_TBL}, s{S_Y}
    s_addc_u32 s{R_TBL+1}, s{R_TBL+1}, 0
    s_cmp_lg_u32 s{S_X}, 0
    s_cbranch_scc1 k_slow""")
    a(f"""k2_block:
    v_add_u32 v{T2}, s{S_Q0}, v{LANE}""")
    em(rd_ad(0))
    a(f"s_cmp_eq_u32 s{S_NQ}, 0\ns_cbranch_scc1 k2_epi")
    a(f"ds_read_u8 v{T3}, v{T2} offset:{FLG}")
    em(rd_eidx(0))
    a(f"""s_min_u32 s{S_Y}, s{S_NQ}, 64
    s_add_u32 s{S_NT}, s{S_Y}, 3
    s_lshr_b32 s{S_NT}, s{S_NT}, 2
    s_mov_b32 s{S_RO}, s{S_FO}
    v_cmp_gt_u32 vcc, s{S_Y}, v{LANE}
    s_sub_u32 s{S_Y}, s{S_Y}, 1
    s_and_b32 s{S_T}, s{S_Y}, 2
    s_waitcnt lgkmcnt(0)
    v_cmp_ne_u32 s[{S_FF}:{S_FF+1}], 0, v{T3}
    s_and_b64 s[{S_FF}:{S_FF+1}], s[{S_FF}:{S_FF+1}], vcc
    s_mov_b64 s[{S_FR}:{S_FR+1}], s[{S_FF}:{S_FF+1}]
    s_bitset0_b64 s[{S_FR}:{S_FR+1}], s{S_Y}
    s_cmp_eq_u32 s{S_FIRST}, 0
    s_cbranch_scc1 k2_g0""")
    if "gearly" in OPT: wait(a, C_GO, 0x108, mask=0xfff)
    else: wait(a, C_GO, 0x4108)
    a("k2_g0:")
    em(gathers(G[0])); em(rd_ad(1))
    a(f"s_cmp_eq_u32 s{S_FIRST}, 0\ns_cbranch_scc1 k2_nobar")
    wait(a, C_RDY, 4)
    a(f"""s_mov_b32 s{S_FIRST}, 0
    k2_nobar:
    s_setprio 3""")
    stamp(a, 10)
    a("s_waitcnt lgkmcnt(0)")
    em(rd_a()); em(rd_eidx(1)); em(rd_xa(XA[0]))
    em(gathers(G[1])); em(rd_ad(2))
    a("s_waitcnt lgkmcnt(4)")
    em(bigs(Dd[0], XA[0]))
    a(f"s_cmp_eq_u32 s{S_BASE}, 0\ns_cbranch_scc1 k2_keep\nv_and_b32 v{ACC}, 0xffff0000, v{XA[0]}\nk2_keep:\ns_lshr_b32 s{S_BASE}, s{S_FF+1}, 31")
    em(rd_a()); em(rd_eidx(2)); em(rd_xa(XA[1]))
    a("s_waitcnt vmcnt(16)")
    em(smalls(Dd[0], G[0]))
    stamp(a, 11)
    a(f"s_nop 9\ns_cmp_eq_u32 s{S_NT}, 1\ns_cbranch_scc1 k2_last0")
    if "al" in OPT: a(f".p2align {OPT['al']}")
    if "pad" in OPT: a("s_nop 0")
    a("k2_loop:")
    rc = [f"v_rcp_f32 v{DP_[k//2]+k%2}, v{DP_[k//2]+k%2}" for k in range(4)]
    for u in range(2):
        c, n = u, 1 - u
        e = [f"v_exp_f32 v{Dd[c]+j}, v{Dd[c]+j}" for j in range(16)]
        b = bigs(Dd[n], XA[n])
        E0 = oi("e0", 4)
        em(e[0:E0] + ["s_waitcnt lgkmcnt(0)", b[0]] + e[E0:E0+4] + [b[1]] + e[E0+4:12])
        if "trace" in OPT: a(f"s_mov_b32 m0, s{S_NT}\ns_nop 0\nv_writelane_b32 v{AD+15}, s{ST0+2}, m0")
        em(rd_a()); em(rd_eidx(3 + u)); em(e[12:16])
        em(inter(seq(Dd[c], G[c], 0), seq(Dd[c] + 8, G[c] + 8, 1)))
        if "trace" in OPT: a(f"s_memrealtime s[{ST0+2}:{ST0+3}]")
        if "nochk" not in OPT: em(check(f"k2_safe{u}"))
        a(f"k2_ok{u}:\ns_cmp_le_u32 s{S_NT}, 2\ns_cbranch_scc1 k2_noload{u}")
        if "wfirst" in OPT: a("s_waitcnt vmcnt(0)")
        em(gathers(G[c])[:oi("ng", 16)])
        em(rd_ad(3 + u))
        a(f"s_waitcnt vmcnt({oi('ng', 16)})\nk2_loaded{u}:")
        sm = smalls(Dd[n], G[n])
        em([sm[0]] + rc[:3] + [sm[1]] + rc[3:])
        accum(a, c, range(4), str(u))
        em(rd_xa(XA[c]))
        a(f"s_lshr_b64 s[{S_FF}:{S_FF+1}], s[{S_FF}:{S_FF+1}], 4")
        if u == 1: a(f"v_add_u32 v{PROW}, 128, v{PROW}\nv_add_u32 v{PEAD}, 64, v{PEAD}")
        nx = 'k2_mid' if u == 0 else 'k2_loop'
        if u == 0 and "ool" in OPT:
            a(f"""s_sub_u32 s{S_NT}, s{S_NT}, 1
            s_cmp_gt_u32 s{S_NT}, {PRIO[0]}
            s_cbranch_scc0 k2_pr
            k2_mid:""")
            OOL.append(f"""k2_pr:
            s_setprio 2
            s_cmp_gt_u32 s{S_NT}, {PRIO[1]}
            s_cbranch_scc1 k2_mid
            s_setprio 1
            s_cmp_gt_u32 s{S_NT}, 1
            s_cbranch_scc1 k2_mid
            s_branch k2_last1""")
            continue
        a(f"""s_sub_u32 s{S_NT}, s{S_NT}, 1
        s_cmp_gt_u32 s{S_NT}, {PRIO[0]}
        s_cbranch_scc1 {nx}
        s_setprio 2
        s_cmp_gt_u32 s{S_NT}, {PRIO[1]}
        s_cbranch_scc1 {nx}
        s_setprio 1
        s_cmp_gt_u32 s{S_NT}, 1""")
        a(f"s_cbranch_scc0 k2_last1\nk2_mid:" if u == 0 else "s_cbranch_scc1 k2_loop")
    for c in range(2):
        e = [f"v_exp_f32 v{Dd[c]+j}, v{Dd[c]+j}" for j in range(16)]
        a(f"k2_last{c}:\ns_setprio {oi('lprio', 0)}\ns_cmp_eq_u32 s{S_T}, 0\ns_cbranch_scc1 k2_half{c}")
        em(e); em(inter(seq(Dd[c], G[c], 0), seq(Dd[c] + 8, G[c] + 8, 1)))
        em(check(f"k2_safe{c+2}"))
        a(f"k2_ok{c+2}:"); em(rc)
        accum(a, c, range(4), f"l{c}")
        a(f"s_branch k2_loopend\nk2_half{c}:")
        em(e[:8]); em(seq(Dd[c], G[c], 0))
        em(check(f"k2_safe{c+4}", 1))
        a(f"k2_ok{c+4}:"); em(rc[:2]); a("s_nop 0")
        accum(a, c, range(2), f"h{c}")
        if c == 0: a("s_branch k2_loopend")
    a(f"""k2_loopend:
    v_mbcnt_lo_u32_b32 v{LANE}, -1, 0
    v_mbcnt_hi_u32_b32 v{LANE}, -1, v{LANE}
    s_cmp_le_u32 s{S_NQ}, 64
    s_cbranch_scc1 k2_epi
    s_sub_u32 s{S_NQ}, s{S_NQ}, 64
    s_add_u32 s{S_Q0}, s{S_Q0}, 64
    v_add_u32 v{PROW}, 128, v{PROW}
    v_add_u32 v{PEAD}, 64, v{PEAD}
    s_waitcnt lgkmcnt(0)
    s_branch k2_block""")
    for u in range(2): a(f"k2_noload{u}:\ns_waitcnt vmcnt(0)\ns_branch k2_loaded{u}")
    for x in OOL: a(x)
    for u in range(6):
        c = u % 2
        a(f"k2_safe{u}:")
        em(safe(Dd[c], G[c], 0))
        if u < 4: em(safe(Dd[c] + 8, G[c] + 8, 1))
        a(f"s_branch k2_ok{u}")

def epilogue(a):
    E, E2 = 0, 24
    CW, C2 = 4, 6
    OSC = {"": " sc1", "sc1": " sc1", "plain": "", "nt": " nt"}[OPT.get("outsc", "")]
    a("k2_epi:")
    stamp(a, 12)
    a.c("rounds of 8 nodes (8 features per lane), then one round of <= 4 nodes (4 features per lane)")
    a(f"""s_sub_u32 s{S_N1}, s{S_N1}, s{S_N0}
    s_add_u32 s{S_Y}, s{S_N1}, 3
    s_and_b32 s{S_Y}, s{S_Y}, -8
    s_add_u32 s{S_Y}, s{S_Y}, s{S_N0}
    s_mul_i32 s{S_Y}, s{S_Y}, {RS}
    s_mul_i32 s{S_Z}, s{S_N0}, {RS}
    v_lshrrev_b32 v{T0}, 3, v{LANE}
    v_lshrrev_b32 v{T1}, 4, v{LANE}
    v_lshl_add_u32 v{T2}, v{T0}, 4, s{S_Z}
    v_add_u32 v{CB}, v{T1}, v{LANE}
    v_lshl_add_u32 v{T2}, v{LANE}, 5, v{T2}
    v_lshl_add_u32 v{CB}, v{CB}, 4, s{S_Y}
    s_waitcnt vmcnt(0)
    ds_read_b128 v[{E}:{E+3}], v{T2} offset:{XAU}
    ds_read_b128 v[{E+4}:{E+7}], v{T2} offset:{XAU+16}
    ds_read_b128 v[{E2}:{E2+3}], v{CB} offset:{XAU}
    s_mul_i32 s{S_X}, s{S_R}, {L.RN}
    s_add_u32 s{S_X}, s{S_X}, s{S_N0}
    s_lshl_b32 s{S_X}, s{S_X}, 2
    s_add_u32 s{S_X}, s{S_X}, s{S_S}
    s_lshl_b32 s{S_X}, s{S_X}, 7
    v_mad_u32_u24 v{T3}, v{T0}, 24, v{LANE}
    v_mad_u32_u24 v{T1}, v{T1}, 48, v{LANE}
    v_lshlrev_b32 v{T3}, 4, v{T3}
    v_lshlrev_b32 v{T1}, 3, v{T1}
    s_mov_b32 s{CW}, 0xb5b8aa3b
    s_mov_b32 s{CW+1}, 0xb5b8aa3b
    s_mov_b32 s{C2}, 0x49800000
    s_mov_b32 s{C2+1}, 0x49800000""")
    def silu(E, n):
        for i in range(n): a(f"v_pk_mul_f32 v[{E+8+2*i}:{E+9+2*i}], v[{E+2*i}:{E+2*i+1}], s[{CW}:{CW+1}]")
        for i in range(2*n): a(f"v_exp_f32 v{E+8+i}, v{E+8+i}")
        for i in range(n): a(f"v_pk_fma_f32 v[{E+8+2*i}:{E+9+2*i}], v[{E+8+2*i}:{E+9+2*i}], s[{C2}:{C2+1}], s[{C2}:{C2+1}]")
        for i in range(2*n): a(f"v_rcp_f32 v{E+8+i}, v{E+8+i}")
        for i in range(n): a(f"v_pk_mul_f32 v[{E+2*i}:{E+2*i+1}], v[{E+2*i}:{E+2*i+1}], v[{E+8+2*i}:{E+9+2*i}]")
        for i in range(n): a(f"v_cvt_pk_bf16_f32 v{E+16+i}, v{E+2*i}, v{E+2*i+1}")
    a(f"""s_cmp_le_i32 s{S_N1}, 4
    s_cbranch_scc1 k2_e4
    k2_eloop:
    s_lshl_b32 s{S_Y}, s{S_N1}, 3
    s_bfm_b64 vcc, s{S_Y}, 0
    s_cmp_ge_u32 s{S_N1}, 8
    s_cselect_b64 vcc, -1, vcc
    s_waitcnt lgkmcnt(0)""")
    silu(E, 4)
    a(f"""s_mov_b64 exec, vcc
    buffer_store_dwordx4 v[{E+16}:{E+19}], v{T3}, s[{R_OUT}:{R_OUT+3}], s{S_X} offen{OSC}
    s_mov_b64 exec, -1
    s_add_u32 s{S_X}, s{S_X}, 0x1000
    s_sub_i32 s{S_N1}, s{S_N1}, 8
    s_cmp_le_i32 s{S_N1}, 4
    s_cbranch_scc1 k2_e4
    v_add_u32 v{T2}, {8*RS}, v{T2}
    ds_read_b128 v[{E}:{E+3}], v{T2} offset:{XAU}
    ds_read_b128 v[{E+4}:{E+7}], v{T2} offset:{XAU+16}
    s_branch k2_eloop
    k2_e4:
    s_cmp_le_i32 s{S_N1}, 0
    s_cbranch_scc1 k2_done
    s_lshl_b32 s{S_Y}, s{S_N1}, 4
    s_bfm_b64 vcc, s{S_Y}, 0
    s_cmp_ge_u32 s{S_N1}, 4
    s_cselect_b64 vcc, -1, vcc
    s_waitcnt lgkmcnt(0)""")
    silu(E2, 2)
    a(f"""s_mov_b64 exec, vcc
    buffer_store_dwordx2 v[{E2+16}:{E2+17}], v{T1}, s[{R_OUT}:{R_OUT+3}], s{S_X} offen{OSC}
    s_mov_b64 exec, -1
    k2_done:""")

def slowpath(a):
    CF, DV, SV, L4, TT, GV, XV, AV, ZZ = 0, 16, 17, 18, 19, 20, 21, 22, 24
    MK, EAS, SD, SS, SE = 4, 8, S_T, S_BASE, S_SL
    a("k_slow:\ns_setprio 0")
    wait(a, C_GO, 0x4108)
    wait(a, C_RDY, 4)
    a(f"""s_load_dwordx2 s[{RA}:{RA+1}], s[0:1], 24
    s_load_dwordx2 s[{RB}:{RB+1}], s[0:1], 16
    s_load_dwordx2 s[{RC}:{RC+1}], s[0:1], 8
    s_load_dwordx2 s[{RD}:{RD+1}], s[0:1], 48
    v_lshlrev_b32 v{L4}, 2, v{LANE}
    v_lshlrev_b32 v{TT}, 1, v{LANE}
    s_lshl_b32 s{S_X}, s{S_W}, 10
    s_add_u32 s{S_X}, s{S_X}, {EA}
    v_lshl_add_u32 v{AV}, v{LANE}, 4, s{S_X}""")
    for k in range(4): a(f"v_mov_b32 v{ZZ+k}, 0")
    for k in range(3): a(f"ds_write_b128 v{AV}, v[{ZZ}:{ZZ+3}] offset:{16384*k}")
    a(f"""s_waitcnt lgkmcnt(0)
    s_mov_b32 s{RA+2}, {L.E*4}
    s_mov_b32 s{RA+3}, 0x20000
    s_mov_b32 s{RB+2}, {L.E*4}
    s_mov_b32 s{RB+3}, 0x20000
    s_mov_b32 s{RC+2}, {L.E*32}
    s_mov_b32 s{RC+3}, 0x20000
    s_mov_b32 s{RD+2}, {528*512}
    s_mov_b32 s{RD+3}, 0x20000
    s_lshl_b32 s{S_X}, s{S_S}, 7
    s_add_u32 s{S_X}, s{S_X}, {512*512}
    s_add_u32 s{S_Y}, s{S_X}, 4096""")
    for k in range(16): a(f"buffer_load_ushort v{CF+k}, v{TT}, s[{RD}:{RD+3}], s{S_X if k < 8 else S_Y} offen offset:{512*(k%8)}")
    a("s_waitcnt vmcnt(0)")
    for k in range(16): a(f"v_lshlrev_b32 v{CF+k}, 16, v{CF+k}\nv_mul_f32 v{CF+k}, 0xbfb8aa3b, v{CF+k}")
    a(f"""s_mul_i32 s{S_Z}, s{S_R}, {L.RN}
    s_lshl_b32 s{S_NT}, s{S_W}, 8
    s_barrier
    sl_blk:
    buffer_load_dword v{DV}, v{L4}, s[{RA}:{RA+3}], s{S_NT} offen
    buffer_load_dword v{SV}, v{L4}, s[{RB}:{RB+3}], s{S_NT} offen
    s_waitcnt vmcnt(0)
    v_subrev_u32 v{DV}, s{S_Z}, v{DV}
    v_cmp_gt_u32 s[{MK}:{MK+1}], s{S_NV}, v{DV}
    v_mul_u32_u24 v{DV}, {RS}, v{DV}
""")
    rowcode(a, [GV], [SV], [TT], [XV])
    a(f"""v_and_b32 v{SV}, 0x3fff, v{GV}
    v_lshlrev_b32 v{SV}, 8, v{SV}
    sl_edge:
    s_cmp_eq_u64 s[{MK}:{MK+1}], 0
    s_cbranch_scc1 sl_next
    s_ff1_i32_b64 s{S_X}, s[{MK}:{MK+1}]
    s_bitset0_b64 s[{MK}:{MK+1}], s{S_X}
    v_readlane_b32 s{SD}, v{DV}, s{S_X}
    v_readlane_b32 s{SS}, v{SV}, s{S_X}
    s_lshl_b32 s{SE}, s{S_NT}, 3
    s_lshl_b32 s{S_X}, s{S_X}, 5
    s_add_u32 s{SE}, s{SE}, s{S_X}
    s_buffer_load_dwordx8 s[{EAS}:{EAS+7}], s[{RC}:{RC+3}], s{SE}
    v_mov_b32 v{TT}, s{SS}
    v_add_u32 v{AV}, s{SD}, v{L4}
    buffer_load_dword v{GV}, v{TT}, s[{R_TBL}:{R_TBL+3}], 0 offen{SC}
    ds_read_b32 v{XV}, v{AV} offset:{XAU}
    v_add_u32 v{AV}, {EA}, v{AV}
    s_waitcnt vmcnt(0) lgkmcnt(0)
    v_lshlrev_b32 v{XV}, 16, v{XV}
    v_lshlrev_b32 v{TT}, 16, v{GV}
    v_add_f32 v{XV}, v{XV}, v{TT}""")
    for k in range(8):
        a(f"""s_lshl_b32 s{S_X}, s{EAS+k}, 16
        s_and_b32 s{S_Y}, s{EAS+k}, 0xffff0000
        v_fmac_f32 v{XV}, s{S_X}, v{CF+2*k}
        v_fmac_f32 v{XV}, s{S_Y}, v{CF+2*k+1}""")
    a(f"""v_exp_f32 v{XV}, v{XV}
    s_nop 0
    v_add_f32 v{XV}, 1.0, v{XV}
    v_rcp_f32 v{XV}, v{XV}
    s_nop 0
    v_mul_f32 v{XV}, v{XV}, v{GV}
    ds_add_f32 v{AV}, v{XV}
    s_branch sl_edge
    sl_next:
    s_add_u32 s{S_NT}, s{S_NT}, 4096
    s_cmp_lt_u32 s{S_NT}, {L.E*4}
    s_cbranch_scc1 sl_blk
    s_waitcnt lgkmcnt(0)
    s_barrier
    s_mul_i32 s{S_N0}, s{S_W}, 10
    s_add_u32 s{S_N1}, s{S_N0}, 10
    s_min_u32 s{S_N0}, s{S_N0}, s{S_NV}
    s_min_u32 s{S_N1}, s{S_N1}, s{S_NV}
    s_mul_i32 s{S_X}, s{S_W}, {10*RS}
    v_add_u32 v{AV}, s{S_X}, v{L4}
    v_add_u32 v{TT}, {EA}, v{AV}""")
    for k in range(10):
        a(f"""ds_read_b32 v{XV}, v{AV} offset:{XAU + k*RS}
        ds_read_b32 v{GV}, v{TT} offset:{k*RS}
        s_waitcnt lgkmcnt(0)
        v_and_b32 v{XV}, 0xffff0000, v{XV}
        v_add_f32 v{XV}, v{XV}, v{GV}
        ds_write_b32 v{AV}, v{XV} offset:{XAU + k*RS}""")
    a("s_branch k2_epi")

def kernel(a):
    a(f".globl {NAME}\n.p2align 8\n.type {NAME},@function\n{NAME}:")
    a(f"""s_cmp_ge_u32 s2, 256
    s_cbranch_scc1 k_end
    s_load_dwordx16 s[4:19], s[0:1], 0
    s_load_dwordx4 s[20:23], s[0:1], 64""")
    if STAMPS: a(f"s_memrealtime s[{ST0}:{ST0+1}]")
    if "code" in OPT:
        dup = oi("code", 0) if OPT["code"] else 0
        a.c("touch a distinct part of the code (fills this die's L2)")
        a(f"""s_getpc_b64 s[{S_Q0}:{S_Q0+1}]
        k_pc:
        s_bfe_u32 s{S_X}, s2, {((5 - dup) << 16) | 3:#x}
        s_lshl_b32 s{S_X}, s{S_X}, 7
        v_lshl_add_u32 v1, v0, {12 - dup}, s{S_X}
        v_cmp_gt_u32 vcc, k_end-k_pc, v1
        s_and_b64 exec, exec, vcc
        s_cbranch_execz k_nocode
        global_load_dword v{TID}, v1, s[{S_Q0}:{S_Q0+1}]
        k_nocode:
        s_mov_b64 exec, -1""")
    a(f"v_lshrrev_b32 v1, 6, v0")
    MAP = OPT.get("map", "4")
    if MAP == "4":
        a(f"""s_and_b32 s{S_S}, s2, 3
        s_lshr_b32 s{S_R}, s2, 3
        s_bfe_u32 s{S_X}, s2, 0x10002
        s_lshl_b32 s{S_X}, s{S_X}, 5
        s_add_u32 s{S_R}, s{S_R}, s{S_X}""")
    elif MAP == "2":
        a(f"""s_and_b32 s{S_S}, s2, 1
        s_lshl_b32 s{S_S}, s{S_S}, 1
        s_bfe_u32 s{S_X}, s2, 0x10003
        s_add_u32 s{S_S}, s{S_S}, s{S_X}
        s_lshr_b32 s{S_R}, s2, 4
        s_bfe_u32 s{S_X}, s2, 0x20001
        s_lshl_b32 s{S_X}, s{S_X}, 4
        s_add_u32 s{S_R}, s{S_R}, s{S_X}""")
    else:
        a(f"""s_bfe_u32 s{S_S}, s2, 0x20003
        s_lshr_b32 s{S_R}, s2, 5
        s_and_b32 s{S_X}, s2, 7
        s_lshl_b32 s{S_X}, s{S_X}, 3
        s_add_u32 s{S_R}, s{S_R}, s{S_X}""")
    a(f"""v_readfirstlane_b32 s{S_W}, v1
    s_mul_i32 s{S_X}, s{S_R}, {L.RN}
    s_sub_u32 s{S_NV}, {L.N}, s{S_X}
    s_min_u32 s{S_NV}, s{S_NV}, {L.RN}
    v_and_b32 v{LANE}, 63, v0
    v_mov_b32 v{CB}, {CNT}
    v_mov_b32 v{ONE}, 1""")
    if STAMPS:
        for j in range(1, 16): a(f"s_mov_b64 s[{ST0+2*j}:{ST0+2*j+1}], 0")
    a(f"""s_cmp_ge_u32 s{S_W}, 8
    s_waitcnt lgkmcnt(0)
    s_cbranch_scc1 g_role""")
    s_role(a); g_role(a); mainloop(a); slowpath(a); epilogue(a)
    if STAMPS:
        a("s_waitcnt vmcnt(0)"); stamp(a, 13)
        if "xcc" in OPT: a(f"s_getreg_b32 s{ST0+28}, hwreg(HW_REG_XCC_ID)\ns_getreg_b32 s{ST0+29}, hwreg(HW_REG_HW_ID)")
        if "trace" in OPT:
            for j in range(1, 11): a(f"v_readlane_b32 s{ST0+2*j}, v{CC}, {j+1}\ns_mov_b32 s{ST0+2*j+1}, s{ST0+1}")
        stamp_flush(a)
    a("k_end:\ns_endpgm")

if __name__ == "__main__":
    a = Asm()
    kernel(a)
    hdr = open("gather_scatter__edge_featured_mpnn_egc__graph.s.ref").read().split("; Override launch")[0]
    out = hdr + f"""; @launch grid=(256,1,1) block=(1024,1,1) lds={LDSZ}
.amdgcn_target "amdgcn-amd-amdhsa--gfx950"
.text
""" + a.text() + f""".section .rodata,"a"
.p2align 6
.amdhsa_kernel {NAME}
  .amdhsa_next_free_vgpr 128
  .amdhsa_next_free_sgpr 102
  .amdhsa_accum_offset 128
  .amdhsa_group_segment_fixed_size 0
  .amdhsa_kernarg_size 80
  .amdhsa_user_sgpr_count 2
  .amdhsa_user_sgpr_kernarg_segment_ptr 1
  .amdhsa_system_sgpr_workgroup_id_x 1
  .amdhsa_float_denorm_mode_32 3
.end_amdhsa_kernel
"""
    open(sys.argv[1], "w").write(out)
```
